```python
import torch

def _softmax(x, axis=-1):
    return torch.softmax(x, dim=axis)

def _gelu(x):
    return torch.nn.functional.gelu(x, approximate='tanh')

def _silu(x):
    return torch.nn.functional.silu(x)

def _sigmoid(x):
    return torch.sigmoid(x)

def _layernorm(x, axis=-1, eps=1e-05):
    m = x.mean(dim=axis, keepdim=True)
    v = x.var(dim=axis, keepdim=True, unbiased=False)
    return (x - m) / torch.sqrt(v + eps)

def _scatter_add(tgt, idx, src, axis=0):
    return tgt.clone().index_add_(axis, idx, src)

def _segment_sum(src, seg, n):
    out = torch.zeros((n,) + src.shape[1:], dtype=src.dtype)
    return out.index_add_(0, seg, src)

def _pad(x, pw):
    flat = tuple((v for pair in reversed(pw) for v in pair))
    return torch.nn.functional.pad(x, flat)
kernel_name = 'gated_mix__ssm_conv_s4d__mixer_gmlp__prompt'

def setup_inputs():

    _w = lambda a: (lambda t: t.to(torch.bfloat16) if t.is_floating_point() else t)(torch.as_tensor(a))

    def _A_setup():
        Bsz, L, D, N = (1, 2048, 576, 128)
        return {'u': _w((lambda *s: torch.randn(*s, dtype=torch.bfloat16) * 0.05)(Bsz, L, D)), 'log_A_real': _w((lambda *s: torch.randn(*s, dtype=torch.bfloat16) * 3.2)(D, N) * 0.5), 'A_imag': _w((lambda *s: torch.randn(*s, dtype=torch.bfloat16) * 0.05)(D, N) * 3.14), 'C_real': _w((lambda *s: torch.randn(*s, dtype=torch.bfloat16) * 3.2)(D, N) / N ** 0.5), 'C_imag': _w((lambda *s: torch.randn(*s, dtype=torch.bfloat16) * 3.2)(D, N) / N ** 0.5), 'log_dt': _w((lambda *s: torch.randn(*s, dtype=torch.bfloat16) * 0.05)(D) * 0.5 - 4.0), 'D_skip': _w((lambda *s: torch.randn(*s, dtype=torch.bfloat16) * 0.4)(D))}
    _A_in = _A_setup()

    def _B_setup():
        B, S, D, F = (1, 2048, 576, 4608)
        Fh = F // 2
        return {'x': _w((lambda *s: torch.randn(*s, dtype=torch.bfloat16) * 0.05)(B, S, D)), 'w_in': _w((lambda *s: torch.randn(*s, dtype=torch.bfloat16) * 0.2)(D, 2 * Fh)), 'w_sp': _w(0.01 * (lambda *s: torch.randn(*s, dtype=torch.bfloat16) * 0.2)(S, S)), 'b_sp': _w(1.0 + 0.01 * (lambda *s: torch.randn(*s, dtype=torch.bfloat16) * 0.05)(S)), 'w_out': _w((lambda *s: torch.randn(*s, dtype=torch.bfloat16) * 0.05)(Fh, D))}
    _B_in = _B_setup()
    return {'A_u': _A_in['u'], 'A_log_A_real': _A_in['log_A_real'], 'A_A_imag': _A_in['A_imag'], 'A_C_real': _A_in['C_real'], 'A_C_imag': _A_in['C_imag'], 'A_log_dt': _A_in['log_dt'], 'A_D_skip': _A_in['D_skip'], 'B_x': _B_in['x'], 'B_w_in': _B_in['w_in'], 'B_w_sp': _B_in['w_sp'], 'B_b_sp': _B_in['b_sp'], 'B_w_out': _B_in['w_out'], 'gate_w': _w((lambda *s: torch.randn(*s, dtype=torch.bfloat16) * 0.05)(576) * 16.0)}

def reference(A_u, A_log_A_real, A_A_imag, A_C_real, A_C_imag, A_log_dt, A_D_skip, B_x, B_w_in, B_w_sp, B_b_sp, B_w_out, gate_w):

    def _A_ref(u, log_A_real, A_imag, C_real, C_imag, log_dt, D_skip):
        L = u.shape[1]
        dt = torch.exp(log_dt)
        A = -torch.exp(log_A_real) + 1j * A_imag
        C = (C_real + 1j * C_imag) * dt[:, None]
        pos = (lambda x, dt: x.to(dt))(torch.arange(L), log_dt.dtype)
        P = torch.exp((A * dt[:, None])[:, :, None] * pos[None, None, :])
        K = 2.0 * torch.einsum('dn,dnl->dl', C, P).real
        L2 = 2 * L
        u_t = (lambda x, *d: x.permute(*d))(u, 0, 2, 1)
        Kf = (lambda x, *a, **k: torch.fft.rfft(x.float(), *a, **k))(K, L2)
        Uf = (lambda x, *a, **k: torch.fft.rfft(x.float(), *a, **k))(u_t, L2)
        y = (lambda x, *a, **k: torch.fft.irfft(x, *a, **k).to(torch.bfloat16))(Uf * Kf[None, :, :], L2)[:, :, :L]
        y = (lambda x, *d: x.permute(*d))(y, 0, 2, 1)
        return y + u * D_skip[None, None, :]

    def _B_ref(x, w_in, w_sp, b_sp, w_out):
        B, S, D = x.shape
        F = w_in.shape[-1]
        Fh = F // 2
        z = _gelu(torch.einsum('bsd,df->bsf', x, w_in))
        z1 = z[..., :Fh].clone()
        z2 = _layernorm(z[..., Fh:], axis=-1)
        g = torch.einsum('ts,bsf->btf', w_sp, z2) + b_sp[None, :, None]
        return torch.einsum('bsf,fd->bsd', z1 * g, w_out)
    x = A_u
    g = _sigmoid((x * gate_w).sum(-1, keepdims=True))
    a = _A_ref(x, A_log_A_real, A_A_imag, A_C_real, A_C_imag, A_log_dt, A_D_skip)
    b = _B_ref(x, B_w_in, B_w_sp, B_b_sp, B_w_out)
    return g * a + (1 - g) * b
```

```python
import struct
class Asm:
    def __init__(self):
        self.lines = []
    def __call__(self, s):
        if isinstance(s, (list, tuple)):
            for x in s: self(x)
        else:
            self.lines.append("    " + s)
    def label(self, s):
        self.lines.append(s + ":")
    def c(self, s):
        self.lines.append("    ; " + s)
    def raw(self, s):
        self.lines.append(s)
    def text(self):
        return "\n".join(self.lines) + "\n"

def vr(b, n=1):
    return f"v{b}" if n == 1 else f"v[{b}:{b+n-1}]"
def ar(b, n=1):
    return f"a{b}" if n == 1 else f"a[{b}:{b+n-1}]"
def sr(b, n=1):
    return f"s{b}" if n == 1 else f"s[{b}:{b+n-1}]"
def f32(x):
    return "0x%08x" % struct.unpack("<I", struct.pack("<f", x))[0]

def kernel_begin(A, name):
    A.raw(f".globl {name}")
    A.raw(".p2align 8")
    A.raw(f".type {name},@function")
    A.label(name)

def kernel_desc(name, vgpr, sgpr=102, accum=None):
    if accum is None:
        accum = (vgpr + 3) // 4 * 4
    return f""".p2align 6
.amdhsa_kernel {name}
  .amdhsa_next_free_vgpr {vgpr}
  .amdhsa_next_free_sgpr {sgpr}
  .amdhsa_accum_offset {accum}
  .amdhsa_group_segment_fixed_size 0
  .amdhsa_kernarg_size 128
  .amdhsa_user_sgpr_count 2
  .amdhsa_user_sgpr_kernarg_segment_ptr 1
  .amdhsa_system_sgpr_workgroup_id_x 1
.end_amdhsa_kernel
"""

def interleave(main, fill, start=0, per=1, stride=1):
    out = []
    fi = 0
    for i, m in enumerate(main):
        out.append(m)
        if i >= start and (i - start) % stride == 0:
            for _ in range(per):
                if fi < len(fill):
                    out.extend(fill[fi]); fi += 1
    while fi < len(fill):
        out.extend(fill[fi]); fi += 1
    return out

def srd(A, d, base_lo, base_hi, off, nbytes):
    if off is None:
        A(f"s_mov_b32 s{d}, s{base_lo}")
        A(f"s_mov_b32 s{d+1}, s{base_hi}")
    else:
        A(f"s_add_u32 s{d}, s{base_lo}, {off}")
        A(f"s_addc_u32 s{d+1}, s{base_hi}, 0")
    A(f"s_mov_b32 s{d+2}, {nbytes}")
    A(f"s_mov_b32 s{d+3}, 0x20000")

def stamp(A, i, real=False):
    A(f"s_memtime s[{80+2*i}:{81+2*i}]" if not real else f"s_memrealtime s[{80+2*i}:{81+2*i}]")

def stamp_store(A, name, ws_lo, slot, wave_sreg, wave_sel=0):
    A("s_waitcnt lgkmcnt(0)")
    A(f"s_cmp_lg_u32 s{wave_sreg}, {wave_sel}")
    A(f"s_cbranch_scc1 {name}_nost{wave_sel}")
    A("s_lshl_b32 s76, s2, 6")
    A(f"s_add_u32 s76, s76, {WS_DBG + slot*16384}")
    A(f"s_add_u32 s72, s{ws_lo}, s76")
    A(f"s_addc_u32 s73, s{ws_lo+1}, 0")
    A("s_mov_b32 s74, 64")
    A("s_mov_b32 s75, 0x20000")
    A("v_mov_b32 v1, 0")
    for i in range(16):
        A(f"v_mov_b32 v{4+i}, s{80+i}")
    for i in range(4):
        A(f"buffer_store_dwordx4 v[{4+4*i}:{7+4*i}], v1, s[72:75], 0 offen offset:{16*i}")
    A.label(f"{name}_nost{wave_sel}")

HEADER = """; Kernarg layout for this problem (128 bytes, ptrs only, base s[0:1]):
"""
WS_Z1F  = 0x0000000
WS_Z2F  = 0x0900000
WS_HF   = 0x1200000
WS_AT   = 0x2400000
WS_WOT  = 0x1E00000
WS_ST   = 0x2100000
WS_G    = 0x2140000
WS_KT   = 0x2200000
WS_DBG  = 0x3000000
```

```python
from asmlib import *
import math
LOG2E = 1.4426950408889634
GC0 = -2.0 * LOG2E * math.sqrt(2.0 / math.pi)
GC1 = GC0 * 0.044715
STG = 34816
S = 4

def tile_ids(A):
    A("v_lshrrev_b32 v1, 6, v0")
    A("s_and_b32 s3, s2, 7")
    A("s_lshr_b32 s26, s2, 3")
    A("v_readfirstlane_b32 s27, v1")
    A("s_and_b32 s28, s3, 3")
    A("s_lshl_b32 s28, s28, 2")
    A("s_and_b32 s29, s26, 3")
    A("s_add_u32 s28, s28, s29")
    A("s_lshr_b32 s29, s3, 2")
    A("s_lshl_b32 s29, s29, 3")
    A("s_lshr_b32 s30, s26, 2")
    A("s_add_u32 s29, s29, s30")
    A("s_and_b32 s31, s27, 3")
    A("v_and_b32 v0, 63, v0")

def rowperm_voff(A, dst, pitch):
    A("v_lshrrev_b32 v5, 3, v0")
    A("v_lshrrev_b32 v6, 4, v0")
    A("v_and_b32 v7, 7, v0")
    A("s_and_b32 s32, s31, 1")
    A("s_lshl_b32 s33, s32, 2")
    A("v_add_u32 v8, s33, v6")
    A("v_xor_b32 v8, v8, v7")
    A("v_lshlrev_b32 v8, 4, v8")
    A("v_lshrrev_b32 v9, 5, v0")
    A("v_lshlrev_b32 v9, 3, v9")
    A("v_and_b32 v10, 3, v5")
    A("v_add_u32 v9, v9, v10")
    A("s_lshl_b32 s33, s32, 4")
    A("s_lshr_b32 s34, s31, 1")
    A("s_lshl_b32 s34, s34, 2")
    A("s_add_u32 s33, s33, s34")
    A("v_add_u32 v9, s33, v9")
    A(f"v_mul_u32_u24 v9, {pitch}, v9")
    A(f"v_add_u32 v{dst}, v9, v8")

def gelu_ops(regs, tmp, vc1):
    o = []
    n = len(regs)
    for i, r in enumerate(regs): o.append(f"v_mul_f32 v{tmp+i}, v{r}, v{r}")
    for i, r in enumerate(regs): o.append(f"v_fmaak_f32 v{tmp+i}, v{tmp+i}, v{vc1}, {f32(GC0)}")
    for i, r in enumerate(regs): o.append(f"v_mul_f32 v{tmp+i}, v{r}, v{tmp+i}")
    for i, r in enumerate(regs): o.append(f"v_exp_f32 v{tmp+i}, v{tmp+i}")
    for i, r in enumerate(regs): o.append(f"v_add_f32 v{tmp+i}, 1.0, v{tmp+i}")
    for i, r in enumerate(regs): o.append(f"v_rcp_f32 v{tmp+i}, v{tmp+i}")
    for i, r in enumerate(regs): o.append(f"v_mul_f32 v{r}, v{r}, v{tmp+i}")
    return o

def bf16_round(A, v):
    A(f"v_cvt_pk_bf16_f32 v{v}, v{v}, v{v}")
    A(f"v_and_b32 v{v}, 0xffff0000, v{v}")

def gen_k1(A, name="k1_kernel", diag=False):
    LDS_X = S * STG
    kernel_begin(A, name)
    A("s_cmp_ge_u32 s2, 256")
    A(f"s_cbranch_scc1 {name}_end")
    if diag: stamp(A, 0); stamp(A, 1, True)
    A("s_load_dwordx2 s[16:17], s[0:1], 0")
    A("s_load_dwordx2 s[18:19], s[0:1], 64")
    A("s_load_dwordx4 s[20:23], s[0:1], 88")
    A("s_load_dwordx4 s[36:39], s[0:1], 112")
    tile_ids(A)
    A("s_cmp_ge_u32 s27, 4")
    A(f"s_cbranch_scc1 {name}_loader")
    ACC2 = 16; Z2P = 16; ACC1 = 52
    SET = [124, 168]
    RX = 212; RW = 220; VC1 = 224; SUM = 226
    VEND = 242
    A("v_and_b32 v5, 15, v0")
    A("v_lshrrev_b32 v6, 4, v0")
    A("v_lshrrev_b32 v7, 1, v5")
    A("v_xor_b32 v7, v7, v6")
    A("v_lshlrev_b32 v7, 4, v7")
    A("v_lshlrev_b32 v8, 7, v5")
    A("v_add_u32 v7, v7, v8")
    A("s_lshl_b32 s33, s31, 12")
    A(f"s_add_u32 s33, s33, 18432")
    A("v_add_u32 v7, s33, v7")
    A("v_lshrrev_b32 v8, 1, v6")
    A("v_lshlrev_b32 v8, 4, v8")
    A("v_and_b32 v9, 1, v6")
    A("v_lshlrev_b32 v9, 2, v9")
    A("v_add_u32 v8, v8, v9")
    A("v_lshrrev_b32 v9, 2, v5")
    A("v_add_u32 v8, v8, v9")
    A("v_mul_u32_u24 v8, 288, v8")
    A("v_and_b32 v9, 3, v5")
    A("v_lshlrev_b32 v9, 3, v9")
    A("v_add_u32 v8, v8, v9")
    for st in range(S):
        A(f"v_add_u32 v{RX+2*st}, {st*STG}, v7")
        A(f"v_xor_b32 v{RX+2*st+1}, 64, v{RX+2*st}")
        A(f"v_add_u32 v{RW+st}, {st*STG}, v8")
    A(f"v_mov_b32 v{VC1}, {f32(GC1)}")
    for r in range(72): A(f"v_mov_b32 v{ACC2+r}, 0")

    def reads(setid, slot, ks):
        b = SET[setid]
        X = lambda a: [f"ds_read_b128 {vr(b+4*a,4)}, v{RX+2*slot+ks} offset:{a*2048}"]
        W = lambda t, h: [f"ds_read_b64_tr_b16 {vr(b+8+4*t+2*h,2)}, v{RW+slot} offset:{ks*9216+h*2304+t*32}"]
        out = [X(0), W(0,0), W(0,1), X(1)]
        for t in range(1, 9): out += [W(t,0), W(t,1)]
        return out
    def mfmas(setid, half):
        b = SET[setid]
        out = []
        for t in range(9):
            for a in range(2):
                c = (ACC2 if half == 0 else ACC1) + (t*2+a)*4
                x = vr(b+4*a,4); w = vr(b+8+4*t,4)
                if half == 0: out.append(f"v_mfma_f32_16x16x32_bf16 {vr(c,4)}, {x}, {w}, {vr(c,4)}")
                else:         out.append(f"v_mfma_f32_16x16x32_bf16 {vr(c,4)}, {w}, {x}, {vr(c,4)}")
        return out
    A("s_barrier")
    if diag: stamp(A, 2)
    for g in reads(0, 0, 0): A(g)
    for st in range(18):
        half = st // 9
        slot = st % S
        A("s_waitcnt lgkmcnt(0)")
        A(interleave(mfmas(0, half), reads(1, slot, 1), per=2))
        A("s_waitcnt vmcnt(0) lgkmcnt(0)" if st == 9 else "s_waitcnt lgkmcnt(0)")
        last = (st == 17)
        if not last:
            A("s_barrier")
        if st == 9:
            A("s_cmp_lg_u32 s27, 0")
            A(f"s_cbranch_scc1 {name}_nosig")
            A("s_lshl_b32 s33, s29, 4")
            A("v_mov_b32 v6, s33")
            A("v_mov_b32 v7, 1")
            A("s_mov_b64 exec, 1")
            A("buffer_atomic_add v7, v6, s[44:47], 0 offen")
            A("s_mov_b64 exec, -1")
            A.label(f"{name}_nosig")
        fill = [] if last else reads(0, (slot+1) % S, 0)
        A(interleave(mfmas(1, half), fill, per=2))
        if st == 8:
            if diag: stamp(A, 3)
            T = SET[1]
            A("s_nop 7")
            for i in range(16): A(f"v_mov_b32 v{SUM+i}, 0")
            for t in range(9):
                regs = [ACC2 + 8*t + i for i in range(8)]
                A(gelu_ops(regs, T, VC1))
                for i in range(8): A(f"v_add_f32 v{SUM+2*i}, v{SUM+2*i}, v{regs[i]}")
                for i in range(8): A(f"v_fmac_f32 v{SUM+2*i+1}, v{regs[i]}, v{regs[i]}")
                for j in range(4): A(f"v_cvt_pk_bf16_f32 v{Z2P+4*t+j}, v{regs[2*j]}, v{regs[2*j+1]}")
            for rot in (8, 4, 2, 1):
                for i in range(16):
                    A(f"v_add_f32_dpp v{SUM+i}, v{SUM+i}, v{SUM+i} row_ror:{rot} row_mask:0xf bank_mask:0xf")
            A("s_waitcnt lgkmcnt(0)")
            A("s_lshl_b32 s32, s29, 4")
            A("s_add_u32 s32, s32, s28")
            A("s_lshl_b32 s32, s32, 10")
            A(f"s_add_u32 s32, s32, {WS_ST}")
            srd(A, 40, 38, 39, "s32", 1024)
            A("v_lshrrev_b32 v6, 4, v0")
            A("v_lshlrev_b32 v6, 6, v6")
            A("s_lshl_b32 s33, s31, 8")
            A("v_add_u32 v6, s33, v6")
            A("s_mov_b32 s34, 0x00010001")
            A("s_mov_b32 s35, 0x00010001")
            A("s_mov_b64 exec, s[34:35]")
            for i in range(4):
                A(f"buffer_store_dwordx4 {vr(SUM+4*i,4)}, v6, s[40:43], 0 offen offset:{16*i} sc1")
            A("s_mov_b64 exec, -1")
            for r in range(72): A(f"v_mov_b32 v{ACC1+r}, 0")
            srd(A, 44, 36, 37, None, 256)
            if diag: stamp(A, 4)
    if diag: stamp(A, 5)
    T = SET[1]; P = SET[0]
    A("s_nop 7")
    A("s_lshl_b32 s32, s29, 4")
    A("s_add_u32 s32, s32, s28")
    A("s_mul_i32 s32, s32, 36864")
    A("s_mul_i32 s33, s31, 9216")
    A("s_add_u32 s32, s32, s33")
    srd(A, 40, 38, 39, "s32", 9216)
    A("v_lshlrev_b32 v6, 4, v0")
    A("s_movk_i32 s33, 4096")
    A("s_movk_i32 s34, 8192")
    for t in range(9):
        regs = [ACC1 + 8*t + i for i in range(8)]
        A(gelu_ops(regs, T, VC1))
        for nb in range(2):
            for j in range(2):
                if t < 8: dst = P + (nb*4 + (t >> 1))*4 + (t & 1)*2 + j
                else:     dst = P + 32 + nb*2 + j
                A(f"v_cvt_pk_bf16_f32 v{dst}, v{regs[4*nb+2*j]}, v{regs[4*nb+2*j+1]}")
        if t & 1:
            for nb in range(2):
                jj = nb*4 + (t >> 1)
                A(f"buffer_store_dwordx4 {vr(P+4*jj,4)}, v6, s[40:43], {'s33' if nb else '0'} offen offset:{(t>>1)*1024}")
        if t == 8:
            A(f"buffer_store_dwordx4 {vr(P+32,4)}, v6, s[40:43], s34 offen")
    if diag: stamp(A, 6)
    A("s_lshl_b32 s33, s29, 4")
    A("v_mov_b32 v6, s33")
    A("s_mov_b32 s34, 0")
    A.label(f"{name}_poll")
    A("buffer_load_dword v7, v6, s[44:47], 0 offen sc1")
    A("s_waitcnt vmcnt(0)")
    A("v_readfirstlane_b32 s35, v7")
    A("s_add_u32 s34, s34, 1")
    A("s_cmp_ge_u32 s35, 16")
    A(f"s_cbranch_scc1 {name}_polled")
    A("s_sleep 2")
    A("s_cmp_lt_u32 s34, 200000")
    A(f"s_cbranch_scc1 {name}_poll")
    A.label(f"{name}_polled")
    A("s_lshl_b32 s32, s29, 14")
    A(f"s_add_u32 s32, s32, {WS_ST}")
    srd(A, 40, 38, 39, "s32", 16384)
    A("v_and_b32 v6, 31, v0")
    A("v_lshlrev_b32 v6, 3, v6")
    A("v_lshrrev_b32 v7, 5, v0")
    A("v_lshlrev_b32 v7, 13, v7")
    A("v_add_u32 v6, v6, v7")
    A("s_lshl_b32 s33, s31, 8")
    A("s_add_u32 s34, s33, 4096")
    for j in range(8):
        A(f"buffer_load_dwordx2 {vr(T+2*j,2)}, v6, s[40:43], {'s33' if j < 4 else 's34'} offen offset:{(j&3)*1024} sc1")
    A("s_waitcnt vmcnt(0)")
    for stp in (4, 2, 1):
        for j in range(stp):
            A(f"v_add_f32 v{T+2*j}, v{T+2*j}, v{T+2*(j+stp)}")
            A(f"v_add_f32 v{T+2*j+1}, v{T+2*j+1}, v{T+2*(j+stp)+1}")
    A(f"v_mov_b32 v{T+2}, v{T}")
    A(f"v_mov_b32 v{T+3}, v{T+1}")
    A("s_nop 1")
    A(f"v_permlane32_swap_b32 v{T}, v{T+2}")
    A(f"v_permlane32_swap_b32 v{T+1}, v{T+3}")
    A("s_nop 1")
    A(f"v_add_f32 v{T}, v{T}, v{T+2}")
    A(f"v_add_f32 v{T+1}, v{T+1}, v{T+3}")
    A(f"v_mul_f32 v{T}, {f32(1/2304)}, v{T}")
    A(f"v_mul_f32 v{T+1}, {f32(1/2304)}, v{T+1}")
    A(f"v_fma_f32 v{T+1}, -v{T}, v{T}, v{T+1}")
    A(f"v_max_f32 v{T+1}, 0, v{T+1}")
    bf16_round(A, T); bf16_round(A, T+1)
    A(f"v_add_f32 v{T+1}, {f32(1e-5)}, v{T+1}")
    bf16_round(A, T+1)
    A(f"v_sqrt_f32 v{T+1}, v{T+1}")
    A("s_nop 0")
    bf16_round(A, T+1)
    A(f"v_rcp_f32 v{T+2}, v{T+1}")
    A("s_nop 0")
    A(f"v_mul_f32 v{T+3}, v{T}, v{T+2}")
    A(f"v_sub_f32 v{T+3}, 0, v{T+3}")
    A("v_and_b32 v6, 31, v0")
    A("v_lshlrev_b32 v6, 3, v6")
    A(f"s_add_u32 s33, s33, {LDS_X}")
    A("v_add_u32 v6, s33, v6")
    A(f"ds_write_b64 v6, {vr(T+2,2)}")
    A("v_lshrrev_b32 v7, 4, v0")
    A("v_lshlrev_b32 v7, 6, v7")
    A("v_add_u32 v7, s33, v7")
    for i in range(4):
        A(f"ds_read_b128 {vr(SUM+4*i,4)}, v7 offset:{16*i}")
    A("s_lshl_b32 s32, s28, 5")
    A("s_lshl_b32 s34, s29, 1")
    A("s_add_u32 s32, s32, s34")
    A("s_mul_i32 s32, s32, 18432")
    A("s_mul_i32 s34, s31, 9216")
    A("s_add_u32 s32, s32, s34")
    A(f"s_add_u32 s32, s32, {WS_Z2F}")
    srd(A, 40, 38, 39, "s32", 9216)
    A("v_lshlrev_b32 v6, 4, v0")
    A("s_movk_i32 s33, 4096")
    A("s_movk_i32 s34, 8192")
    A("s_waitcnt lgkmcnt(0)")
    for t in range(9):
        tb = T + 8*(t & 1)
        for j in range(4):
            A(f"v_lshlrev_b32 v{tb+2*j}, 16, v{Z2P+4*t+j}")
            A(f"v_and_b32 v{tb+2*j+1}, 0xffff0000, v{Z2P+4*t+j}")
        for i in range(8):
            A(f"v_fma_f32 v{tb+i}, v{tb+i}, v{SUM+2*i}, v{SUM+2*i+1}")
        for j in range(4):
            A(f"v_cvt_pk_bf16_f32 v{Z2P+4*t+j}, v{tb+2*j}, v{tb+2*j+1}")
        so = ["0", "s33", "s34"][t >> 2]
        A(f"buffer_store_dwordx4 {vr(Z2P+4*t,4)}, v6, s[40:43], {so} offen offset:{(t&3)*1024}")
    if diag:
        A("s_waitcnt vmcnt(0)")
        stamp(A, 7, True)
        stamp_store(A, name, 38, 0, 27)
    A("s_endpgm")

    A.label(f"{name}_loader")
    rowperm_voff(A, 2, 1152)
    for i in range(5):
        if i < 4:
            A("s_lshl_b32 s32, s31, 6")
            A(f"s_add_u32 s32, s32, {256*i}")
        else:
            A("s_lshl_b32 s32, s31, 5")
            A(f"s_add_u32 s32, s32, 1024")
        A("v_add_u32 v5, s32, v0")
        A("v_mul_u32_u24 v6, 3641, v5")
        A("v_lshrrev_b32 v6, 16, v6")
        A("v_mul_u32_u24 v7, 18, v6")
        A("v_sub_u32 v7, v5, v7")
        A("v_and_b32 v8, 0x33, v6")
        A("v_and_b32 v9, 4, v6")
        A("v_lshl_or_b32 v8, v9, 1, v8")
        A("v_and_b32 v9, 8, v6")
        A("v_lshrrev_b32 v9, 1, v9")
        A("v_or_b32 v8, v8, v9")
        A("v_mul_u32_u24 v8, 9216, v8")
        A(f"v_lshl_add_u32 v{11+i}, v7, 4, v8")
    A("s_waitcnt lgkmcnt(0)")
    A(f"s_mul_i32 s32, s29, {128*1152}")
    srd(A, 4, 16, 17, "s32", 128*1152)
    A("s_mul_i32 s32, s28, 288")
    srd(A, 8, 18, 19, "s32", 575*9216 + 4608 + 288)
    A("s_lshl_b32 s44, s31, 10")
    A("s_lshl_b32 s45, s31, 9")
    def dma_stage(st):
        slot = st % S; base = slot * STG
        kk = st % 9
        wso = kk*64*9216 + (4608 if st < 9 else 0)
        A(f"s_mov_b32 s41, {wso}")
        for i in range(4):
            A(f"s_add_u32 m0, s44, {base + i*4096}")
            A(f"s_mov_b32 s40, {i*32*1152 + kk*128}")
            A(f"buffer_load_dwordx4 v{11+i}, s[8:11], s41 offen lds")
            A(f"s_add_u32 m0, s44, {base + 18432 + i*4096}")
            A("s_nop 0")
            A(f"buffer_load_dwordx4 v2, s[4:7], s40 offen lds")
        A(f"s_add_u32 m0, s45, {base + 16384}")
        A("s_mov_b64 exec, 0xffffffff")
        A("buffer_load_dwordx4 v15, s[8:11], s41 offen lds")
        A("s_mov_b64 exec, -1")
    for st in range(S): dma_stage(st)
    A(f"s_waitcnt vmcnt({(S-1)*9})")
    A("s_barrier")
    for st in range(17):
        outstanding_after = min(S - 2, 17 - (st + 1))
        A(f"s_waitcnt vmcnt({outstanding_after*9})")
        A("s_barrier")
        if st + S < 18: dma_stage(st + S)
    srd(A, 4, 16, 17, None, 2048*1152)
    srd(A, 8, 22, 23, None, 1152)
    A("s_lshl_b32 s32, s2, 3")
    A("s_lshl_b32 s33, s31, 1")
    A("s_add_u32 s32, s32, s33")
    A("v_lshrrev_b32 v5, 5, v0")
    A("v_add_u32 v5, s32, v5")
    A("v_and_b32 v6, 31, v0")
    A("v_lshlrev_b32 v6, 2, v6")
    A("v_mul_u32_u24 v7, 1152, v5")
    A("v_add_u32 v7, v7, v6")
    for i in range(9):
        A(f"buffer_load_dword v{16+i}, v7, s[4:7], 0 offen offset:{128*i}")
        A(f"buffer_load_dword v{26+i}, v6, s[8:11], 0 offen offset:{128*i}")
    A("v_mov_b32 v8, 0")
    A("s_waitcnt vmcnt(0)")
    for i in range(9):
        A(f"v_lshlrev_b32 v36, 16, v{16+i}")
        A(f"v_and_b32 v37, 0xffff0000, v{16+i}")
        A(f"v_lshlrev_b32 v38, 16, v{26+i}")
        A(f"v_and_b32 v39, 0xffff0000, v{26+i}")
        A("v_mul_f32 v36, v36, v38")
        A("v_mul_f32 v37, v37, v39")
        A("v_cvt_pk_bf16_f32 v36, v36, v37")
        A("v_and_b32 v37, 0xffff0000, v36")
        A("v_lshlrev_b32 v36, 16, v36")
        A("v_add_f32 v8, v8, v37")
        A("v_add_f32 v8, v8, v36")
    for rot in (8, 4, 2, 1):
        A("s_nop 1")
        A(f"v_add_f32_dpp v8, v8, v8 row_ror:{rot} row_mask:0xf bank_mask:0xf")
    A("v_mov_b32 v9, v8")
    A("s_nop 1")
    A("v_permlane16_swap_b32 v8, v9")
    A("s_nop 1")
    A("v_add_f32 v8, v8, v9")
    bf16_round(A, 8)
    A(f"v_mul_f32 v8, {f32(-LOG2E)}, v8")
    A("v_exp_f32 v8, v8")
    A("s_nop 0")
    A("v_add_f32 v8, 1.0, v8")
    A("v_rcp_f32 v8, v8")
    A("s_nop 0")
    bf16_round(A, 8)
    A("v_sub_f32 v9, 1.0, v8")
    bf16_round(A, 9)
    srd(A, 4, 38, 39, WS_G, 2048*8)
    A("v_lshlrev_b32 v5, 3, v5")
    A("s_mov_b32 s34, 1")
    A("s_mov_b32 s35, 1")
    A("s_mov_b64 exec, s[34:35]")
    A("buffer_store_dwordx2 v[8:9], v5, s[4:7], 0 offen")
    A("s_mov_b64 exec, -1")
    A("s_lshl_b32 s32, s31, 8")
    A("s_add_u32 s32, s32, s2")
    A("s_cmp_ge_u32 s32, 576")
    A(f"s_cbranch_scc1 {name}_end")
    A("s_mul_i32 s33, s32, 911")
    A("s_lshr_b32 s33, s33, 16")
    A("s_mul_i32 s34, s33, 72")
    A("s_sub_u32 s34, s32, s34")
    A("s_mul_i32 s35, s34, 57")
    A("s_lshr_b32 s35, s35, 9")
    A("s_mul_i32 s46, s35, 9")
    A("s_sub_u32 s46, s34, s46")
    A("s_mul_i32 s35, s35, 288")
    A("s_lshr_b32 s47, s46, 2")
    A("s_mul_i32 s47, s47, 144")
    A("s_and_b32 s48, s46, 3")
    A("s_lshl_b32 s48, s48, 5")
    A("s_add_u32 s47, s47, s48")
    A("s_cmp_eq_u32 s46, 8")
    A("s_cselect_b32 s47, 128, s47")
    A("s_cselect_b32 s48, 128, 0")
    A("s_add_u32 s47, s47, s35")
    A("s_mul_i32 s47, s47, 1152")
    A("s_mul_i32 s49, s33, 144")
    A("s_add_u32 s47, s47, s49")
    srd(A, 4, 20, 21, None, 2304*1152)
    A("s_mul_i32 s50, s31, 5120")
    A(f"s_add_u32 s50, s50, {LDS_X + 1024}")
    for i in range(5):
        A(f"v_add_u32 v5, {64*i}, v0")
        A("v_mul_u32_u24 v6, 7282, v5")
        A("v_lshrrev_b32 v6, 16, v6")
        A("v_mul_u32_u24 v7, 9, v6")
        A("v_sub_u32 v7, v5, v7")
        A("v_lshrrev_b32 v8, 4, v6")
        A("v_mul_lo_u32 v8, v8, s48")
        A("v_add_u32 v6, v6, v8")
        A("v_mul_u32_u24 v6, 1152, v6")
        A("v_lshl_add_u32 v6, v7, 4, v6")
        A(f"s_add_u32 m0, s50, {1024*i}")
        if i == 4: A("s_mov_b64 exec, 0xffffffff")
        else: A("s_nop 0")
        A("buffer_load_dwordx4 v6, s[4:7], s47 offen lds")
    A("s_mov_b64 exec, -1")
    A("v_lshrrev_b32 v5, 2, v0")
    A("v_mul_u32_u24 v5, 144, v5")
    A("v_and_b32 v6, 3, v0")
    A("v_lshl_add_u32 v7, v6, 4, v5")
    A("v_add_u32 v7, s50, v7")
    A("v_lshl_add_u32 v8, v6, 3, v5")
    A("v_add_u32 v8, s50, v8")
    A("s_mul_i32 s32, s32, 4608")
    A(f"s_add_u32 s32, s32, {WS_WOT}")
    srd(A, 8, 38, 39, "s32", 4608)
    A("v_lshlrev_b32 v9, 4, v0")
    A("v_and_b32 v10, 7, v0")
    A("v_lshrrev_b32 v11, 4, v0")
    A("v_lshl_add_u32 v10, v11, 3, v10")
    A("v_lshlrev_b32 v10, 4, v10")
    A("v_add_u32 v10, 4096, v10")
    A("s_waitcnt vmcnt(0)")
    for q in range(5):
        for h in range(2):
            if q < 4: A(f"ds_read_b64_tr_b16 {vr(16+4*q+2*h,2)}, v7 offset:{h*16*144 + 64*(q>>1) + 8*(q&1)}")
            else:     A(f"ds_read_b64_tr_b16 {vr(16+4*q+2*h,2)}, v8 offset:{h*16*144 + 128}")
    A("s_waitcnt lgkmcnt(0)")
    for q in range(4):
        A(f"buffer_store_dwordx4 {vr(16+4*q,4)}, v9, s[8:11], 0 offen offset:{1024*q}")
    A("s_mov_b32 s34, 0x00ff00ff")
    A("s_mov_b32 s35, 0x00ff00ff")
    A("s_mov_b64 exec, s[34:35]")
    A(f"buffer_store_dwordx4 {vr(32,4)}, v10, s[8:11], 0 offen")
    A.label(f"{name}_end")
    A("s_endpgm")
    return VEND, LDS_X + 1024 + 4*5120

assert all((q*3641) >> 16 == q//18 for q in range(1152+64))
assert all((q*7282) >> 16 == q//9 for q in range(320))
assert all((u*911) >> 16 == u//72 for u in range(576))
assert all((k*57) >> 9 == k//9 for k in range(72))
```

```python
from asmlib import *
from gen_k1 import tile_ids, rowperm_voff, STG, S

def gen_k2(A, name="k2_kernel", diag=False):
    NST = 32
    kernel_begin(A, name)
    A("s_cmp_ge_u32 s2, 256")
    A(f"s_cbranch_scc1 {name}_end")
    if diag: stamp(A, 0); stamp(A, 1, True)
    A("s_load_dwordx4 s[20:23], s[0:1], 72")
    A("s_load_dwordx2 s[24:25], s[0:1], 120")
    tile_ids(A)
    A("s_cmp_ge_u32 s27, 4")
    A(f"s_cbranch_scc1 {name}_loader")
    ACC = 16; SET = [88, 132]; RA = 176; RB = 180; Z1 = 188; VEND = 224
    A("v_and_b32 v5, 15, v0")
    A("v_lshrrev_b32 v6, 4, v0")
    A("v_lshrrev_b32 v8, 2, v5")
    A("v_lshlrev_b32 v8, 3, v8")
    A("v_and_b32 v9, 3, v5")
    A("v_add_u32 v8, v8, v9")
    A("s_lshl_b32 s33, s31, 5")
    A("v_add_u32 v8, s33, v8")
    A("v_lshlrev_b32 v12, 1, v8")
    A("s_waitcnt lgkmcnt(0)")
    A("s_lshl_b32 s32, s29, 8")
    srd(A, 36, 22, 23, "s32", 256)
    A("buffer_load_ushort v13, v12, s[36:39], 0 offen")
    A("buffer_load_ushort v14, v12, s[36:39], 0 offen offset:8")
    A("v_lshrrev_b32 v7, 1, v5")
    A("v_xor_b32 v7, v7, v6")
    A("v_lshlrev_b32 v7, 4, v7")
    A("v_lshlrev_b32 v8, 7, v5")
    A("v_add_u32 v7, v7, v8")
    A("s_lshl_b32 s33, s31, 12")
    A(f"s_add_u32 s33, s33, 18432")
    A("v_add_u32 v7, s33, v7")
    A("v_lshlrev_b32 v10, 4, v0")
    for st in range(S):
        A(f"v_add_u32 v{RB+2*st}, {st*STG}, v7")
        A(f"v_xor_b32 v{RB+2*st+1}, 64, v{RB+2*st}")
        A(f"v_add_u32 v{RA+st}, {st*STG}, v10")
    A("s_lshl_b32 s32, s29, 4")
    A("s_add_u32 s32, s32, s28")
    A("s_mul_i32 s32, s32, 36864")
    A("s_mul_i32 s33, s31, 9216")
    A("s_add_u32 s32, s32, s33")
    srd(A, 12, 24, 25, "s32", 9216)
    A("s_lshl_b32 s32, s29, 1")
    A("s_lshr_b32 s33, s31, 1")
    A("s_add_u32 s32, s32, s33")
    A("s_mul_i32 s32, s32, 72")
    A("s_lshr_b32 s33, s28, 1")
    A("s_mul_i32 s33, s33, 9")
    A("s_add_u32 s32, s32, s33")
    A("s_lshl_b32 s32, s32, 12")
    A("s_and_b32 s33, s31, 1")
    A("s_lshl_b32 s33, s33, 11")
    A("s_add_u32 s32, s32, s33")
    A(f"s_add_u32 s32, s32, {WS_HF}")
    srd(A, 16, 24, 25, "s32", 9*4096)
    A("s_and_b32 s33, s28, 1")
    A("s_lshl_b32 s48, s33, 14")
    for i in range(1, 4): A(f"s_add_u32 s{48+i}, s48, {4096*i}")
    A("s_lshl_b32 s33, s33, 3")
    A("s_add_u32 s52, s33, 32768")
    A("s_movk_i32 s53, 4096")
    A("s_movk_i32 s54, 8192")
    A("s_waitcnt vmcnt(0)")
    A("v_lshlrev_b32 v13, 16, v13")
    A("v_lshlrev_b32 v14, 16, v14")
    for a in range(9):
        for nb in range(2):
            for r in range(4):
                A(f"v_mov_b32 v{ACC+(a*2+nb)*4+r}, v{13+nb}")
    def reads(setid, slot, ks):
        b = SET[setid]
        out = []
        for kind, i in [("B", 0), ("A", 0), ("B", 1)] + [("A", a) for a in range(1, 9)]:
            if kind == "B": out.append([f"ds_read_b128 {vr(b+4*i,4)}, v{RB+2*slot+ks} offset:{i*2048}"])
            else:           out.append([f"ds_read_b128 {vr(b+8+4*i,4)}, v{RA+slot} offset:{(ks*9+i)*1024}"])
        return out
    def mfmas(setid):
        b = SET[setid]
        out = []
        for a in range(9):
            for nb in range(2):
                c = ACC + (a*2+nb)*4
                out.append(f"v_mfma_f32_16x16x32_bf16 {vr(c,4)}, {vr(b+8+4*a,4)}, {vr(b+4*nb,4)}, {vr(c,4)}")
        return out
    A("s_barrier")
    if diag: stamp(A, 2)
    for g in reads(0, 0, 0): A(g)
    def stage(slot, last=False, z1load=False):
        A("s_waitcnt lgkmcnt(0)")
        A(interleave(mfmas(0), reads(1, slot, 1)))
        A("s_waitcnt lgkmcnt(0)")
        if not last: A("s_barrier")
        fill = [] if last else reads(0, (slot+1) % S, 0)
        if z1load:
            for j in range(9):
                so = ["0", "s53", "s54"][j >> 2]
                fill.append([f"buffer_load_dwordx4 {vr(Z1+4*j,4)}, v10, s[12:15], {so} offen offset:{(j&3)*1024}"])
        A(interleave(mfmas(1), fill))
    nloop = (NST - S) // S
    A(f"s_mov_b32 s47, {nloop}")
    A.label(f"{name}_loop")
    for st in range(S): stage(st)
    A("s_sub_u32 s47, s47, 1")
    A("s_cmp_lg_u32 s47, 0")
    A(f"s_cbranch_scc1 {name}_loop")
    for st in range(S): stage(st, last=(st == S-1), z1load=(st == 0))
    if diag: stamp(A, 3)
    A("s_waitcnt vmcnt(0)")
    A("s_nop 7")
    T = SET[0]
    A("v_lshlrev_b32 v11, 4, v0")
    cnt = 0
    for j in range(9):
        for i in range(4):
            if j < 8: nb, a, rr = j >> 2, 2*(j & 3) + (i >> 1), 2*(i & 1)
            else:     nb, a, rr = i >> 1, 8, 2*(i & 1)
            c = ACC + (a*2+nb)*4 + rr
            t0 = T + 2*(cnt % 8); cnt += 1
            z = Z1 + 4*j + i
            A(f"v_lshlrev_b32 v{t0}, 16, v{z}")
            A(f"v_and_b32 v{t0+1}, 0xffff0000, v{z}")
            A(f"v_mul_f32 v{t0}, v{t0}, v{c}")
            A(f"v_mul_f32 v{t0+1}, v{t0+1}, v{c+1}")
            A(f"v_cvt_pk_bf16_f32 v{z}, v{t0}, v{t0+1}")
        if j < 8:
            A(f"buffer_store_dwordx4 {vr(Z1+4*j,4)}, v10, s[16:19], s{48+(j&3)} offen offset:{(j>>2)*1024}")
        else:
            for nb in range(2):
                A(f"buffer_store_dwordx2 {vr(Z1+32+2*nb,2)}, v10, s[16:19], s52 offen offset:{nb*1024}")
    if diag:
        A("s_waitcnt vmcnt(0)")
        stamp(A, 4); stamp(A, 7, True)
        stamp_store(A, name, 24, 1, 27)
    A("s_endpgm")
    A.label(f"{name}_loader")
    rowperm_voff(A, 2, 4096)
    A("v_lshlrev_b32 v3, 4, v0")
    A("s_waitcnt lgkmcnt(0)")
    A(f"s_mul_i32 s32, s28, {32*18432}")
    A(f"s_add_u32 s32, s32, {WS_Z2F}")
    srd(A, 4, 24, 25, "s32", 32*18432)
    A("s_lshl_b32 s32, s29, 19")
    srd(A, 8, 20, 21, "s32", 128*4096)
    for i in range(4): A(f"s_mov_b32 s{40+i}, {i*131072}")
    A("s_lshl_b32 s44, s31, 10")
    A("s_lshl_b32 s45, s31, 12")
    A("s_lshl_b32 s46, s31, 9")
    A("s_add_u32 s46, s46, 16384")
    A("s_mov_b32 s48, s45")
    A("s_mov_b32 s49, s46")
    def dma_stage(slot):
        base = slot * STG
        A(f"s_add_u32 m0, s45, {base}")
        A("s_nop 0")
        for i in range(4):
            A(f"buffer_load_dwordx4 v3, s[4:7], s48 offen offset:{1024*i} lds")
        for i in range(4):
            A(f"s_add_u32 m0, s44, {base + 18432 + i*4096}")
            A("s_nop 0")
            A(f"buffer_load_dwordx4 v2, s[8:11], s{40+i} offen lds")
        A(f"s_add_u32 m0, s46, {base}")
        A("s_mov_b64 exec, 0xffffffff")
        A("buffer_load_dwordx4 v3, s[4:7], s49 offen lds")
        A("s_mov_b64 exec, -1")
        for i in range(4): A(f"s_add_u32 s{40+i}, s{40+i}, 128")
        A("s_add_u32 s48, s48, 18432")
        A("s_add_u32 s49, s49, 18432")
    for st in range(S): dma_stage(st)
    A(f"s_waitcnt vmcnt({(S-1)*9})")
    A("s_barrier")
    A(f"s_mov_b32 s47, {nloop}")
    A.label(f"{name}_lloop")
    for st in range(S):
        A(f"s_waitcnt vmcnt({(S-2)*9})")
        A("s_barrier")
        dma_stage(st)
    A("s_sub_u32 s47, s47, 1")
    A("s_cmp_lg_u32 s47, 0")
    A(f"s_cbranch_scc1 {name}_lloop")
    for st in range(S-1):
        A(f"s_waitcnt vmcnt({max(S-2-st,0)*9})")
        A("s_barrier")
    A.label(f"{name}_end")
    A("s_endpgm")
    return VEND, S*STG
```

```python
from asmlib import *

def gen_k3(A, name="k3_kernel", diag=False, DEPTH=4):
    kernel_begin(A, name)
    A("s_cmp_ge_u32 s2, 256")
    A(f"s_cbranch_scc1 {name}_end")
    if diag: stamp(A, 0); stamp(A, 1, True)
    A("s_load_dwordx2 s[22:23], s[0:1], 104")
    A("s_load_dwordx2 s[24:25], s[0:1], 120")
    A("v_lshrrev_b32 v1, 6, v0")
    A("s_and_b32 s3, s2, 7")
    A("s_lshr_b32 s26, s2, 3")
    A("v_readfirstlane_b32 s27, v1")
    A("s_lshr_b32 s28, s3, 1")
    A("s_lshl_b32 s28, s28, 3")
    A("s_lshr_b32 s29, s26, 2")
    A("s_add_u32 s28, s28, s29")
    A("s_and_b32 s29, s3, 1")
    A("s_lshl_b32 s29, s29, 2")
    A("s_and_b32 s30, s26, 3")
    A("s_add_u32 s29, s29, s30")
    A("v_and_b32 v0, 63, v0")
    A("v_lshlrev_b32 v2, 4, v0")
    A("v_and_b32 v3, 7, v0")
    A("v_lshrrev_b32 v4, 4, v0")
    A("v_lshl_add_u32 v3, v4, 3, v3")
    A("v_lshlrev_b32 v3, 4, v3")
    A("v_add_u32 v3, 4096, v3")
    A("s_waitcnt lgkmcnt(0)")
    A(f"s_mul_i32 s32, s29, {72*4608}")
    A(f"s_add_u32 s32, s32, {WS_WOT}")
    srd(A, 4, 24, 25, "s32", 72*4608)
    A(f"s_mul_i32 s32, s28, {72*4096}")
    A(f"s_add_u32 s32, s32, {WS_HF}")
    srd(A, 8, 24, 25, "s32", 72*4096)
    A("s_mul_i32 s40, s27, 4608")
    A("s_lshl_b32 s41, s27, 12")
    ACC = 16; BUF = 96; VEND = BUF + 36*DEPTH
    LDS_AT = 81920
    def loads(buf):
        b = BUF + 36*buf
        o = []
        o.append(f"buffer_load_dwordx4 {vr(b+20,4)}, v2, s[8:11], s41 offen")
        for q in range(4): o.append(f"buffer_load_dwordx4 {vr(b+4*q,4)}, v2, s[4:7], s40 offen offset:{1024*q}")
        o.append(f"buffer_load_dwordx4 {vr(b+16,4)}, v3, s[4:7], s40 offen")
        for q in range(1, 4): o.append(f"buffer_load_dwordx4 {vr(b+20+4*q,4)}, v2, s[8:11], s41 offen offset:{1024*q}")
        o.append(f"s_add_u32 s40, s40, {4*4608}")
        o.append(f"s_add_u32 s41, s41, {4*4096}")
        return o
    for d in range(DEPTH): A(loads(d))
    A(f"s_mul_i32 s32, s29, {72*4096}")
    A("s_lshl_b32 s33, s28, 7")
    A("s_add_u32 s32, s32, s33")
    A(f"s_add_u32 s32, s32, {WS_AT}")
    srd(A, 12, 24, 25, "s32", 71*4096+128)
    A("v_lshrrev_b32 v5, 3, v0")
    A("v_and_b32 v6, 7, v0")
    A("v_lshlrev_b32 v5, 12, v5")
    A("v_lshl_add_u32 v5, v6, 4, v5")
    A("s_lshl_b32 s33, s27, 15")
    A("s_lshl_b32 s34, s27, 10")
    for i in range(3):
        A(f"s_add_u32 m0, s34, {LDS_AT + 4096*i}")
        A(f"s_add_u32 s35, s33, {i*32*4096}")
        A("buffer_load_dwordx4 v5, s[12:15], s35 offen lds")
    A("v_and_b32 v5, 15, v0")
    A("v_lshrrev_b32 v6, 2, v5")
    A("v_lshlrev_b32 v6, 3, v6")
    A("v_and_b32 v7, 3, v5")
    A("v_add_u32 v6, v6, v7")
    A("s_lshr_b32 s33, s27, 1")
    A("s_lshl_b32 s33, s33, 5")
    A("s_and_b32 s34, s27, 1")
    A("s_lshl_b32 s34, s34, 2")
    A("s_add_u32 s33, s33, s34")
    A("s_lshl_b32 s34, s28, 6")
    A("s_add_u32 s34, s34, s33")
    A("v_add_u32 v6, s34, v6")
    srd(A, 16, 24, 25, WS_G, 2048*8)
    A("v_lshlrev_b32 v7, 3, v6")
    A("buffer_load_dwordx2 v[8:9], v7, s[16:19], 0 offen")
    A("v_mul_u32_u24 v6, 1152, v6")
    A("s_mul_i32 s34, s29, 144")
    A("v_add_u32 v6, s34, v6")
    A("v_lshl_add_u32 v10, v4, 4, v6")
    A("v_lshl_add_u32 v11, v4, 3, v6")
    srd(A, 16, 22, 23, None, 2048*1152)
    A("v_lshrrev_b32 v12, 2, v5")
    A("v_lshl_add_u32 v13, v4, 3, v12")
    A("v_lshlrev_b32 v13, 7, v13")
    A("v_and_b32 v14, 3, v5")
    A("v_lshl_add_u32 v13, v14, 4, v13")
    A("s_lshl_b32 s33, s33, 1")
    A(f"s_add_u32 s33, s33, {LDS_AT}")
    A("v_add_u32 v13, s33, v13")
    A("v_lshl_add_u32 v12, v4, 2, v12")
    A("v_lshlrev_b32 v12, 7, v12")
    A("v_lshl_add_u32 v12, v14, 4, v12")
    A("v_add_u32 v12, s33, v12")
    for r in range(80): A(f"v_mov_b32 v{ACC+r}, 0")
    if diag: stamp(A, 2)
    NK = 18
    extra = 4
    for it in range(NK):
        buf = it % DEPTH
        b = BUF + 36*buf
        issued_after = min(DEPTH-1, NK-1-it) * 9 + (extra if it < DEPTH else 0)
        A(f"s_waitcnt vmcnt({issued_after})")
        m = []
        for nt in range(4):
            for q in range(5):
                c = ACC + (nt*5+q)*4
                m.append(f"v_mfma_f32_16x16x32_bf16 {vr(c,4)}, {vr(b+4*q,4)}, {vr(b+20+4*nt,4)}, {vr(c,4)}")
        A(m)
        if it + DEPTH < NK: A(loads(buf))
    if diag: stamp(A, 3)
    A("s_mul_i32 s33, s27, 5120")
    A("v_add_u32 v14, s33, v2")
    A("v_add_u32 v15, 40960, v14")
    A("s_nop 7")
    for nt in range(4):
        for q in range(5):
            A(f"ds_write_b128 v{14+(nt>>1)}, {vr(ACC+(nt*5+q)*4,4)} offset:{(nt&1)*20480+q*1024}")
    A("s_mul_i32 s33, s27, 20480")
    A("v_add_u32 v14, s33, v2")
    A("s_waitcnt vmcnt(0) lgkmcnt(0)")
    A("s_barrier")
    R = BUF
    for src in range(4):
        for q in range(5):
            A(f"ds_read_b128 {vr(R+(src*5+q)*4,4)}, v14 offset:{src*5120+q*1024}")
    AR = R + 80
    for q in range(4):
        A(f"ds_read_b64_tr_b16 {vr(AR+2*q,2)}, v13 offset:{(32*(q>>1)+4*(q&1))*128}")
    A(f"ds_read_b64_tr_b16 {vr(AR+8,2)}, v12 offset:{64*128}")
    A("s_waitcnt lgkmcnt(0)")
    for i in range(20):
        A(f"v_add_f32 v{R+i}, v{R+i}, v{R+20+i}")
        A(f"v_add_f32 v{R+40+i}, v{R+40+i}, v{R+60+i}")
    for i in range(20):
        A(f"v_add_f32 v{R+i}, v{R+i}, v{R+40+i}")
    T = R + 20
    for i in range(10):
        A(f"v_lshlrev_b32 v{T+2*i}, 16, v{AR+i}")
        A(f"v_and_b32 v{T+2*i+1}, 0xffff0000, v{AR+i}")
    for i in range(20):
        A(f"v_mul_f32 v{T+i}, v8, v{T+i}")
    for i in range(20):
        A(f"v_fmac_f32 v{T+i}, v9, v{R+i}")
    O = R + 40
    for i in range(10):
        A(f"v_cvt_pk_bf16_f32 v{O+i}, v{T+2*i}, v{T+2*i+1}")
    A(f"buffer_store_dwordx4 {vr(O,4)}, v10, s[16:19], 0 offen")
    A(f"buffer_store_dwordx4 {vr(O+4,4)}, v10, s[16:19], 0 offen offset:64")
    A("s_mov_b64 exec, 0xffffffff")
    A(f"buffer_store_dwordx2 {vr(O+8,2)}, v11, s[16:19], 0 offen offset:128")
    A("s_mov_b64 exec, -1")
    if diag:
        A("s_waitcnt vmcnt(0)")
        stamp(A, 4); stamp(A, 7, True)
        stamp_store(A, name, 24, 2, 27)
    A.label(f"{name}_end")
    A("s_endpgm")
    return VEND, LDS_AT + 12288 + 1024
```

```python
from asmlib import *
from gen_k1 import bf16_round, LOG2E
import math, numpy as np
C_HI = float(np.float32(1.0 / (2 * math.pi)))
C_LO = float(np.float32(1.0 / (2 * math.pi) - C_HI))

def gen_ssm(A, name="ssm_kernel", diag=False):
    WAREA = 21376; W0 = 32768
    O_ST, O_R0, O_R1, O_U = 0, 8448, 8448 + 4160, 8448 + 8320
    kernel_begin(A, name)
    A("s_cmp_ge_u32 s2, 144")
    A(f"s_cbranch_scc1 {name}_end")
    if diag: stamp(A, 0); stamp(A, 1, True)
    A("s_load_dwordx8 s[8:15], s[0:1], 0")
    A("s_load_dwordx4 s[16:19], s[0:1], 32")
    A("s_load_dwordx2 s[20:21], s[0:1], 48")
    A("s_load_dwordx2 s[24:25], s[0:1], 120")
    A("v_lshrrev_b32 v1, 6, v0")
    A("v_and_b32 v0, 63, v0")
    A("v_readfirstlane_b32 s27, v1")
    A("s_lshl_b32 s28, s2, 2")
    A("s_add_u32 s28, s28, s27")
    A(f"s_mul_i32 s29, s27, {WAREA}")
    A(f"s_add_u32 s29, s29, {W0}")
    A("s_lshl_b32 s30, s28, 8")
    A("v_lshlrev_b32 v2, 2, v0")
    A("s_lshl_b32 s31, s28, 1")
    A("v_mov_b32 v3, s31")
    A("s_waitcnt lgkmcnt(0)")
    for i, b in enumerate((10, 12, 14, 16)):
        srd(A, 32, b, b+1, None, 576*256)
        A(f"buffer_load_dword v{4+i}, v2, s[32:35], s30 offen")
    srd(A, 32, 18, 19, None, 1152)
    A("buffer_load_ushort v8, v3, s[32:35], 0 offen")
    srd(A, 32, 20, 21, None, 1152)
    A("buffer_load_ushort v9, v3, s[32:35], 0 offen")
    srd(A, 36, 8, 9, None, 2048*1152)
    A("v_mul_u32_u24 v10, 1152, v0")
    A("s_lshr_b32 s31, s2, 1")
    A("s_lshl_b32 s31, s31, 4")
    A(f"s_mul_i32 s40, s27, {8*64*1152}")
    A("s_add_u32 s40, s40, s31")
    A("s_lshl_b32 s41, s27, 13")
    for i in range(8):
        A(f"s_add_u32 m0, s41, {1024*i}")
        A(f"s_add_u32 s42, s40, {i*64*1152}")
        A("buffer_load_dwordx4 v10, s[36:39], s42 offen lds")
    ARE, AIM, CC = 12, 14, 16
    DT, DSK, KSC = 20, 21, 22
    A("s_waitcnt vmcnt(8)")
    A(f"v_lshlrev_b32 v{DT}, 16, v8")
    A(f"v_lshlrev_b32 v{DSK}, 16, v9")
    A(f"v_lshlrev_b32 v{ARE}, 16, v4");  A(f"v_and_b32 v{ARE+1}, 0xffff0000, v4")
    A(f"v_lshlrev_b32 v{AIM}, 16, v5");  A(f"v_and_b32 v{AIM+1}, 0xffff0000, v5")
    A(f"v_lshlrev_b32 v{CC}, 16, v6");   A(f"v_and_b32 v{CC+2}, 0xffff0000, v6")
    A(f"v_lshlrev_b32 v{CC+1}, 16, v7"); A(f"v_and_b32 v{CC+3}, 0xffff0000, v7")
    L2E_HI = float(np.float32(LOG2E)); L2E_LO = float(np.float32(LOG2E - L2E_HI))
    A(f"v_mov_b32 v23, {f32(L2E_HI)}")
    A(f"v_mov_b32 v24, {f32(L2E_LO)}")
    for r in (DT, ARE, ARE+1):
        A(f"v_mul_f32 v25, v{r}, v23")
        A(f"v_fma_f32 v26, v{r}, v23, -v25")
        A(f"v_fmac_f32 v26, v{r}, v24")
        A(f"v_rndne_f32 v27, v25")
        A(f"v_sub_f32 v25, v25, v27")
        A(f"v_add_f32 v25, v25, v26")
        A(f"v_exp_f32 v25, v25")
        A(f"v_cvt_i32_f32 v27, v27")
        A(f"v_ldexp_f32 v{r}, v25, v27")
        bf16_round(A, r)
    for mu in range(2):
        A(f"v_mul_f32 v{ARE+mu}, v{ARE+mu}, v{DT}")
        A(f"v_mul_f32 v{AIM+mu}, v{AIM+mu}, v{DT}")
        A(f"v_mul_f32 v{ARE+mu}, {f32(-LOG2E)}, v{ARE+mu}")
    A(f"v_max_f32 v25, abs(v{CC}), abs(v{CC+1})")
    A(f"v_max3_f32 v25, v25, abs(v{CC+2}), abs(v{CC+3})")
    for rot in (8, 4, 2, 1):
        A("s_nop 1")
        A(f"v_max_f32_dpp v25, v25, v25 row_ror:{rot} row_mask:0xf bank_mask:0xf")
    A("v_mov_b32 v26, v25"); A("s_nop 1")
    A("v_permlane16_swap_b32 v25, v26"); A("s_nop 1")
    A("v_max_f32 v25, v25, v26")
    A("v_mov_b32 v26, v25"); A("s_nop 1")
    A("v_permlane32_swap_b32 v25, v26"); A("s_nop 1")
    A("v_max_f32 v25, v25, v26")
    A("v_and_b32 v25, 0x7f800000, v25")
    A("v_max_u32 v25, 0x00800000, v25")
    A("v_min_u32 v25, 0x7e800000, v25")
    A("v_sub_u32 v26, 0x7f000000, v25")
    for i in range(4): A(f"v_mul_f32 v{CC+i}, v{CC+i}, v26")
    A(f"v_mul_f32 v{KSC}, v25, v{DT}")
    A(f"v_add_f32 v{KSC}, v{KSC}, v{KSC}")
    WP = {1: 28, 4: 32, 16: 36, 64: 40, 512: 44}
    A(f"v_mov_b32 v23, {f32(C_HI)}")
    A(f"v_mov_b32 v24, {f32(C_LO)}")
    for p, b in WP.items():
        conj = p in (1, 4)
        ops = [[], []]
        for mu in range(2):
            t = 48 + 4*mu
            o = ops[mu]
            o.append(f"v_mul_f32 v{t}, {f32(float(p))}, v{ARE+mu}")
            o.append(f"v_mul_f32 v{t+1}, {f32(float(-p if conj else p))}, v{AIM+mu}")
            o.append(f"v_exp_f32 v{t}, v{t}")
            o.append(f"v_mul_f32 v{t+2}, v{t+1}, v23")
            o.append(f"v_fma_f32 v{t+3}, v{t+1}, v23, -v{t+2}")
            o.append(f"v_fmac_f32 v{t+3}, v{t+1}, v24")
            o.append(f"v_fract_f32 v{t+2}, v{t+2}")
            o.append(f"v_add_f32 v{t+2}, v{t+2}, v{t+3}")
            o.append(f"v_cos_f32 v{t+1}, v{t+2}")
            o.append(f"v_sin_f32 v{t+3}, v{t+2}")
            o.append(f"v_mul_f32 v{b+2*mu}, v{t}, v{t+1}")
            o.append(f"v_mul_f32 v{b+2*mu+1}, v{t}, v{t+3}")
        for x, y in zip(*ops): A(x); A(y)
    A("v_lshlrev_b32 v2, 3, v0")
    A("v_add_u32 v2, s29, v2")
    A("v_and_b32 v4, 15, v0")
    A("v_lshrrev_b32 v5, 4, v0")
    A("v_mul_u32_u24 v3, 528, v4")
    A("v_lshl_add_u32 v3, v5, 4, v3")
    A("v_add_u32 v3, s29, v3")
    Z = 48; TT = 52; PK = 56
    OF = 64
    BF = 128
    KA = 160
    def cmul(dst, z, w):
        o = []
        for mu in range(2):
            o.append(f"v_pk_mul_f32 {vr(TT+2*mu,2)}, {vr(z+2*mu,2)}, {vr(w+2*mu,2)} op_sel:[0,0] op_sel_hi:[0,1]")
        for mu in range(2):
            o.append(f"v_pk_fma_f32 {vr(dst+2*mu,2)}, {vr(z+2*mu,2)}, {vr(w+2*mu,2)}, {vr(TT+2*mu,2)} op_sel:[1,1,0] op_sel_hi:[1,0,1] neg_lo:[0,1,0]")
        return o
    def batch(nrows, w, advance_last=True):
        for j in range(nrows):
            pk = PK + 2*(j & 1)
            A(f"v_cvt_pk_f16_f32 v{pk}, v{Z}, v{Z+1}")
            A(f"v_cvt_pk_f16_f32 v{pk+1}, v{Z+2}, v{Z+3}")
            if j < nrows - 1 or advance_last: A(cmul(Z, Z, w))
            A(f"ds_write_b64 v2, {vr(pk,2)} offset:{O_ST + 528*j}")
    def frags(dst):
        for ks in range(8):
            A(f"ds_read_b128 {vr(dst+4*ks,4)}, v3 offset:{O_ST + 64*ks}")
    for i in range(16): A(f"v_mov_b32 v{KA+i}, 0")
    for o, p in ((0, 1), (1, 4)):
        A(f"v_mov_b32 v{Z}, 1.0"); A(f"v_mov_b32 v{Z+1}, 0"); A(f"v_mov_b32 v{Z+2}, 1.0"); A(f"v_mov_b32 v{Z+3}, 0")
        batch(16, WP[p], advance_last=False)
        frags(OF + 32*o)
    def kmm(T):
        A("s_waitcnt lgkmcnt(0)")
        for ks in range(8):
            A(f"v_mfma_f32_16x16x32_f16 {vr(KA+4*T,4)}, {vr(OF+32*(T>>1)+4*ks,4)}, {vr(BF+4*ks,4)}, {vr(KA+4*T,4)}")
    for i in range(4): A(f"v_mov_b32 v{Z+i}, v{CC+i}")
    batch(16, WP[16]); frags(BF); kmm(0)
    batch(16, WP[16], advance_last=False); frags(BF); kmm(1)
    A(cmul(Z, CC, WP[512]))
    batch(16, WP[64]); frags(BF); kmm(2)
    batch(9, WP[64], advance_last=False); frags(BF); kmm(3)
    if diag: stamp(A, 2)
    A("v_mov_b32 v6, 0"); A("v_mov_b32 v7, 0")
    A("v_lshlrev_b32 v8, 2, v0")
    A("v_add_u32 v8, s29, v8")
    A("s_mov_b64 exec, 0x3ff")
    A(f"ds_write_b32 v8, v6 offset:{O_R0 + 4120}")
    A("s_mov_b32 exec_lo, -1")
    A("s_mov_b32 exec_hi, 0x0fffffff")
    A(f"ds_write_b64 v2, v[6:7] offset:{O_U}")
    A("s_mov_b64 exec, -1")
    for i in range(16): A(f"v_mul_f32 v{KA+i}, v{KA+i}, v{KSC}")
    A("v_lshlrev_b32 v8, 2, v4")
    A("v_add_u32 v8, v8, v5")
    A("v_lshlrev_b32 v9, 5, v8")
    A(f"v_sub_u32 v9, s29, v9")
    A("v_lshlrev_b32 v10, 3, v8")
    A(f"v_sub_u32 v10, s29, v10")
    Q = BF
    def level3(T, base, mask_lo, mask_hi):
        k0, k2 = KA+4*T, KA+4*T+2
        for i in range(3): A(f"v_cvt_pk_bf16_f32 v{Q+i}, v{k2}, v{k2}")
        A(f"v_cvt_pk_bf16_f32 v{Q+3}, v{k2}, v{k0}")
        for i in range(4): A(f"v_cvt_pk_bf16_f32 v{Q+4+i}, v{k0}, v{k0}")
        A(f"s_mov_b32 s32, {mask_lo}"); A(f"s_mov_b32 s33, {mask_hi}")
        A("s_mov_b64 exec, s[32:33]")
        off = O_R0 + 2*(2048 - base)
        A(f"ds_write_b128 v9, {vr(Q,4)} offset:{off}")
        A(f"ds_write_b128 v9, {vr(Q+4,4)} offset:{off+16}")
        A("s_mov_b64 exec, -1")
    level3(3, 1536, 0x00ff01ff, 0x00ff00ff)
    Q = BF + 8
    level3(2, 512, 0xff00ff00, 0xff00ff00)
    Q = BF + 16
    k = [KA+8+r for r in range(4)]
    pairs = [(3,3),(3,2),(2,2),(2,2),(1,1),(1,0),(0,0),(0,0)]
    dst = [Q+7, Q, Q+1, Q+2, Q+3, Q+4, Q+5, Q+6]
    for (lo, hi), d in zip(pairs, dst): A(f"v_cvt_pk_bf16_f32 v{d}, v{k[lo]}, v{k[hi]}")
    A("s_mov_b32 s32, 0x00ff00ff"); A("s_mov_b32 s33, 0x00ff00ff")
    A("s_mov_b64 exec, s[32:33]")
    off = O_R0 + 2*(2046 - 512)
    A(f"ds_write_b32 v9, v{Q+7} offset:{off}")
    A(f"ds_write_b128 v9, {vr(Q,4)} offset:{off+4}")
    A(f"ds_write_b64 v9, {vr(Q+4,2)} offset:{off+20}")
    A(f"ds_write_b32 v9, v{Q+6} offset:{off+28}")
    A("s_mov_b64 exec, -1")
    Q = BF + 24
    A(f"v_cvt_pk_bf16_f32 v{Q}, v{KA+4+2}, v{KA+4+2}")
    A(f"v_cvt_pk_bf16_f32 v{Q+1}, v{KA+4}, v{KA+4}")
    off = O_R0 + 2*(2057 - 256)
    A(f"ds_write_b16 v10, v{Q} offset:{off}")
    A(f"ds_write_b32 v10, v{Q+1} offset:{off+2}")
    A(f"ds_write_b16 v10, v{Q+1} offset:{off+6}")
    A(f"v_cvt_pk_bf16_f32 v{Q+2}, v{KA+3}, v{KA+2}")
    A(f"v_cvt_pk_bf16_f32 v{Q+3}, v{KA+1}, v{KA}")
    A(f"ds_write_b64 v10, {vr(Q+2,2)} offset:{O_R0 + 2*2056}")
    A("v_lshlrev_b32 v8, 4, v0")
    A("v_add_u32 v8, s29, v8")
    for it in range(5):
        if it == 4: A("s_mov_b64 exec, 0xf")
        A(f"ds_read_b128 {vr(OF+8*it,4)}, v8 offset:{O_R0 + 1024*it}")
        A(f"ds_read_b32 v{OF+8*it+4}, v8 offset:{O_R0 + 1024*it + 16}")
    A("s_mov_b64 exec, -1")
    A("s_waitcnt lgkmcnt(0)")
    for it in range(5):
        for i in range(4):
            A(f"v_alignbit_b32 v{OF+8*it+i}, v{OF+8*it+i+1}, v{OF+8*it+i}, 16")
        if it == 4: A("s_mov_b64 exec, 0xf")
        A(f"ds_write_b128 v8, {vr(OF+8*it,4)} offset:{O_R1 + 1024*it}")
    A("s_mov_b64 exec, -1")
    A("v_and_b32 v8, 3, v0")
    A("v_lshl_add_u32 v9, v5, 2, v8")
    A("v_lshrrev_b32 v10, 2, v0")
    A("v_and_b32 v11, 3, v10")
    A("v_lshl_add_u32 v9, v9, 2, v11")
    A("v_lshlrev_b32 v9, 4, v9")
    A("s_and_b32 s32, s2, 1")
    A("s_lshl_b32 s32, s32, 3")
    A("s_add_u32 s32, s32, s41")
    A("v_add_u32 v9, s32, v9")
    A(f"v_mul_u32_u24 v8, {WAREA}, v8")
    A("v_lshl_add_u32 v8, v10, 3, v8")
    A("s_lshl_b32 s32, s27, 10")
    A(f"s_add_u32 s32, s32, {W0 + O_U + 480}")
    A("v_add_u32 v8, s32, v8")
    A("s_waitcnt vmcnt(0)")
    for i in range(8): A(f"ds_read_b64_tr_b16 {vr(BF+2*i,2)}, v9 offset:{1024*i}")
    for i in range(8):
        A("s_waitcnt lgkmcnt(7)")
        A(f"ds_write_b64 v8, {vr(BF+2*i,2)} offset:{128*i}")
    A("v_lshlrev_b32 v8, 3, v5")
    A("v_sub_u32 v8, v8, v4")
    A("v_add_u32 v8, 2043, v8")
    A("v_and_b32 v9, 1, v8")
    A("v_sub_u32 v8, v8, v9")
    A("v_lshlrev_b32 v8, 1, v8")
    A(f"v_mul_u32_u24 v9, {O_R1 - O_R0}, v9")
    A("v_add_u32 v8, v8, v9")
    A("v_add_u32 v8, s29, v8")
    RA = 24
    for a in range(4): A(f"v_add_u32 v{RA+a}, {O_R0 - 960 - 1024*a}, v8")
    A("v_lshlrev_b32 v28, 5, v4")
    A("v_lshl_add_u32 v29, v5, 3, v28")
    A("v_lshl_add_u32 v28, v5, 4, v28")
    A("v_add_u32 v28, s29, v28")
    A("v_add_u32 v30, s29, v29")
    YA = 32
    FS = [64, 128]
    for i in range(32): A(f"v_mov_b32 v{YA+i}, 0")
    A("s_waitcnt lgkmcnt(0)")
    A("s_barrier")
    if diag: stamp(A, 3)
    def creads(rho):
        b = FS[rho & 1]
        o = []
        for a in range(8):
            off = 128*(1 - (a & 1)) + 16*(7 - rho)
            o.append([f"ds_read2_b32 {vr(b+4*a,2)}, v{RA+(a>>1)} offset0:{off} offset1:{off+1}",
                      f"ds_read2_b32 {vr(b+4*a+2,2)}, v{RA+(a>>1)} offset0:{off+2} offset1:{off+3}"])
            o.append([f"ds_read_b128 {vr(b+32+4*a,4)}, v28 offset:{O_U + 448 - 64*rho + 512*a}"])
        return o
    for g in creads(0): A(g)
    for rho in range(8):
        b = FS[rho & 1]
        m = []
        for a in range(8):
            for be in range(8 - a):
                n = a + be
                m.append(f"v_mfma_f32_16x16x32_bf16 {vr(YA+4*n,4)}, {vr(b+4*a,4)}, {vr(b+32+4*be,4)}, {vr(YA+4*n,4)}")
        A("s_waitcnt lgkmcnt(0)")
        A(interleave(m, creads(rho+1) if rho < 7 else [[f"ds_read_b64 {vr(FS[0]+2*n,2)}, v30 offset:{O_U + 480 + 512*n}"] for n in range(8)]))
    if diag: stamp(A, 4)
    A("s_lshl_b32 s32, s28, 12")
    A(f"s_add_u32 s32, s32, {WS_AT}")
    srd(A, 36, 24, 25, "s32", 4096)
    A("s_waitcnt lgkmcnt(0)")
    A("s_nop 4")
    T = FS[1]
    for n in range(8):
        for j in range(2):
            u = FS[0] + 2*n + j; y = YA + 4*n + 2*j; t = T + 8*((2*n+j) & 3)
            A(f"v_cvt_pk_bf16_f32 v{t}, v{y}, v{y+1}")
            A(f"v_lshlrev_b32 v{t+2}, 16, v{u}")
            A(f"v_and_b32 v{t+3}, 0xffff0000, v{u}")
            A(f"v_mul_f32 v{t+2}, v{t+2}, v{DSK}")
            A(f"v_mul_f32 v{t+3}, v{t+3}, v{DSK}")
            A(f"v_and_b32 v{t+1}, 0xffff0000, v{t}")
            A(f"v_cvt_pk_bf16_f32 v{t+2}, v{t+2}, v{t+3}")
            A(f"v_lshlrev_b32 v{t}, 16, v{t}")
            A(f"v_and_b32 v{t+3}, 0xffff0000, v{t+2}")
            A(f"v_lshlrev_b32 v{t+2}, 16, v{t+2}")
            A(f"v_add_f32 v{t+1}, v{t+1}, v{t+3}")
            A(f"v_add_f32 v{t}, v{t}, v{t+2}")
            A(f"v_cvt_pk_bf16_f32 v{u}, v{t}, v{t+1}")
        A(f"buffer_store_dwordx2 {vr(FS[0]+2*n,2)}, v29, s[36:39], 0 offen offset:{512*n}")
    if diag:
        A("s_waitcnt vmcnt(0)")
        stamp(A, 5); stamp(A, 7, True)
        stamp_store(A, name, 24, 3, 27)
    A.label(f"{name}_end")
    A("s_endpgm")
    return 192, W0 + 4*WAREA
```

```python
import sys
from asmlib import *
from gen_k1 import gen_k1
from gen_k2 import gen_k2
from gen_k3 import gen_k3
diag = "--diag" in sys.argv
out = [a for a in sys.argv[1:] if not a.startswith("--")][0]
A = Asm(); descs = []; launches = []
ks = []
if "--nossm" not in sys.argv:
    from gen_ssm import gen_ssm
    ks.append(("ssm_kernel", gen_ssm, 144, 256))
ks += [("k1_kernel", gen_k1, 256, 512), ("k2_kernel", gen_k2, 256, 512), ("k3_kernel", gen_k3, 256, 256)]
for name, fn, grid, block in ks:
    v, lds = fn(A, name, diag=diag)
    descs.append(kernel_desc(name, v, accum=min(256, (v+3)//4*4)))
    launches.append(f"; @launch kernel={name} grid=({grid},1,1) block=({block},1,1) lds={lds}")
open(out, "w").write(HEADER + "\n".join(launches) + "\n" + '.amdgcn_target "amdgcn-amd-amdhsa--gfx950"\n.text\n' + A.text() + '.section .rodata,"a"\n' + "".join(descs))
```

```python
from asmlib import *
import math, numpy as np
LOG2E = 1.4426950408889634
GC0 = -2.0 * LOG2E * math.sqrt(2.0 / math.pi)
GC1 = GC0 * 0.044715
C_HI = float(np.float32(1.0 / (2 * math.pi)))
C_LO = float(np.float32(1.0 / (2 * math.pi) - C_HI))
L2E_HI = float(np.float32(LOG2E)); L2E_LO = float(np.float32(LOG2E - L2E_HI))
STG = 34816
S = 4
LDS_X = S * STG
LDS_TOTAL = 163840
P_U, P_LOGA, P_AIM, P_CR, P_CI, P_LOGDT, P_D, P_BX, P_WIN, P_WSP, P_BSP, P_WOUT, P_GATE, P_OUT, P_DBG, P_WS = [32 + 2*i for i in range(16)]
S_WAVE, S_W, S_FT, S_TT, S_T64, S_J = 24, 25, 26, 27, 28, 29
CN_ST, CN_Z2, CN_H, CN_A = 0, 64, 128, 192

class Stream(Asm):
    def __init__(self, diag=False):
        super().__init__()
        self.nvm = 0
        self.bars = []
        self.diag = diag
        self.vshift = 0
    def __call__(self, s):
        if isinstance(s, (list, tuple)):
            for x in s: self(x)
            return
        if self.vshift:
            import re
            sh = lambda k: k + self.vshift if 1 <= k <= 60 else k
            s = re.sub(r"\bv\[(\d+):(\d+)\]", lambda m: f"v[{sh(int(m.group(1)))}:{sh(int(m.group(2)))}]", s)
            s = re.sub(r"\bv(\d+)\b", lambda m: f"v{sh(int(m.group(1)))}", s)
        self.lines.append("    " + s)
    def vm(self, s):
        self(s); self.nvm += 1
        return self.nvm - 1
    def wait_vm(self, k, extra=""):
        n = self.nvm - 1 - k
        assert 0 <= n <= 63, n
        self(f"s_waitcnt vmcnt({n}){extra}")
    def bar(self, name):
        self("s_barrier"); self.bars.append(name)
    def stamp(self, i, real=False):
        import sys
        if "--mstamp" in sys.argv and 4 <= i <= 11:
            if i in getattr(self, "used", set()): return
            self.used = getattr(self, "used", set()) | {i}
        if "--sstamp" in sys.argv and i in getattr(self, "used", set()): return
        if self.diag:
            self(f"s_mem{'real' if real else ''}time s[{76+2*i}:{77+2*i}]")

def psrd(A, d, p, off, nbytes):
    srd(A, d, p, p+1, off, nbytes)

def gelu_ops(regs, tmp, vc1):
    o = []
    for i, r in enumerate(regs): o.append(f"v_mul_f32 v{tmp+i}, v{r}, v{r}")
    for i, r in enumerate(regs): o.append(f"v_fmaak_f32 v{tmp+i}, v{tmp+i}, v{vc1}, {f32(GC0)}")
    for i, r in enumerate(regs): o.append(f"v_mul_f32 v{tmp+i}, v{r}, v{tmp+i}")
    for i, r in enumerate(regs): o.append(f"v_exp_f32 v{tmp+i}, v{tmp+i}")
    for i, r in enumerate(regs): o.append(f"v_add_f32 v{tmp+i}, 1.0, v{tmp+i}")
    for i, r in enumerate(regs): o.append(f"v_rcp_f32 v{tmp+i}, v{tmp+i}")
    for i, r in enumerate(regs): o.append(f"v_mul_f32 v{r}, v{r}, v{tmp+i}")
    return o

def bf16_round(A, v):
    A(f"v_cvt_pk_bf16_f32 v{v}, v{v}, v{v}")
    A(f"v_and_b32 v{v}, 0xffff0000, v{v}")

def set_exec(A, lo, hi):
    A(f"s_mov_b32 exec_lo, {lo}")
    A(f"s_mov_b32 exec_hi, {hi}")

def signal(A, lbl, cn_base, idx_sreg, vt, srd_reg):
    A(f"s_lshl_b32 s64, s{idx_sreg}, 2")
    A(f"s_add_u32 s64, s64, {cn_base}")
    A(f"v_mov_b32 v{vt}, s64")
    A(f"v_mov_b32 v{vt+1}, 1")
    A("s_mov_b64 exec, 1")
    A.vm(f"buffer_atomic_add v{vt+1}, v{vt}, s[{srd_reg}:{srd_reg+3}], 0 offen")
    A("s_mov_b64 exec, -1")

def poll(A, lbl, cn_base, idx_sreg, target, vt, srd_reg, sleep=2):
    A(f"s_lshl_b32 s64, s{idx_sreg}, 2")
    A(f"s_add_u32 s64, s64, {cn_base}")
    A(f"v_mov_b32 v{vt}, s64")
    A("s_mov_b32 s65, 0")
    A.label(f"{lbl}_poll")
    A.vm(f"buffer_load_dword v{vt+1}, v{vt}, s[{srd_reg}:{srd_reg+3}], 0 offen sc1")
    A("s_waitcnt vmcnt(0)")
    A(f"v_readfirstlane_b32 s66, v{vt+1}")
    A("s_add_u32 s65, s65, 1")
    A(f"s_cmp_ge_u32 s66, {target}")
    A(f"s_cbranch_scc1 {lbl}_ok")
    A(f"s_sleep {sleep}")
    A("s_cmp_lt_u32 s65, 100000")
    A(f"s_cbranch_scc1 {lbl}_poll")
    A.label(f"{lbl}_ok")

def rowperm_voff(A, dst, pitch):
    A("v_lshrrev_b32 v5, 3, v0")
    A("v_lshrrev_b32 v6, 4, v0")
    A("v_and_b32 v7, 7, v0")
    A(f"s_and_b32 s64, s{S_W}, 1")
    A("s_lshl_b32 s65, s64, 2")
    A("v_add_u32 v8, s65, v6")
    A("v_xor_b32 v8, v8, v7")
    A("v_lshlrev_b32 v8, 4, v8")
    A("v_lshrrev_b32 v9, 5, v0")
    A("v_lshlrev_b32 v9, 3, v9")
    A("v_and_b32 v10, 3, v5")
    A("v_add_u32 v9, v9, v10")
    A("s_lshl_b32 s65, s64, 4")
    A(f"s_lshr_b32 s66, s{S_W}, 1")
    A("s_lshl_b32 s66, s66, 2")
    A("s_add_u32 s65, s65, s66")
    A("v_add_u32 v9, s65, v9")
    A(f"v_mul_u32_u24 v9, {pitch}, v9")
    A(f"v_add_u32 v{dst}, v9, v8")

def stamp_dump(A, lbl, slot):
    A("s_waitcnt lgkmcnt(0)")
    A(f"s_cmp_lg_u32 s{S_W}, 0")
    A(f"s_cbranch_scc1 {lbl}_nost")
    A("s_lshl_b32 s64, s2, 7")
    A(f"s_add_u32 s64, s64, {WS_DBG + slot*32768}")
    psrd(A, 4, P_WS, "s64", 128)
    A("v_mov_b32 v1, 0")
    for i in range(26):
        A(f"v_mov_b32 v{4+i}, s{76+i}")
    A("v_mov_b32 v30, 0"); A("v_mov_b32 v31, 0")
    for i in range(7):
        A(f"buffer_store_dwordx4 v[{4+4*i}:{7+4*i}], v1, s[4:7], 0 offen offset:{16*i}")
    A.label(f"{lbl}_nost")

WS_MB = 0x2180000
MB_Z2, MB_H, MB_A, MB_WF = [WS_MB + i*32768 for i in range(4)]
WS_KS = 0x2800000
WS_UT = 0x2400000

def mb_push(A, arr, nl, vbase_ops, slot_sreg, vt, srd_reg):
    A(vbase_ops)
    A(f"v_lshlrev_b32 v{vt}, 7, v{vt}")
    A(f"s_lshl_b32 s64, s{slot_sreg}, 2")
    A(f"s_add_u32 s64, s64, {arr - WS_MB}")
    A(f"v_mov_b32 v{vt+1}, 1")
    A(f"s_mov_b64 exec, {hex((1 << nl) - 1)}")
    A(f"buffer_store_dword v{vt+1}, v{vt}, s[{srd_reg}:{srd_reg+3}], s64 offen sc1")
    A("s_mov_b64 exec, -1")

def mb_wait(A, lbl, arr, owner_sreg, nl, vt, srd_reg, sleep=4):
    A(f"s_lshl_b32 s64, s{owner_sreg}, 7")
    A(f"s_add_u32 s64, s64, {arr - WS_MB}")
    A(f"v_and_b32 v{vt}, 31, v0")
    A(f"v_lshlrev_b32 v{vt}, 2, v{vt}")
    A("s_mov_b32 s65, 0")
    A.label(f"{lbl}_poll")
    A.vm(f"buffer_load_dword v{vt+1}, v{vt}, s[{srd_reg}:{srd_reg+3}], s64 offen sc1")
    A("s_waitcnt vmcnt(0)")
    A(f"v_cmp_ne_u32 vcc, 0, v{vt+1}")
    A("s_add_u32 s65, s65, 1")
    A(f"s_and_b32 s66, vcc_lo, {hex((1 << nl) - 1)}")
    A(f"s_cmp_eq_u32 s66, {hex((1 << nl) - 1)}")
    A(f"s_cbranch_scc1 {lbl}_ok")
    A(f"s_sleep {sleep}")
    A("s_cmp_lt_u32 s65, 100000")
    A(f"s_cbranch_scc1 {lbl}_poll")
    A.label(f"{lbl}_ok")

def init_wait(A, lbl, vt, dbg_srd):
    A(f"v_and_b32 v{vt}, 15, v0")
    A(f"v_lshlrev_b32 v{vt}, 2, v{vt}")
    A("s_mov_b32 s65, 0")
    A.label(f"{lbl}_poll")
    A(f"buffer_load_dword v{vt+1}, v{vt}, s[{dbg_srd}:{dbg_srd+3}], 0 offen sc1")
    A("s_waitcnt vmcnt(0)")
    A(f"v_cmp_le_u32 vcc, 16, v{vt+1}")
    A("s_add_u32 s65, s65, 1")
    A(f"s_cmp_eq_u32 vcc_lo, -1")
    A(f"s_cbranch_scc1 {lbl}_ok")
    A(f"s_sleep 16")
    A("s_cmp_lt_u32 s65, 30000")
    A(f"s_cbranch_scc1 {lbl}_poll")
    A.label(f"{lbl}_ok")

def bg_cost(t):
    if t.startswith("ds_write"): return 45
    if t.startswith("ds_read"): return 25
    if t.startswith("v_mfma"): return 40
    if any(t.startswith(x) for x in ("v_exp", "v_sin", "v_cos", "v_rcp", "v_sqrt")): return 17
    if t.startswith("v_"): return 8.5
    return 5

def bg_split(lines, budgets):
    chunks = []; cur = []; cost = 0; full = True; prev = ""; bi = 0
    for ln in lines:
        t = ln.strip()
        safe = full and t.startswith(("v_", "ds_")) and prev.startswith(("v_", "ds_")) and "vcc" not in t
        if safe and bi < len(budgets) - 1 and cost >= budgets[bi]:
            chunks.append(cur); cur = []; cost = 0; bi += 1
        cur.append(ln)
        if "exec" in t.split(",")[0]:
            full = t.startswith("s_mov_b64 exec, -1")
        cost += bg_cost(t); prev = t
    chunks.append(cur)
    last = cost
    while len(chunks) < len(budgets): chunks.append([])
    return chunks, last
```

```python
from fz_common import *
R0_BASE = LDS_X + 1024
RSZ = 4800
R0_OFF = 640
R1SZ = 4160
USZ = 4608

def kgen_load(A, ch_sreg):
    A(f"s_lshl_b32 s64, s{ch_sreg}, 8")
    A("v_lshlrev_b32 v2, 2, v0")
    A(f"s_lshl_b32 s65, s{ch_sreg}, 1")
    A("v_mov_b32 v3, s65")
    for i, p in enumerate((P_LOGA, P_AIM, P_CR, P_CI)):
        psrd(A, 4, p, None, 576*256)
        A(f"buffer_load_dword v{4+i}, v2, s[4:7], s64 offen")
    psrd(A, 4, P_LOGDT, None, 1152)
    A("buffer_load_ushort v8, v3, s[4:7], 0 offen")

def kgen(A, st, r0_sreg, part, packed):
    ARE, AIM, CC = 12, 14, 16
    DT, KSC = 20, 22
    WP = {1: 28, 8: 32, 128: 36, 2: 40, 4: 44}
    kgen_setup(A, ARE, AIM, CC, DT, KSC, WP)
    kgen_body(A, st, r0_sreg, part, packed, CC, KSC, WP)

KSTATE = [16, 20, 28, 36] + [64 + 4*i for i in range(8)]
def kstate_io(A, ch_sreg, store):
    A(f"s_mul_i32 s64, s{ch_sreg}, 12288")
    A(f"s_add_u32 s64, s64, {WS_KS}")
    psrd(A, 4, P_WS, "s64", 12288)
    A("v_lshlrev_b32 v1, 4, v0")
    A("s_movk_i32 s65, 4096"); A("s_movk_i32 s66, 8192")
    for i, r in enumerate(KSTATE):
        A(f"buffer_{'store' if store else 'load'}_dwordx4 {vr(r,4)}, v1, s[4:7], {['0','s65','s66'][i>>2]} offen offset:{(i&3)*1024} sc1")

def kgen_setup(A, ARE, AIM, CC, DT, KSC, WP):
    A(f"v_lshlrev_b32 v{DT}, 16, v8")
    A(f"v_lshlrev_b32 v{ARE}, 16, v4");  A(f"v_and_b32 v{ARE+1}, 0xffff0000, v4")
    A(f"v_lshlrev_b32 v{AIM}, 16, v5");  A(f"v_and_b32 v{AIM+1}, 0xffff0000, v5")
    A(f"v_lshlrev_b32 v{CC}, 16, v6");   A(f"v_and_b32 v{CC+2}, 0xffff0000, v6")
    A(f"v_lshlrev_b32 v{CC+1}, 16, v7"); A(f"v_and_b32 v{CC+3}, 0xffff0000, v7")
    A(f"v_mov_b32 v23, {f32(L2E_HI)}")
    A(f"v_mov_b32 v24, {f32(L2E_LO)}")
    ops = []
    for k, r in enumerate((DT, ARE, ARE+1)):
        t = 48 + 3*k
        ops.append([f"v_mul_f32 v{t}, v{r}, v23", f"v_fma_f32 v{t+1}, v{r}, v23, -v{t}", f"v_fmac_f32 v{t+1}, v{r}, v24",
                    f"v_rndne_f32 v{t+2}, v{t}", f"v_sub_f32 v{t}, v{t}, v{t+2}", f"v_add_f32 v{t}, v{t}, v{t+1}",
                    f"v_exp_f32 v{t}, v{t}", f"v_cvt_i32_f32 v{t+2}, v{t+2}", f"v_ldexp_f32 v{r}, v{t}, v{t+2}",
                    f"v_cvt_pk_bf16_f32 v{r}, v{r}, v{r}", f"v_and_b32 v{r}, 0xffff0000, v{r}"])
    red = [f"v_max_f32 v25, abs(v{CC}), abs(v{CC+1})", f"v_max3_f32 v25, v25, abs(v{CC+2}), abs(v{CC+3})"]
    red += [f"v_max_f32_dpp v25, v25, v25 row_ror:{rot} row_mask:0xf bank_mask:0xf" for rot in (8, 4, 2, 1)]
    red += ["v_mov_b32 v26, v25", "v_permlane16_swap_b32 v25, v26", "v_max_f32 v25, v25, v26",
            "v_mov_b32 v26, v25", "v_permlane32_swap_b32 v25, v26"]
    for k, grp in enumerate(zip(*ops)):
        A(red[k]); A(list(grp))
    A("v_max_f32 v25, v25, v26")
    for mu in range(2):
        A(f"v_mul_f32 v{ARE+mu}, v{ARE+mu}, v{DT}")
        A(f"v_mul_f32 v{AIM+mu}, v{AIM+mu}, v{DT}")
        A(f"v_mul_f32 v{ARE+mu}, {f32(-LOG2E)}, v{ARE+mu}")
    A("v_and_b32 v25, 0x7f800000, v25")
    A("v_max_u32 v25, 0x00800000, v25")
    A("v_min_u32 v25, 0x7e800000, v25")
    A("v_sub_u32 v26, 0x7f000000, v25")
    for i in range(4): A(f"v_mul_f32 v{CC+i}, v{CC+i}, v26")
    A(f"v_mul_f32 v{KSC}, v25, v{DT}")
    A(f"v_add_f32 v{KSC}, v{KSC}, v{KSC}")
    A(f"v_mov_b32 v23, {f32(C_HI)}")
    A(f"v_mov_b32 v24, {f32(C_LO)}")
    for p in (1, 8, 128):
        b = WP[p]
        ops = [[], []]
        for mu in range(2):
            t = 48 + 4*mu
            o = ops[mu]
            o.append(f"v_mul_f32 v{t}, {f32(float(p))}, v{ARE+mu}")
            o.append(f"v_mul_f32 v{t+1}, {f32(float(-p if p == 8 else p))}, v{AIM+mu}")
            o.append(f"v_exp_f32 v{t}, v{t}")
            o.append(f"v_mul_f32 v{t+2}, v{t+1}, v23")
            o.append(f"v_fma_f32 v{t+3}, v{t+1}, v23, -v{t+2}")
            o.append(f"v_fmac_f32 v{t+3}, v{t+1}, v24")
            o.append(f"v_fract_f32 v{t+2}, v{t+2}")
            o.append(f"v_add_f32 v{t+2}, v{t+2}, v{t+3}")
            o.append(f"v_cos_f32 v{t+1}, v{t+2}")
            o.append(f"v_sin_f32 v{t+3}, v{t+2}")
            o.append(f"v_mul_f32 v{b+2*mu}, v{t}, v{t+1}")
            o.append(f"v_mul_f32 v{b+2*mu+1}, v{t}, v{t+3}")
        for x, y in zip(*ops): A(x); A(y)

def kgen_body(A, st, r0_sreg, part, packed, CC, KSC, WP):
    A("v_lshlrev_b32 v2, 3, v0")
    A(f"v_add_u32 v2, s{st}, v2")
    A("v_and_b32 v4, 15, v0")
    A("v_lshrrev_b32 v5, 4, v0")
    A("v_and_b32 v3, 7, v0")
    A("v_mul_u32_u24 v3, 528, v3")
    A("v_lshl_add_u32 v3, v5, 4, v3")
    A(f"v_add_u32 v3, s{st}, v3")
    Z = 48; TT = 52; PK = 56; SS = CC
    OF = 64; BT = [96, 128, 96]; KA = 160
    def cmul(dst, z, w):
        o = []
        if packed:
            for mu in range(2):
                o.append(f"v_pk_mul_f32 {vr(TT+2*mu,2)}, {vr(z+2*mu,2)}, {vr(w+2*mu,2)} op_sel:[0,0] op_sel_hi:[0,1]")
            for mu in range(2):
                o.append(f"v_pk_fma_f32 {vr(dst+2*mu,2)}, {vr(z+2*mu,2)}, {vr(w+2*mu,2)}, {vr(TT+2*mu,2)} op_sel:[1,1,0] op_sel_hi:[1,0,1] neg_lo:[0,1,0]")
            return o
        assert dst != w
        for mu in range(2): o.append(f"v_mul_f32 v{TT+2*mu}, v{z+2*mu}, v{w+2*mu}")
        for mu in range(2): o.append(f"v_mul_f32 v{TT+2*mu+1}, v{z+2*mu}, v{w+2*mu+1}")
        for mu in range(2): o.append(f"v_fma_f32 v{dst+2*mu}, -v{z+2*mu+1}, v{w+2*mu+1}, v{TT+2*mu}")
        for mu in range(2): o.append(f"v_fma_f32 v{dst+2*mu+1}, v{z+2*mu+1}, v{w+2*mu}, v{TT+2*mu+1}")
        return o
    if part == 1:
        A(cmul(WP[2], WP[1], WP[1])); A(cmul(WP[4], WP[2], WP[2]))
        A(cmul(SS, SS, WP[128])); A(cmul(SS, SS, WP[128]))
    for i in range(12): A(f"v_mov_b32 v{KA+i}, 0")
    state = {"row": 0}
    def emit(src, nxt, dst, last=False):
        j = state["row"]
        pk = PK + 2*(j & 1)
        A(f"v_cvt_pk_f16_f32 v{pk}, v{src}, v{src+1}")
        A(f"v_cvt_pk_f16_f32 v{pk+1}, v{src+2}, v{src+3}")
        A(nxt)
        A(f"ds_write_b64 v2, {vr(pk,2)} offset:{528*(j & 7)}")
        if (j & 7) == 7 or last:
            m = 0x00ff00ff if (j & 15) < 8 else 0xff00ff00
            set_exec(A, m, m)
            for ks in range(8): A(f"ds_read_b128 {vr(dst+4*ks,4)}, v3 offset:{64*ks}")
            A("s_mov_b64 exec, -1")
        state["row"] = (j + 1) & 15
    def kmm(T):
        for ks in range(8):
            A(f"v_mfma_f32_16x16x32_f16 {vr(KA+4*T,4)}, {vr(BT[T]+4*ks,4)}, {vr(OF+4*ks,4)}, {vr(KA+4*T,4)}")
    A(f"v_mov_b32 v{Z}, 1.0"); A(f"v_mov_b32 v{Z+1}, 0"); A(f"v_mov_b32 v{Z+2}, 1.0"); A(f"v_mov_b32 v{Z+3}, 0")
    for j in range(16): emit(Z, cmul(Z, Z, WP[8]) if j < 15 else [], OF)
    rowno = 0 if part == 0 else 16
    ilast = 1 if part == 0 else 16
    for i in (range(2) if part == 0 else range(2, 17)):
        sub, w = (8, 1) if i < 2 else (4, 2) if i < 4 else (2, 4) if i < 8 else (1, None)
        for e in range(sub):
            src = SS if e == 0 else Z
            if e < sub - 1: nxt = cmul(Z, src, WP[w])
            elif i < ilast: nxt = cmul(SS, SS, WP[128])
            else:           nxt = []
            emit(src, nxt, BT[rowno >> 4], last=(i == 16))
            rowno += 1
    if part == 0:
        A("s_waitcnt lgkmcnt(0)"); kmm(0)
    else:
        A("s_waitcnt lgkmcnt(15)"); kmm(1)
        A("s_waitcnt lgkmcnt(0)"); kmm(2)
    A("v_lshlrev_b32 v8, 4, v4")
    A(f"v_sub_u32 v8, s{r0_sreg}, v8")
    if part == 0:
        A("v_mov_b32 v6, 0")
        A("v_lshlrev_b32 v9, 2, v0")
        A(f"v_add_u32 v9, s{r0_sreg}, v9")
        A("s_mov_b64 exec, 0x3ff")
        A(f"ds_write_b32 v9, v6 offset:4120")
        A("s_mov_b64 exec, -1")
        A("v_lshrrev_b32 v6, 1, v5")
        A("v_lshlrev_b32 v6, 8, v6")
        A("v_and_b32 v7, 1, v5")
        A("v_lshl_add_u32 v6, v7, 3, v6")
        A("v_sub_u32 v8, v8, v6")
        for i in range(4): A(f"v_mul_f32 v{KA+i}, v{KA+i}, v{KSC}")
        A(f"v_cvt_pk_bf16_f32 v56, v{KA+3}, v{KA+2}")
        A(f"v_cvt_pk_bf16_f32 v57, v{KA+1}, v{KA}")
        A(f"ds_write_b64 v8, v[56:57] offset:{2*2056}")
        return
    A("v_lshlrev_b32 v9, 10, v5")
    A("v_sub_u32 v9, v8, v9")
    A("v_lshlrev_b32 v10, 9, v5")
    A("v_sub_u32 v10, v8, v10")
    A("v_lshlrev_b32 v11, 8, v5")
    A("v_sub_u32 v11, v8, v11")
    A("s_nop 1")
    for i in range(4, 12): A(f"v_mul_f32 v{KA+i}, v{KA+i}, v{KSC}")
    Q = 64
    for r in range(4):
        A(f"v_cvt_pk_bf16_f32 v{Q+2*r}, v{KA+8+r}, v{KA+8+r}")
        A(f"v_mov_b32 v{Q+2*r+1}, v{Q+2*r}")
    for r in range(4):
        off = 2*(2056 - 1024 - 128*r)
        set_exec(A, -1, 1 if r == 0 else 0)
        A(f"ds_write_b64 v9, {vr(Q+2*r,2)} offset:{off}")
        A(f"ds_write_b32 v9, v{Q+2*r} offset:{off+8}")
        A(f"ds_write_b16 v9, v{Q+2*r} offset:{off+12}")
        A("s_mov_b32 exec_lo, 0x55555555")
        A(f"ds_write_b16 v9, v{Q+2*r} offset:{off+14}")
        A(f"ds_write_b16 v9, v{Q+2*r} offset:{off-2}")
        A("s_mov_b64 exec, -1")
        A("v_nop"); A("v_nop")
    Q = 72
    for u in range(2):
        k0, k1 = KA+4+2*u, KA+4+2*u+1
        A(f"v_cvt_pk_bf16_f32 v{Q+4*u+3}, v{k1}, v{k1}")
        A(f"v_cvt_pk_bf16_f32 v{Q+4*u}, v{k1}, v{k0}")
        A(f"v_cvt_pk_bf16_f32 v{Q+4*u+1}, v{k0}, v{k0}")
    set_exec(A, 0, -1)
    for u in range(2):
        off = 2*(2054 - 128*u)
        A(f"ds_write_b32 v10, v{Q+4*u+3} offset:{off}")
        A(f"ds_write_b64 v10, {vr(Q+4*u,2)} offset:{off+4}")
        A(f"ds_write_b32 v10, v{Q+4*u+1} offset:{off+12}")
    A("s_mov_b64 exec, -1")
    Q = 80
    k = [KA+4+r for r in range(4)]
    A(f"v_cvt_pk_bf16_f32 v{Q}, v{k[3]}, v{k[3]}")
    A(f"v_cvt_pk_bf16_f32 v{Q+1}, v{k[2]}, v{k[2]}")
    A(f"v_cvt_pk_bf16_f32 v{Q+2}, v{k[2]}, v{k[1]}")
    A(f"v_cvt_pk_bf16_f32 v{Q+3}, v{k[0]}, v{k[0]}")
    A("s_mov_b64 exec, 0xffffffff")
    off = 2*(2053 - 256)
    A(f"ds_write_b16 v11, v{Q} offset:{off}")
    A(f"ds_write_b32 v11, v{Q+1} offset:{off+2}")
    A(f"ds_write_b64 v11, {vr(Q+2,2)} offset:{off+6}")
    A("s_mov_b32 exec_lo, 0xfffffffe")
    A(f"ds_write_b16 v11, v{Q+3} offset:{off+14}")
    A("s_mov_b64 exec, -1")

def r1_build(A, r0_sreg, r1_sreg, T):
    A("v_lshlrev_b32 v9, 4, v0")
    A(f"v_add_u32 v8, s{r0_sreg}, v9")
    A(f"v_add_u32 v9, s{r1_sreg}, v9")
    for it in range(5):
        if it == 4: A("s_mov_b64 exec, 0xf")
        A(f"ds_read_b128 {vr(T+8*it,4)}, v8 offset:{1024*it}")
        A(f"ds_read_b32 v{T+8*it+4}, v8 offset:{1024*it + 16}")
    A("s_mov_b64 exec, -1")
    A("s_waitcnt lgkmcnt(0)")
    for it in range(5):
        for i in range(4):
            A(f"v_alignbit_b32 v{T+8*it+i}, v{T+8*it+i+1}, v{T+8*it+i}, 16")
        if it == 4: A("s_mov_b64 exec, 0xf")
        A(f"ds_write_b128 v9, {vr(T+8*it,4)} offset:{1024*it}")
    A("s_mov_b64 exec, -1")

def conv(A, r0_sreg, r1_sreg, u_sreg, ch_sreg, hook=None):
    A(f"s_lshl_b32 s65, s{ch_sreg}, 1")
    A("v_mov_b32 v3, s65")
    psrd(A, 4, P_D, None, 1152)
    A.vm("buffer_load_ushort v21, v3, s[4:7], 0 offen")
    A("v_and_b32 v4, 15, v0")
    A("v_lshrrev_b32 v5, 4, v0")
    A("v_lshlrev_b32 v8, 3, v5")
    A("v_sub_u32 v8, v8, v4")
    A("v_add_u32 v8, 2043, v8")
    A("v_and_b32 v9, 1, v8")
    A("v_sub_u32 v8, v8, v9")
    A("v_lshlrev_b32 v8, 1, v8")
    A(f"s_sub_u32 s64, s{r1_sreg}, s{r0_sreg}")
    A("v_mul_lo_u32 v9, v9, s64")
    A("v_add_u32 v8, v8, v9")
    A(f"v_add_u32 v8, s{r0_sreg}, v8")
    RA = 24
    for a in range(4): A(f"v_subrev_u32 v{RA+a}, {960 + 1024*a}, v8")
    A("v_lshlrev_b32 v28, 5, v4")
    A("v_lshl_add_u32 v29, v5, 3, v28")
    A("v_lshl_add_u32 v28, v5, 4, v28")
    A(f"v_add_u32 v28, s{u_sreg}, v28")
    A(f"v_add_u32 v30, s{u_sreg}, v29")
    YA = 32
    FS = [64, 128]
    def creads(rho):
        b = FS[rho & 1]
        o = []
        for a in range(8):
            off = 128*(1 - (a & 1)) + 16*(7 - rho)
            o.append([f"ds_read2_b32 {vr(b+4*a,2)}, v{RA+(a>>1)} offset0:{off} offset1:{off+1}",
                      f"ds_read2_b32 {vr(b+4*a+2,2)}, v{RA+(a>>1)} offset0:{off+2} offset1:{off+3}"])
            o.append([f"ds_read_b128 {vr(b+32+4*a,4)}, v28 offset:{448 - 64*rho + 512*a}"])
        return o
    for g in creads(0): A(g)
    for i in range(32): A(f"v_mov_b32 v{YA+i}, 0")
    for rho in range(8):
        b = FS[rho & 1]
        m = []
        for a in range(8):
            for be in range(8 - a):
                n = a + be
                m.append(f"v_mfma_f32_16x16x32_bf16 {vr(YA+4*n,4)}, {vr(b+4*a,4)}, {vr(b+32+4*be,4)}, {vr(YA+4*n,4)}")
        A("s_waitcnt lgkmcnt(0)")
        A(interleave(m, creads(rho+1) if rho < 7 else [[f"ds_read_b64 {vr(FS[0]+2*n,2)}, v30 offset:{480 + 512*n}"] for n in range(8)]))
        if rho == 0 and hook: hook()
    A(f"s_lshl_b32 s64, s{ch_sreg}, 12")
    A(f"s_add_u32 s64, s64, {WS_AT}")
    psrd(A, 4, P_WS, "s64", 4096)
    A("s_waitcnt vmcnt(0) lgkmcnt(0)")
    A("v_lshlrev_b32 v21, 16, v21")
    A("s_nop 3")
    T = FS[1]; DSK = 21
    for n in range(8):
        for j in range(2):
            u = FS[0] + 2*n + j; y = YA + 4*n + 2*j; t = T + 8*((2*n+j) & 3)
            A(f"v_cvt_pk_bf16_f32 v{t}, v{y}, v{y+1}")
            A(f"v_lshlrev_b32 v{t+2}, 16, v{u}")
            A(f"v_and_b32 v{t+3}, 0xffff0000, v{u}")
            A(f"v_mul_f32 v{t+2}, v{t+2}, v{DSK}")
            A(f"v_mul_f32 v{t+3}, v{t+3}, v{DSK}")
            A(f"v_and_b32 v{t+1}, 0xffff0000, v{t}")
            A(f"v_cvt_pk_bf16_f32 v{t+2}, v{t+2}, v{t+3}")
            A(f"v_lshlrev_b32 v{t}, 16, v{t}")
            A(f"v_and_b32 v{t+3}, 0xffff0000, v{t+2}")
            A(f"v_lshlrev_b32 v{t+2}, 16, v{t+2}")
            A(f"v_add_f32 v{t+1}, v{t+1}, v{t+3}")
            A(f"v_add_f32 v{t}, v{t}, v{t+2}")
            A(f"v_cvt_pk_bf16_f32 v{u}, v{t}, v{t+1}")
        A.vm(f"buffer_store_dwordx2 {vr(FS[0]+2*n,2)}, v29, s[4:7], 0 offen offset:{512*n} sc1")
```

```python
import sys
from fz_common import *
import fz_ssm as ssm
NAME = "gated_mix__ssm_conv_s4d__mixer_gmlp__prompt_kernel"
NSSM = 144
OPT = set(a[2:] for a in sys.argv if a.startswith("--"))
U_BASE = 2*STG
R1_BASE = 3*STG
LDS_AT = 81920
S_O1, S_O3, S_CW, S_CH = 3, 75, 31, 30
S_R0 = 0
S_UTQ = 0
S_K0 = 1
S_KS, S_KR = 24, 31
KB0, KB1, KB2, KBG = 2600, 2300, 1100, 150
NPRE = 4 if 'pre4' in OPT else 2
KSPLIT = (0.40, 0.50)
VB, VA = 250, 251
n = NAME

def touch(A, p, nbytes, idx_sreg, vdst, lbl):
    if "notouch" in OPT: return
    A(f"s_cmp_ge_u32 s{idx_sreg}, {(nbytes + 8191) // 8192}")
    A(f"s_cbranch_scc1 {lbl}")
    psrd(A, 4, p, None, nbytes)
    A(f"s_lshl_b32 s64, s{idx_sreg}, 13")
    A(f"buffer_load_dword v{vdst}, v1, s[4:7], s64 offen")
    if "touch64" in OPT:
        A(f"buffer_load_dword v{vdst+1}, v1, s[4:7], s64 offen offset:64")
    A.label(lbl)

def header(H):
    kernel_begin(H, n)
    H("s_cmp_ge_u32 s2, 256")
    H(f"s_cbranch_scc1 {n}_end")
    H("s_load_dwordx16 s[32:47], s[0:1], 0")
    H("s_load_dwordx16 s[48:63], s[0:1], 64")
    H.stamp(0); H.stamp(1, True)
    H("v_lshrrev_b32 v1, 6, v0")
    H("s_and_b32 s3, s2, 7")
    H("s_lshr_b32 s30, s2, 3")
    H(f"v_readfirstlane_b32 s{S_WAVE}, v1")
    H("s_and_b32 s64, s3, 3")
    H("s_lshl_b32 s64, s64, 2")
    H("s_and_b32 s65, s30, 3")
    H(f"s_add_u32 s{S_FT}, s64, s65")
    H("s_lshr_b32 s64, s3, 2")
    H("s_lshr_b32 s66, s30, 2")
    if "ttblk" in OPT:
        H("s_lshl_b32 s64, s64, 3")
    else:
        H("s_lshl_b32 s66, s66, 1")
    H(f"s_add_u32 s{S_TT}, s64, s66")
    H("s_lshl_b32 s64, s3, 2")
    H("s_lshr_b32 s65, s30, 3")
    H(f"s_add_u32 s{S_T64}, s64, s65")
    H(f"s_and_b32 s{S_J}, s30, 7")
    H(f"s_and_b32 s{S_W}, s{S_WAVE}, 3")
    H("v_and_b32 v0, 63, v0")
    H(f"s_cmp_ge_u32 s{S_WAVE}, 4")
    H(f"s_cbranch_scc1 {n}_L")
    H("s_getpc_b64 s[64:65]")
    H.label(f"{n}_pc")
    H(f"s_sub_u32 s4, s64, {n}_pc-{n}")
    H("s_subb_u32 s5, s65, 0")
    H(f"s_mov_b32 s6, {n}_end-{n}")
    H("s_mov_b32 s7, 0x20000")
    H("s_lshl_b32 s66, s30, 2")
    H(f"s_add_u32 s66, s66, s{S_W}")
    H("s_lshl_b32 s66, s66, 10")
    H("v_lshlrev_b32 v1, 4, v0")
    H("buffer_load_dwordx4 v[240:243], v1, s[4:7], s66 offen")
    late_ids(H)
    H("s_waitcnt lgkmcnt(0)")
    H(f"s_cmp_ge_u32 s{S_FT}, 9")
    H(f"s_cbranch_scc1 {n}_C")
    ssm.kgen_load(H, S_CH)
    H(f"s_branch {n}_C")
    H.label(f"{n}_L")

def late_ids(A):
    A(f"s_lshl_b32 s64, s{S_TT}, 4")
    A(f"s_add_u32 s{S_O1}, s64, s{S_FT}")
    A(f"s_lshl_b32 s64, s{S_T64}, 3")
    A(f"s_add_u32 s{S_O3}, s64, s{S_J}")
    A(f"s_lshl_b32 s{S_CW}, s2, 2")
    A(f"s_add_u32 s{S_CW}, s{S_CW}, s{S_W}")
    A(f"s_lshl_b32 s64, s{S_FT}, 4")
    A(f"s_add_u32 s64, s64, s{S_TT}")
    A(f"s_lshl_b32 s64, s64, 2")
    A(f"s_add_u32 s{S_CH}, s64, s{S_W}")

def gen_L(A, diag):
    A.vshift = 190
    bg = Stream(False)
    ssm.kgen(bg, S_KS, S_KR, 1, True)
    budgets = [KB0, KB1, KB2, 99999]
    kch, lastc = bg_split(bg.lines, budgets)
    print("kgen bg: lines", len(bg.lines), "chunks used", sum(1 for c in kch if c), "last", lastc, file=sys.stderr)
    def kchunk(i):
        if not kch[i]: return
        A(f"s_cmp_ge_u32 s{S_FT}, 9")
        A(f"s_cbranch_scc1 {n}_Lk{i}")
        A.lines += kch[i]
        A.label(f"{n}_Lk{i}")
    rowperm_voff(A, 2, 1152)
    A("v_lshrrev_b32 v6, 4, v0")
    A(f"s_and_b32 s64, s{S_W}, 1")
    A("s_lshl_b32 s65, s64, 2")
    A("v_add_u32 v7, s65, v6")
    A("v_and_b32 v8, 15, v0")
    A("v_lshlrev_b32 v7, 1, v7")
    A("v_xor_b32 v8, v8, v7")
    A("s_lshl_b32 s65, s64, 3")
    A(f"s_lshr_b32 s66, s{S_W}, 1")
    A("s_lshl_b32 s66, s66, 2")
    A("s_add_u32 s65, s65, s66")
    A("v_add_u32 v6, s65, v6")
    A("v_mul_u32_u24 v6, 9216, v6")
    A("v_lshl_add_u32 v3, v8, 4, v6")
    A(f"s_lshl_b32 s65, s{S_FT}, 8")
    A("v_add_u32 v3, s65, v3")
    A("v_lshrrev_b32 v6, 1, v0")
    A("v_and_b32 v7, 3, v6")
    A("v_and_b32 v8, 4, v6")
    A("v_lshl_or_b32 v7, v8, 1, v7")
    A("v_and_b32 v8, 8, v6")
    A("v_lshrrev_b32 v8, 1, v8")
    A("v_or_b32 v7, v7, v8")
    A(f"s_lshl_b32 s65, s{S_W}, 4")
    A("v_add_u32 v7, s65, v7")
    A("v_mul_u32_u24 v7, 9216, v7")
    A("v_and_b32 v8, 1, v0")
    A("v_lshl_add_u32 v4, v8, 4, v7")
    A(f"s_lshl_b32 s64, s{S_FT}, 5")
    A("s_add_u32 s64, s64, 4096")
    A("v_add_u32 v4, s64, v4")
    A(f"s_lshl_b32 s68, s{S_W}, 10")
    A(f"s_lshl_b32 s69, s{S_W}, 9")
    A("s_add_u32 s69, s69, 16384")
    A(f"s_mul_i32 s64, s{S_TT}, {128*1152}")
    A("s_waitcnt lgkmcnt(0)")
    psrd(A, 8, P_U, "s64", 128*1152)
    psrd(A, 12, P_WIN, None, 576*9216)
    ready = {}
    A(f"s_and_b32 s74, s{S_TT}, 7" if "ttblk" in OPT else f"s_lshr_b32 s74, s{S_TT}, 1")
    A(f"s_and_b32 s64, s{S_FT}, 3")
    A("s_lshl_b32 s64, s64, 1")
    A("s_add_u32 s74, s74, s64")
    A("s_cmp_ge_u32 s74, 9")
    A("s_cselect_b32 s64, 9, 0")
    A("s_sub_u32 s74, s74, s64")
    if "norot" in OPT: A("s_mov_b32 s74, 0")
    A(f"s_sub_u32 s{S_UTQ}, s{S_FT}, s74")
    A(f"s_cmp_lt_i32 s{S_UTQ}, 0")
    A("s_cselect_b32 s64, 9, 0")
    A(f"s_add_u32 s{S_UTQ}, s{S_UTQ}, s64")
    A(f"s_cmp_ge_u32 s{S_FT}, 9")
    A(f"s_cselect_b32 s{S_UTQ}, 99, s{S_UTQ}")
    def dma_g1(q):
        base = (q % S) * STG
        A(f"s_mul_i32 s72, s74, {64*9216}")
        A("s_lshl_b32 s73, s74, 7")
        if q < 9: A("s_add_u32 s72, s72, 4608")
        for i in range(4):
            A(f"s_add_u32 m0, s68, {base + i*4096}")
            A(f"s_add_u32 s70, s72, {i*16*9216}")
            A.vm("buffer_load_dwordx4 v3, s[12:15], s70 offen lds")
            A(f"s_add_u32 m0, s68, {base + 18432 + i*4096}")
            A(f"s_add_u32 s71, s73, {i*32*1152}")
            A.vm("buffer_load_dwordx4 v2, s[8:11], s71 offen lds")
        A(f"s_add_u32 m0, s69, {base}")
        A("s_mov_b64 exec, 0xffffffff")
        ready[q] = A.vm("buffer_load_dwordx4 v4, s[12:15], s72 offen lds")
        A("s_mov_b64 exec, -1")
        A("s_add_u32 s74, s74, 1")
        A("s_cmp_eq_u32 s74, 9")
        A("s_cselect_b32 s74, 0, s74")
    def kst(cnt, dst):
        A(f"s_add_u32 s{dst}, s{cnt}, s{S_FT}")
        A(f"s_and_b32 s{dst}, s{dst}, 3")
        A(f"s_andn2_b32 s64, s{cnt}, 3")
        A(f"s_or_b32 s{dst}, s{dst}, s64")
        A(f"s_cmp_lt_u32 s{cnt}, {0 if 'noquad' in OPT else 28}")
        A(f"s_cselect_b32 s{dst}, s{dst}, s{cnt}")
        A(f"s_add_u32 s{dst}, s{dst}, s{S_K0}")
        A(f"s_and_b32 s{dst}, s{dst}, 31")
        A(f"s_add_u32 s{cnt}, s{cnt}, 1")
    def dma_g2_B(sb):
        kst(72, 66)
        A("s_lshl_b32 s66, s66, 7")
        for i in range(4):
            if isinstance(sb, str):
                A(f"s_add_u32 m0, s68, {sb}"); A(f"s_add_u32 m0, m0, {18432 + i*4096}")
            else:
                A(f"s_add_u32 m0, s68, {sb + 18432 + i*4096}")
            A(f"s_add_u32 s70, s66, {i*131072}")
            r = A.vm(f"buffer_load_dwordx4 v{VB}, s[16:19], s70 offen lds")
        return r
    def dma_g2_A(sb):
        kst(73, 66)
        A("s_mul_i32 s66, s66, 18432")
        A(f"s_add_u32 m0, s67, {sb}")
        A("s_add_u32 s70, s66, s67")
        for i in range(4):
            A.vm(f"buffer_load_dwordx4 v{VA}, s[20:23], s70 offen offset:{1024*i} sc1 lds")
        A(f"s_add_u32 m0, s69, {sb}")
        A("s_add_u32 s70, s66, s69")
        A("s_mov_b64 exec, 0xffffffff")
        r = A.vm(f"buffer_load_dwordx4 v{VA}, s[20:23], s70 offen sc1 lds")
        A("s_mov_b64 exec, -1")
        return r
    sl = lambda q: (q % S) * STG

    for q in range(NPRE): dma_g1(q)
    issued = NPRE
    A.stamp(2)
    A.wait_vm(ready[0]); A.bar("B0")
    A.stamp(3)
    if issued < 3: dma_g1(2); issued = 3
    late_ids(A)
    rowperm_voff(A, VB, 4096)
    A(f"v_lshlrev_b32 v{VA}, 4, v0")
    A(f"s_lshl_b32 s64, s{S_TT}, 19")
    psrd(A, 16, P_WSP, "s64", 128*4096)
    A(f"s_mul_i32 s64, s{S_FT}, {32*18432}")
    A(f"s_add_u32 s64, s64, {WS_Z2F}")
    psrd(A, 20, P_WS, "s64", 32*18432)
    A(f"s_lshl_b32 s67, s{S_W}, 12")
    A("v_and_b32 v5, 15, v0")
    A("v_lshrrev_b32 v6, 4, v0")
    A("v_lshrrev_b32 v7, 2, v5")
    A("v_lshl_add_u32 v8, v6, 2, v7")
    A("v_lshrrev_b32 v9, 1, v8")
    A("v_bfe_u32 v10, v0, 1, 1")
    A("v_xor_b32 v9, v9, v10")
    A("v_lshlrev_b32 v9, 4, v9")
    A("v_lshl_add_u32 v9, v8, 7, v9")
    A("v_and_b32 v10, 1, v0")
    A("v_lshl_add_u32 v9, v10, 3, v9")
    A(f"s_and_b32 s64, s{S_UTQ}, 3")
    A(f"s_mul_i32 s64, s64, {STG}")
    A("s_add_u32 s64, s64, s67")
    A("s_add_u32 s64, s64, 18432")
    A("v_add_u32 v13, s64, v9")
    A("v_lshlrev_b32 v14, 12, v5")
    A("v_lshl_add_u32 v14, v6, 4, v14")
    def ut_job(q):
        if "nout" in OPT: return
        A(f"s_cmp_lg_u32 s{S_UTQ}, {q}")
        A(f"s_cbranch_scc1 {n}_Lut{q}")
        A(f"s_getpc_b64 s[64:65]")
        A.label(f"{n}_Lpc{q}")
        A(f"s_add_u32 s64, s64, {n}_Lutf-{n}_Lpc{q}")
        A("s_addc_u32 s65, s65, 0")
        A("s_swappc_b64 s[70:71], s[64:65]")
        A.label(f"{n}_Lut{q}")
    ut_job(0)
    for q in range(18):
        if q + 1 < 18: A.wait_vm(ready[q+1])
        A.bar(f"M{q}")
        if "mstamp" in OPT and q < 8: A.stamp(4 + q)
        k = 0
        while issued < 18 and issued <= q + S and k < 2:
            dma_g1(issued); issued += 1; k += 1
        if q + 1 < 9: ut_job(q + 1)
        if q == 14:
            A("s_mov_b32 s72, -2")
            A("s_mov_b32 s73, 0")
            A(f"s_lshl_b32 s{S_K0}, s{S_TT}, 1")
            A(f"s_add_u32 s{S_K0}, s{S_K0}, 2")
            ln_stats_issue(A)
        if q >= 14 and q != 15: rB = dma_g2_B(sl(q + 4)); ready[q+4] = rB
        if q == 0:
            A(f"s_cmp_lg_u32 s{S_W}, 0")
            A(f"s_cbranch_scc1 {n}_Lns0")
            if "vatomic" in OPT:
                psrd(A, 4, P_DBG, None, 256)
                A("s_and_b32 s66, s2, 15")
                signal(A, "x", 0, 66, 5, 4); A.nvm -= 1
            else:
                A("s_and_b32 s66, s2, 15")
                A("s_lshl_b32 s66, s66, 2")
                A("s_mov_b32 s65, 1")
                A(f"s_atomic_add s65, s[{P_DBG}:{P_DBG+1}], s66")
            A.label(f"{n}_Lns0")
        if q == 5:
            A(f"s_cmp_ge_u32 s{S_FT}, 9")
            A(f"s_cbranch_scc1 {n}_Lnp")
            A.vshift = 0
            ssm.kgen_load(A, S_CH)
            A.vshift = 190
            A(f"s_mul_i32 s{S_KS}, s{S_W}, {ssm.RSZ}")
            A(f"s_add_u32 s{S_KS}, s{S_KS}, {ssm.R0_BASE}")
            A(f"s_add_u32 s{S_KR}, s{S_KS}, {ssm.R0_OFF}")
            A.label(f"{n}_Lnp")
        if q == 7:
            gate_issue(A)
        if q == 8:
            kchunk(0)
            wot_jobs(A)
            gate_job(A)
            A.stamp(8)
        if q == 10:
            psrd(A, 4, P_DBG, None, 256)
            A("v_and_b32 v5, 15, v0")
            A("v_lshlrev_b32 v5, 2, v5")
            r_init = A.vm("buffer_load_dword v6, v5, s[4:7], 0 offen sc1")
        if q == 11:
            A.wait_vm(r_init)
            A("v_cmp_le_u32 vcc, 16, v6")
            A("s_nop 0")
            A("s_cmp_eq_u32 vcc_lo, -1")
            A(f"s_cbranch_scc1 {n}_Li_ok")
            init_wait(A, f"{n}_Li", 5, 4)
        if q == 12:
            A(f"s_cmp_lg_u32 s{S_W}, 0")
            A(f"s_cbranch_scc1 {n}_Lnw")
            A(f"s_sub_u32 s65, s{S_CH}, 576")
            A("s_lshr_b32 s65, s65, 2")
            A("s_cmp_ge_u32 s65, 72")
            A(f"s_cbranch_scc1 {n}_Lnw")
            A("s_mul_i32 s66, s65, 57")
            A("s_lshr_b32 s66, s66, 9")
            A("s_mul_i32 s70, s66, 9")
            A("s_sub_u32 s70, s65, s70")
            psrd(A, 4, P_WS, WS_MB, 4*32768)
            mb_push(A, MB_WF, 32, ["v_lshlrev_b32 v10, 3, v0", "v_add_u32 v10, s66, v10"], 70, 10, 4)
            A.label(f"{n}_Lnw")
        if q == 15:
            A.stamp(4)
            ln_stats(A)
            ready[19] = dma_g2_B(sl(19))
            A.stamp(5)
    kchunk(1)
    psrd(A, 8, P_WS, WS_MB, 4*32768)
    mb_wait(A, f"{n}_Lw", MB_WF, S_O3, 9, 10, 8)
    A.stamp(6)
    A.bar("PUB1")
    kchunk(2)
    A.stamp(11)
    A.bar("G2S")
    A.bar("N18")
    mb_wait(A, f"{n}_Lz2", MB_Z2, S_O1, 16, 10, 8)
    A.stamp(7)
    ready[20] = dma_g2_A(sl(20)); ready[21] = dma_g2_A(sl(21))
    dma_g2_B(sl(22)); ready[22] = dma_g2_A(sl(22))
    kchunk(3)
    A.wait_vm(ready[20]); A.bar("N19")
    dma_g2_B(sl(23)); ready[23] = dma_g2_A(sl(23))
    A.wait_vm(ready[21]); A.bar("N20")
    dma_g2_B(sl(24)); ready[24] = dma_g2_A(sl(24))
    A(f"s_mov_b32 s74, {sl(25)}")
    A("s_mov_b32 s71, 25")
    def service():
        A("s_waitcnt vmcnt(18)")
        A("s_barrier")
        dma_g2_B("s74"); dma_g2_A("s74")
        A(f"s_add_u32 s74, s74, {STG}")
        A(f"s_cmp_eq_u32 s74, {S*STG}")
        A("s_cselect_b32 s74, 0, s74")
        A("s_sub_u32 s71, s71, 1")
    A.label(f"{n}_Lg2")
    service()
    A("s_cmp_lg_u32 s71, 0")
    A(f"s_cbranch_scc1 {n}_Lg2")
    for q in range(21, 46): A.bars.append(f"N{q}")
    A("s_waitcnt vmcnt(18)"); A.bar("N46")
    g3_main(A)
    if diag:
        A.stamp(12, True)
        stamp_dump(A, f"{n}_Ld", 1)
    A("s_endpgm")
    A.vshift = 190
    A.label(f"{n}_Lutf")
    for cb in range(4):
        A(f"v_xor_b32 v15, {32*cb}, v13")
        for a in range(2):
            A(f"ds_read_b64_tr_b16 {vr(16+4*cb+2*a,2)}, v15 offset:{a*2048}")
    A(f"s_lshl_b32 s64, s{S_FT}, 18")
    A(f"s_lshl_b32 s65, s{S_TT}, 8")
    A("s_add_u32 s64, s64, s65")
    A(f"s_lshl_b32 s65, s{S_W}, 6")
    A("s_add_u32 s64, s64, s65")
    A(f"s_add_u32 s64, s64, {WS_UT}")
    psrd(A, 4, P_WS, "s64", 63*4096 + 64)
    A("s_waitcnt lgkmcnt(0)")
    for cb in range(4):
        A(f"s_mov_b32 s64, {cb*65536}")
        A(f"buffer_store_dwordx4 {vr(16+4*cb,4)}, v14, s[4:7], s64 offen sc1")
    A("s_setpc_b64 s[70:71]")

def ln_loads(A, T=16):
    for j in range(8):
        A(f"buffer_load_dwordx2 {vr(T+2*j,2)}, v7, s[4:7], {'s74' if j < 4 else 's71'} offen offset:{(j&3)*1024} sc1")

def ln_stats_issue(A):
    A(f"s_lshl_b32 s65, s{S_TT}, 14")
    A(f"s_add_u32 s65, s65, {WS_ST}")
    psrd(A, 4, P_WS, "s65", 16384)
    A("v_and_b32 v6, 31, v0")
    A("v_lshlrev_b32 v6, 3, v6")
    A("v_lshrrev_b32 v7, 5, v0")
    A("v_lshl_add_u32 v7, v7, 13, v6")
    A(f"s_lshl_b32 s74, s{S_W}, 8")
    A("s_add_u32 s71, s74, 4096")
    ln_loads(A); A.nvm += 8

def ln_stats(A):
    T = 16
    A("s_mov_b32 s65, 0")
    A("s_waitcnt vmcnt(4)")
    A(f"s_branch {n}_Lst_chk")
    A.label(f"{n}_Lst_poll")
    ln_loads(A)
    A("s_waitcnt vmcnt(0)")
    A.label(f"{n}_Lst_chk")
    A(f"v_max_u32 v8, v{T}, v{T+1}")
    for j in range(1, 8): A(f"v_max3_u32 v8, v8, v{T+2*j}, v{T+2*j+1}")
    A("v_cmp_eq_u32 vcc, -1, v8")
    A("s_add_u32 s65, s65, 1")
    A("s_cmp_eq_u64 vcc, 0")
    A(f"s_cbranch_scc1 {n}_Lst_ok")
    A("s_sleep 4")
    A("s_cmp_lt_u32 s65, 50000")
    A(f"s_cbranch_scc1 {n}_Lst_poll")
    A.label(f"{n}_Lst_ok")
    A(f"s_add_u32 s74, s74, {LDS_X}")
    A("v_add_u32 v6, s74, v6")
    for stp in (4, 2, 1):
        for j in range(stp):
            A(f"v_add_f32 v{T+2*j}, v{T+2*j}, v{T+2*(j+stp)}")
            A(f"v_add_f32 v{T+2*j+1}, v{T+2*j+1}, v{T+2*(j+stp)+1}")
    A(f"v_mov_b32 v{T+2}, v{T}")
    A(f"v_mov_b32 v{T+3}, v{T+1}")
    A("s_nop 1")
    A(f"v_permlane32_swap_b32 v{T}, v{T+2}")
    A(f"v_permlane32_swap_b32 v{T+1}, v{T+3}")
    A("s_nop 1")
    A(f"v_add_f32 v{T}, v{T}, v{T+2}")
    A(f"v_add_f32 v{T+1}, v{T+1}, v{T+3}")
    A(f"v_mul_f32 v{T}, {f32(1/2304)}, v{T}")
    A(f"v_mul_f32 v{T+1}, {f32(1/2304)}, v{T+1}")
    A(f"v_fma_f32 v{T+1}, -v{T}, v{T}, v{T+1}")
    A(f"v_max_f32 v{T+1}, 0, v{T+1}")
    bf16_round(A, T); bf16_round(A, T+1)
    A(f"v_add_f32 v{T+1}, {f32(1e-5)}, v{T+1}")
    bf16_round(A, T+1)
    A(f"v_sqrt_f32 v{T+1}, v{T+1}")
    A("s_nop 0")
    bf16_round(A, T+1)
    A(f"v_rcp_f32 v{T+2}, v{T+1}")
    A("s_nop 0")
    A(f"v_mul_f32 v{T+3}, v{T}, v{T+2}")
    A(f"v_sub_f32 v{T+3}, 0, v{T+3}")
    A(f"ds_write_b64 v6, {vr(T+2,2)}")
    A("s_waitcnt lgkmcnt(0)")

def gate_issue(A):
    psrd(A, 4, P_U, None, 2048*1152)
    A(f"s_lshl_b32 s64, s{S_O1}, 3")
    A(f"s_lshl_b32 s65, s{S_W}, 1")
    A("s_add_u32 s64, s64, s65")
    A("v_lshrrev_b32 v45, 5, v0")
    A("v_add_u32 v45, s64, v45")
    A("v_and_b32 v6, 31, v0")
    A("v_lshlrev_b32 v6, 2, v6")
    A("v_mul_u32_u24 v7, 1152, v45")
    A("v_add_u32 v7, v7, v6")
    for i in range(9): A.vm(f"buffer_load_dword v{46+i}, v7, s[4:7], 0 offen offset:{128*i}")
    psrd(A, 4, P_GATE, None, 1152)
    for i in range(9): A.vm(f"buffer_load_dword v{176+i}, v6, s[4:7], 0 offen offset:{128*i}")
    wot_issue(A)

def gate_job(A):
    A("v_mov_b32 v8, 0")
    for i in range(9):
        A(f"v_lshlrev_b32 v36, 16, v{46+i}")
        A(f"v_and_b32 v37, 0xffff0000, v{46+i}")
        A(f"v_lshlrev_b32 v38, 16, v{176+i}")
        A(f"v_and_b32 v39, 0xffff0000, v{176+i}")
        A("v_mul_f32 v36, v36, v38")
        A("v_mul_f32 v37, v37, v39")
        A("v_cvt_pk_bf16_f32 v36, v36, v37")
        A("v_and_b32 v37, 0xffff0000, v36")
        A("v_lshlrev_b32 v36, 16, v36")
        A("v_add_f32 v8, v8, v37")
        A("v_add_f32 v8, v8, v36")
    for rot in (8, 4, 2, 1):
        A("s_nop 1")
        A(f"v_add_f32_dpp v8, v8, v8 row_ror:{rot} row_mask:0xf bank_mask:0xf")
    A("v_mov_b32 v9, v8")
    A("s_nop 1")
    A("v_permlane16_swap_b32 v8, v9")
    A("s_nop 1")
    A("v_add_f32 v8, v8, v9")
    bf16_round(A, 8)
    A(f"v_mul_f32 v8, {f32(-LOG2E)}, v8")
    A("v_exp_f32 v8, v8")
    A("s_nop 0")
    A("v_add_f32 v8, 1.0, v8")
    A("v_rcp_f32 v8, v8")
    A("s_nop 0")
    bf16_round(A, 8)
    A("v_sub_f32 v9, 1.0, v8")
    bf16_round(A, 9)
    psrd(A, 4, P_WS, WS_G, 2048*8)
    A("v_lshlrev_b32 v5, 3, v45")
    set_exec(A, 1, 1)
    A("buffer_store_dwordx2 v[8:9], v5, s[4:7], 0 offen sc1")
    A("s_mov_b64 exec, -1")

def wot_issue(A):
    for i in range(5):
        A(f"v_add_u32 v8, {64*i}, v0")
        A("v_mul_u32_u24 v9, 7282, v8")
        A("v_lshrrev_b32 v9, 16, v9")
        A("v_mul_u32_u24 v10, 9, v9")
        A("v_sub_u32 v10, v8, v10")
        A("v_mul_u32_u24 v9, 1152, v9")
        A(f"v_lshl_add_u32 v{40+i}, v10, 4, v9")
    A(f"s_sub_u32 s65, s{S_CH}, 576")
    A("s_lshr_b32 s1, s65, 2")
    A("s_cmp_ge_u32 s1, 72")
    A(f"s_cbranch_scc1 {n}_sj1")
    A("s_mul_i32 s64, s1, 57")
    A("s_lshr_b32 s64, s64, 9")
    A("s_mul_i32 s66, s64, 9")
    A("s_sub_u32 s66, s1, s66")
    A("s_lshl_b32 s66, s66, 2")
    A(f"s_add_u32 s66, s66, s{S_W}")
    A("s_lshl_b32 s66, s66, 1")
    A("s_mul_i32 s24, s64, 72")
    A("s_add_u32 s24, s24, s66")
    A(f"s_mul_i32 s0, s66, {32*1152}")
    A("s_mul_i32 s64, s64, 144")
    A("s_add_u32 s0, s0, s64")
    A(f"s_mul_i32 s31, s{S_W}, 5120")
    A(f"s_add_u32 s31, s31, {LDS_X + 1024}")
    psrd(A, 4, P_WOUT, None, 2304*1152)
    wot_dma(A)
    A.label(f"{n}_sj1")

def wot_dma(A):
    for i in range(5):
        A(f"s_add_u32 m0, s31, {1024*i}")
        A("s_mov_b64 exec, 0xffffffff" if i == 4 else "s_nop 0")
        A(f"buffer_load_dwordx4 v{40+i}, s[4:7], s0 offen lds")
    A("s_mov_b64 exec, -1")

def wot_jobs(A):
    A("s_waitcnt vmcnt(9)")
    A("s_cmp_ge_u32 s1, 72")
    A(f"s_cbranch_scc1 {n}_sj2")
    A("v_lshrrev_b32 v5, 2, v0")
    A("v_mul_u32_u24 v5, 144, v5")
    A("v_and_b32 v6, 3, v0")
    A("v_lshl_add_u32 v7, v6, 4, v5")
    A("v_add_u32 v7, s31, v7")
    A("v_lshl_add_u32 v8, v6, 3, v5")
    A("v_add_u32 v8, s31, v8")
    A("v_lshlrev_b32 v9, 4, v0")
    A("v_and_b32 v10, 7, v0")
    A("v_lshrrev_b32 v13, 4, v0")
    A("v_lshl_add_u32 v10, v13, 3, v10")
    A("v_lshlrev_b32 v10, 4, v10")
    A("v_add_u32 v10, 4096, v10")
    for u in range(2):
        for q in range(5):
            for h in range(2):
                if q < 4: A(f"ds_read_b64_tr_b16 {vr(16+4*q+2*h,2)}, v7 offset:{h*16*144 + 64*(q>>1) + 8*(q&1)}")
                else:     A(f"ds_read_b64_tr_b16 {vr(16+4*q+2*h,2)}, v8 offset:{h*16*144 + 128}")
        A("s_waitcnt lgkmcnt(0)")
        if u == 0:
            psrd(A, 4, P_WOUT, None, 2304*1152)
            A(f"s_add_u32 s0, s0, {32*1152}")
            wot_dma(A)
        A("s_mul_i32 s64, s24, 4608")
        A(f"s_add_u32 s64, s64, {WS_WOT + u*4608}")
        psrd(A, 4, P_WS, "s64", 4608)
        for q in range(4):
            A(f"buffer_store_dwordx4 {vr(16+4*q,4)}, v9, s[4:7], 0 offen offset:{1024*q} sc1")
        set_exec(A, 0x00ff00ff, 0x00ff00ff)
        A(f"buffer_store_dwordx4 {vr(32,4)}, v10, s[4:7], 0 offen sc1")
        A("s_mov_b64 exec, -1")
        if u == 0: A("s_waitcnt vmcnt(5)")
    A.label(f"{n}_sj2")

def sinit_wait(A, lbl):
    A("s_mov_b32 s64, 0")
    A.label(f"{lbl}_poll")
    A(f"s_load_dwordx4 s[4:7], s[{P_DBG}:{P_DBG+1}], 0 glc")
    A("s_waitcnt lgkmcnt(0)")
    for i in range(1, 4): A(f"s_min_u32 s4, s4, s{4+i}")
    A("s_add_u32 s64, s64, 1")
    A("s_cmp_ge_u32 s4, 64")
    A(f"s_cbranch_scc1 {lbl}_ok")
    A("s_sleep 16")
    A("s_cmp_lt_u32 s64, 20000")
    A(f"s_cbranch_scc1 {lbl}_poll")
    A.label(f"{lbl}_ok")

def gen_C(A, diag):
    A.label(f"{n}_C")
    ACC2 = 16; Z2P = 16; ACC1 = 52
    SET = [124, 168]
    RX = 212; RW = 214; RWT = 222; VC1 = 15; SUM = 224; Z1P = 216
    if "noprio" not in OPT: A("s_setprio 2")
    psrd(A, 20, P_WS, WS_MB, 4*32768)
    def clears(tag):
        A(f"s_cmp_lg_u32 s{S_W}, 0")
        A(f"s_cbranch_scc1 {n}_Cni{tag}")
        A.vshift = 184
        A("v_lshrrev_b32 v2, 3, v0")
        A("v_and_b32 v3, 7, v0")
        A("v_lshlrev_b32 v3, 4, v3")
        A("v_lshl_add_u32 v3, v2, 15, v3")
        A(f"v_mov_b32 v4, s{S_O3}")
        A(f"v_mov_b32 v5, s{S_O1}")
        A("v_cmp_eq_u32 vcc, 0, v2")
        A("s_nop 1")
        A("v_cndmask_b32 v4, v4, v5, vcc")
        A("v_lshl_add_u32 v3, v4, 7, v3")
        for i in range(4): A(f"v_mov_b32 v{4+i}, 0")
        A("s_mov_b64 exec, 0xffffffff")
        A("buffer_store_dwordx4 v[4:7], v3, s[20:23], 0 offen sc1")
        A("s_mov_b64 exec, -1")
        A(f"s_lshl_b32 s64, s{S_O1}, 10")
        A(f"s_add_u32 s64, s64, {WS_ST}")
        psrd(A, 4, P_WS, "s64", 1024)
        for i in range(4): A(f"v_mov_b32 v{8+i}, -1")
        A("v_lshlrev_b32 v1, 4, v0")
        A("buffer_store_dwordx4 v[8:11], v1, s[4:7], 0 offen sc1")
        A.vshift = 0
        A.label(f"{n}_Cni{tag}")
    A(f"s_cmp_ge_u32 s{S_FT}, 9")
    A(f"s_cbranch_scc1 {n}_Cnp")
    if "sstamp" in OPT: A.stamp(9)
    A(f"s_mul_i32 s1, s{S_W}, {ssm.RSZ}")
    A(f"s_add_u32 s1, s1, {ssm.R0_BASE}")
    A(f"s_add_u32 s{S_R0}, s1, {ssm.R0_OFF}")
    A("s_waitcnt vmcnt(0)")
    if "sstamp" in OPT: A.stamp(10)
    clears("a")
    ssm.kgen(A, 1, S_R0, 0, True)
    if "sstamp" in OPT: A.stamp(11); A.used = {9, 10, 11}
    A(f"s_branch {n}_Cnk")
    A.label(f"{n}_Cnp")
    clears("b")
    A("s_waitcnt vmcnt(0)")
    A(f"s_sub_u32 s67, s{S_CH}, 576")
    A("s_cmp_ge_u32 s67, 324")
    A(f"s_cbranch_scc1 {n}_Cnk")
    A("s_lshl_b32 s64, s67, 6")
    A("v_add_u32 v2, s64, v0")
    A("v_mul_u32_u24 v3, 3641, v2")
    A("v_lshrrev_b32 v3, 17, v3")
    A("v_mul_u32_u24 v4, 36, v3")
    A("v_add_u32 v4, v4, v2")
    A("v_lshlrev_b32 v4, 7, v4")
    A("v_lshlrev_b32 v2, 7, v2")
    if "touch1" in OPT:
        psrd(A, 4, P_WIN, None, 576*9216)
        A("buffer_load_dword v244, v4, s[4:7], 0 offen")
        psrd(A, 4, P_WOUT, None, 2304*1152)
        A("buffer_load_dword v245, v2, s[4:7], 0 offen")
    A.label(f"{n}_Cnk")
    A("v_and_b32 v5, 15, v0")
    A("v_lshrrev_b32 v6, 4, v0")
    A("v_lshrrev_b32 v7, 1, v5")
    A("v_xor_b32 v7, v7, v6")
    A("v_lshlrev_b32 v7, 4, v7")
    A("v_lshl_add_u32 v7, v5, 7, v7")
    A(f"s_lshl_b32 s64, s{S_W}, 12")
    A("s_add_u32 s64, s64, 18432")
    A(f"v_add_u32 v{RX}, s64, v7")
    A(f"v_xor_b32 v{RX+1}, 64, v{RX}")
    A(f"v_mov_b32 v14, v{RX}")
    A("v_and_b32 v2, 1, v6")
    A("v_lshrrev_b32 v3, 2, v5")
    A("v_lshl_add_u32 v2, v2, 2, v3")
    A("v_lshrrev_b32 v3, 1, v6")
    A("v_lshl_add_u32 v3, v3, 4, v2")
    A("v_and_b32 v4, 3, v5")
    A("v_lshlrev_b32 v4, 3, v4")
    A("v_lshl_add_u32 v7, v3, 8, v4")
    A("v_lshl_add_u32 v7, v2, 5, v7")
    for b in range(8): A(f"v_xor_b32 v{RW+b}, {32*b}, v7")
    A("v_lshl_add_u32 v7, v3, 5, v4")
    A(f"v_add_u32 v{RWT}, 16384, v7")
    A(f"v_mov_b32 v{VC1}, {f32(GC1)}")
    for r in range(72): A(f"v_mov_b32 v{ACC2+r}, 0")
    A("s_mov_b32 s68, 0")
    A(f"s_mov_b32 s69, {STG}")
    def g1_reads(setid, ks):
        b = SET[setid]
        X = lambda a: [f"ds_read_b128 {vr(b+4*a,4)}, v{RX+ks} offset:{a*2048}"]
        def W(t, h):
            if t < 8: return [f"ds_read_b64_tr_b16 {vr(b+8+4*t+2*h,2)}, v{RW+t} offset:{ks*8192+h*2048}"]
            return [f"ds_read_b64_tr_b16 {vr(b+8+4*t+2*h,2)}, v{RWT} offset:{ks*1024+h*256}"]
        out = [X(0), W(0,0), W(0,1), X(1)]
        for t in range(1, 9): out += [W(t,0), W(t,1)]
        return out
    def g1_mfmas(setid, half):
        b = SET[setid]
        out = []
        for t in range(9):
            for a in range(2):
                c = (ACC2 if half == 0 else ACC1) + (t*2+a)*4
                x = vr(b+4*a,4); w = vr(b+8+4*t,4)
                out.append(f"v_mfma_f32_16x16x32_bf16 {vr(c,4)}, {x}, {w}, {vr(c,4)}" if half == 0 else
                           f"v_mfma_f32_16x16x32_bf16 {vr(c,4)}, {w}, {x}, {vr(c,4)}")
        return out
    def advance(regs):
        o = [["s_add_u32 s68, s68, 1", "s_and_b32 s68, s68, 3"], [f"s_cselect_b32 s70, s69, {-3*STG}"]]
        return o + [[f"v_add_u32 v{r}, s70, v{r}"] for r in regs]
    def g1_loop(half):
        A("s_mov_b32 s71, 3")
        A.raw(".p2align 6")
        A.label(f"{n}_g1{half}")
        for u in range(3):
            A("s_waitcnt lgkmcnt(0)")
            A(interleave(g1_mfmas(0, half), g1_reads(1, 1) + advance(range(RX, RWT+1)), per=2))
            A("s_waitcnt lgkmcnt(0)")
            A("s_barrier")
            A(interleave(g1_mfmas(1, half), g1_reads(0, 0), per=2))
        A("s_sub_u32 s71, s71, 1")
        A("s_cmp_lg_u32 s71, 0")
        A(f"s_cbranch_scc1 {n}_g1{half}")
        for q in range(9): A.bars.append(f"M{9*half+q}")
    A(f"s_cmp_ge_u32 s{S_FT}, 9")
    A(f"s_cbranch_scc1 {n}_Cnw0")
    A("s_waitcnt vmcnt(0)")
    A.label(f"{n}_Cnw0")
    A.bar("B0")
    A.stamp(2)
    for g in g1_reads(0, 0): A(g)
    g1_loop(0)
    A.stamp(3)
    A("v_lshlrev_b32 v1, 7, v0")
    T = SET[1]
    for i in range(16): A(f"v_mov_b32 v{SUM+i}, 0")
    for t in range(9):
        regs = [ACC2 + 8*t + i for i in range(8)]
        A(gelu_ops(regs, T, VC1))
        for i in range(8): A(f"v_add_f32 v{SUM+2*i}, v{SUM+2*i}, v{regs[i]}")
        for i in range(8): A(f"v_fmac_f32 v{SUM+2*i+1}, v{regs[i]}, v{regs[i]}")
        for j in range(4): A(f"v_cvt_pk_bf16_f32 v{Z2P+4*t+j}, v{regs[2*j]}, v{regs[2*j+1]}")
        if t == 5: touch(A, P_WSP, 2048*4096, S_CW, 12, f"{n}_t3")
    for rot in (8, 4, 2, 1):
        for i in range(16):
            A(f"v_add_f32_dpp v{SUM+i}, v{SUM+i}, v{SUM+i} row_ror:{rot} row_mask:0xf bank_mask:0xf")
    A(f"s_lshl_b32 s64, s{S_O1}, 10")
    A(f"s_add_u32 s64, s64, {WS_ST}")
    psrd(A, 4, P_WS, "s64", 1024)
    A("v_lshrrev_b32 v6, 4, v0")
    A("v_lshlrev_b32 v6, 6, v6")
    A(f"s_lshl_b32 s65, s{S_W}, 8")
    A("v_add_u32 v6, s65, v6")
    set_exec(A, 0x00010001, 0x00010001)
    for i in range(4):
        A(f"buffer_store_dwordx4 {vr(SUM+4*i,4)}, v6, s[4:7], 0 offen offset:{16*i} sc1")
    A("s_mov_b64 exec, -1")
    for r in range(72): A(f"v_mov_b32 v{ACC1+r}, 0")
    A.stamp(4)
    g1_loop(1)
    A.stamp(5)
    SC = SET[0]
    A(f"s_add_u32 s65, s65, {LDS_X}")
    A("v_lshrrev_b32 v7, 4, v0")
    A("v_lshlrev_b32 v7, 6, v7")
    A("v_add_u32 v7, s65, v7")
    A("s_waitcnt lgkmcnt(0)")
    for i in range(4): A(f"ds_read_b128 {vr(SC+4*i,4)}, v7 offset:{16*i}")
    A(f"s_lshl_b32 s64, s{S_FT}, 5")
    A(f"s_lshl_b32 s66, s{S_TT}, 1")
    A("s_add_u32 s64, s64, s66")
    A("s_mul_i32 s64, s64, 18432")
    A(f"s_mul_i32 s66, s{S_W}, 9216")
    A("s_add_u32 s64, s64, s66")
    A(f"s_add_u32 s64, s64, {WS_Z2F}")
    psrd(A, 4, P_WS, "s64", 9216)
    A("v_lshlrev_b32 v6, 4, v0")
    A(f"s_lshr_b32 s64, s{S_W}, 1")
    A(f"s_mul_i32 s64, s64, {STG}")
    A(f"s_and_b32 s66, s{S_W}, 1")
    A("s_mul_i32 s66, s66, 9216")
    A("s_add_u32 s64, s64, s66")
    A(f"s_add_u32 s64, s64, {(18 % S)*STG}")
    A("v_add_u32 v7, s64, v6")
    A("s_movk_i32 s65, 4096")
    A("s_movk_i32 s66, 8192")
    A("s_waitcnt lgkmcnt(0)")
    for t in range(9):
        tb = T + 8*(t & 1)
        for j in range(4):
            A(f"v_lshlrev_b32 v{tb+2*j}, 16, v{Z2P+4*t+j}")
            A(f"v_and_b32 v{tb+2*j+1}, 0xffff0000, v{Z2P+4*t+j}")
        for i in range(8): A(f"v_fma_f32 v{tb+i}, v{tb+i}, v{SC+2*i}, v{SC+2*i+1}")
        for j in range(4): A(f"v_cvt_pk_bf16_f32 v{Z2P+4*t+j}, v{tb+2*j}, v{tb+2*j+1}")
        so = ["0", "s65", "s66"][t >> 2]
        A(f"buffer_store_dwordx4 {vr(Z2P+4*t,4)}, v6, s[4:7], {so} offen offset:{(t&3)*1024} sc1")
        A(f"ds_write_b128 v7, {vr(Z2P+4*t,4)} offset:{t*1024}")
    A.stamp(6)
    A("v_and_b32 v5, 15, v0")
    A("v_lshrrev_b32 v8, 2, v5")
    A("v_lshlrev_b32 v8, 3, v8")
    A("v_and_b32 v9, 3, v5")
    A("v_add_u32 v8, v8, v9")
    A(f"s_lshl_b32 s64, s{S_W}, 5")
    A("v_add_u32 v8, s64, v8")
    A("v_lshlrev_b32 v11, 1, v8")
    A(f"s_lshl_b32 s64, s{S_TT}, 8")
    psrd(A, 4, P_BSP, "s64", 256)
    A("buffer_load_ushort v12, v11, s[4:7], 0 offen")
    A("buffer_load_ushort v13, v11, s[4:7], 0 offen offset:8")
    for t in range(9):
        regs = [ACC1 + 8*t + i for i in range(8)]
        A(gelu_ops(regs, T, VC1))
        for nb in range(2):
            for j in range(2):
                dst = Z1P + ((nb*4 + (t >> 1))*4 + (t & 1)*2 + j if t < 8 else 32 + nb*2 + j)
                A(f"v_cvt_pk_bf16_f32 v{dst}, v{regs[4*nb+2*j]}, v{regs[4*nb+2*j+1]}")
        if t == 4:
            A("s_waitcnt vmcnt(0)")
            A.bar("PUB1")
            A(f"s_cmp_lg_u32 s{S_W}, 0")
            A(f"s_cbranch_scc1 {n}_Cns1")
            mb_push(A, MB_Z2, 16, ["v_lshlrev_b32 v6, 4, v0", f"v_add_u32 v6, s{S_FT}, v6"], S_TT, 6, 20)
            A.label(f"{n}_Cns1")
            A.stamp(7)
    ACC = 16; SET2 = [88, 132]; RA = 176; RB = 180
    A("v_lshlrev_b32 v10, 4, v0")
    for st in range(S):
        A(f"v_add_u32 v{RA+st}, {st*STG}, v10")
        A(f"v_add_u32 v{RB+2*st}, {st*STG}, v14")
        A(f"v_xor_b32 v{RB+2*st+1}, 64, v{RB+2*st}")
    A(f"s_lshl_b32 s64, s{S_TT}, 1")
    A(f"s_lshr_b32 s65, s{S_W}, 1")
    A("s_add_u32 s64, s64, s65")
    A(f"s_mul_i32 s64, s64, {72*4096}")
    A(f"s_and_b32 s65, s{S_W}, 1")
    A("s_lshl_b32 s65, s65, 11")
    A("s_add_u32 s64, s64, s65")
    A(f"s_add_u32 s64, s64, {WS_HF}")
    psrd(A, 16, P_WS, "s64", 72*4096)
    if "pretouch" in OPT:
        A(f"s_lshl_b32 s70, s{S_FT}, 14")
        A("v_lshlrev_b32 v9, 8, v0")
        A("v_and_b32 v9, 0x37ff, v9")
        A("buffer_load_dword v253, v9, s[16:19], s70 offen sc1")
    A("v_lshlrev_b32 v12, 16, v12")
    A("v_lshlrev_b32 v13, 16, v13")
    for a in range(9):
        for nb in range(2):
            for r in range(4): A(f"v_mov_b32 v{ACC+(a*2+nb)*4+r}, v{12+nb}")
    def g2_reads(setid, slot, ks):
        b = SET2[setid]
        out = []
        for kind, i in [("B", 0), ("A", 0), ("B", 1)] + [("A", a) for a in range(1, 9)]:
            if kind == "B": out.append([f"ds_read_b128 {vr(b+4*i,4)}, v{RB+2*slot+ks} offset:{i*2048}"])
            else:           out.append([f"ds_read_b128 {vr(b+8+4*i,4)}, v{RA+slot} offset:{(ks*9+i)*1024}"])
        return out
    def g2_mfmas(setid):
        b = SET2[setid]
        return [f"v_mfma_f32_16x16x32_bf16 {vr(ACC+(a*2+nb)*4,4)}, {vr(b+8+4*a,4)}, {vr(b+4*nb,4)}, {vr(ACC+(a*2+nb)*4,4)}"
                for a in range(9) for nb in range(2)]
    A("s_waitcnt lgkmcnt(0)")
    A.bar("G2S")
    A.stamp(8)
    for g in g2_reads(0, 18 % S, 0): A(g)
    A("s_mov_b32 s71, 8")
    A.raw(".p2align 6")
    A.label(f"{n}_g2")
    for rep in range(8 if "nstamp" in OPT else 1):
        if "nstamp" in OPT: A(f"s_memtime s[{80+2*rep}:{81+2*rep}]")
        for u in range(4):
            slot = (18 + u) % S
            A("s_waitcnt lgkmcnt(0)")
            A(interleave(g2_mfmas(0), g2_reads(1, slot, 1)))
            A("s_waitcnt lgkmcnt(0)")
            A("s_barrier")
            A(interleave(g2_mfmas(1), g2_reads(0, (slot+1) % S, 0)))
    if "nstamp" in OPT:
        A("s_memtime s[96:97]"); A.diag = False
    else:
        A("s_sub_u32 s71, s71, 1")
        A("s_cmp_lg_u32 s71, 0")
        A(f"s_cbranch_scc1 {n}_g2")
    for q in range(18, 50): A.bars.append(f"N{q}")
    A.stamp(9)
    A(f"s_lshl_b32 s70, s{S_FT}, 14")
    for i in range(1, 4): A(f"s_add_u32 s{70+i}, s70, {4096*i}")
    A(f"s_lshr_b32 s64, s{S_FT}, 1")
    A("s_lshl_b32 s64, s64, 12")
    A(f"s_and_b32 s65, s{S_FT}, 1")
    A("s_lshl_b32 s65, s65, 3")
    A("s_add_u32 s64, s64, s65")
    A(f"s_add_u32 s64, s64, {64*4096}")
    A("s_waitcnt lgkmcnt(0)")
    T2 = SET2[0]
    cnt = 0
    for j in range(9):
        for i in range(4):
            if j < 8: nb, a, rr = j >> 2, 2*(j & 3) + (i >> 1), 2*(i & 1)
            else:     nb, a, rr = i >> 1, 8, 2*(i & 1)
            c = ACC + (a*2+nb)*4 + rr
            t0 = T2 + 2*(cnt % 8); cnt += 1
            z = Z1P + 4*j + i
            A(f"v_lshlrev_b32 v{t0}, 16, v{z}")
            A(f"v_and_b32 v{t0+1}, 0xffff0000, v{z}")
            A(f"v_mul_f32 v{t0}, v{t0}, v{c}")
            A(f"v_mul_f32 v{t0+1}, v{t0+1}, v{c+1}")
            A(f"v_cvt_pk_bf16_f32 v{z}, v{t0}, v{t0+1}")
        if j < 8:
            A(f"buffer_store_dwordx4 {vr(Z1P+4*j,4)}, v10, s[16:19], s{70+(j&3)} offen offset:{(j>>2)*1024} sc1")
        else:
            for nb in range(2):
                A(f"buffer_store_dwordx2 {vr(Z1P+32+2*nb,2)}, v10, s[16:19], s64 offen offset:{nb*1024} sc1")
    A.bar("EPI")
    if "estamp" in OPT: A.stamp(2)
    def pub2(tag):
        if "estamp" in OPT: A.stamp(3)
        A("s_waitcnt vmcnt(0)")
        if "estamp" in OPT: A.stamp(4)
        A("s_barrier")
        if "estamp" in OPT: A.stamp(5)
        A(f"s_cmp_lg_u32 s{S_W}, 0")
        A(f"s_cbranch_scc1 {n}_Cns2{tag}")
        mb_push(A, MB_H, 16, [f"s_lshl_b32 s64, s{S_TT}, 4", "v_add_u32 v6, s64, v0"], S_FT, 6, 20)
        A.label(f"{n}_Cns2{tag}")
    A(f"s_cmp_ge_u32 s{S_FT}, 9")
    A(f"s_cbranch_scc1 {n}_Cnc")
    A(f"s_mul_i32 s64, s{S_W}, {ssm.RSZ}")
    A(f"s_add_u32 s72, s64, {ssm.R0_BASE + ssm.R0_OFF}")
    A(f"s_add_u32 s73, s64, {R1_BASE}")
    A(f"s_mul_i32 s74, s{S_W}, {ssm.USZ}")
    A(f"s_add_u32 s74, s74, {U_BASE}")
    ssm.r1_build(A, 72, 73, 16)
    A("v_mov_b32 v6, 0"); A("v_mov_b32 v7, 0")
    A("v_lshlrev_b32 v8, 3, v0")
    A("v_add_u32 v8, s74, v8")
    set_exec(A, -1, 0x0fffffff)
    A("ds_write_b64 v8, v[6:7]")
    A("s_mov_b64 exec, -1")
    ssm.conv(A, 72, 73, 74, S_CH, hook=lambda: pub2("a"))
    A(f"s_branch {n}_Cnc2")
    A.label(f"{n}_Cnc")
    pub2("b")
    A.label(f"{n}_Cnc2")
    A.bars.append("PUB2")
    A.stamp(10)
    g3(A)
    if diag:
        A("s_waitcnt vmcnt(0)")
        A.diag = True
        A.stamp(12, True)
        stamp_dump(A, f"{n}_Cd", 0)
    A.label(f"{n}_end")
    A("s_endpgm")

DA, DB = (6, 3) if 'd63' in OPT else (4, 5) if 'd45' in OPT else (5, 4)
def g3_main(A):
    ACC = 4; AB = 84; BB = AB + 20*DA
    assert BB + 16*DB <= 252
    A.vshift = 0
    A("v_lshlrev_b32 v2, 4, v0")
    A("v_and_b32 v3, 7, v0")
    A("v_lshrrev_b32 v1, 4, v0")
    A("v_lshl_add_u32 v3, v1, 3, v3")
    A("v_lshlrev_b32 v3, 4, v3")
    A("v_add_u32 v3, 4096, v3")
    A(f"s_mul_i32 s64, s{S_J}, {72*4608}")
    A(f"s_add_u32 s64, s64, {WS_WOT}")
    psrd(A, 4, P_WS, "s64", 72*4608)
    A(f"s_mul_i32 s64, s{S_T64}, {72*4096}")
    A(f"s_add_u32 s64, s64, {WS_HF}")
    psrd(A, 12, P_WS, "s64", 72*4096)
    A(f"s_and_b32 s64, s{S_T64}, 3")
    A("s_lshl_b32 s64, s64, 1")
    if "rotT" not in OPT: A(f"s_add_u32 s64, s64, s{S_J}")
    A("s_and_b32 s64, s64, 7")
    A("s_mul_i32 s64, s64, 9")
    if "norot3" in OPT: A("s_mov_b32 s64, 0")
    A(f"s_add_u32 s64, s64, s{S_W}")
    A("s_mul_i32 s70, s64, 4608")
    A("s_lshl_b32 s71, s64, 12")
    NK = 18
    ra = {}; rb = {}
    def loadA(it):
        b = AB + 20*(it % DA)
        for q in range(4): A.vm(f"buffer_load_dwordx4 {vr(b+4*q,4)}, v2, s[4:7], s70 offen offset:{1024*q} sc1")
        ra[it] = A.vm(f"buffer_load_dwordx4 {vr(b+16,4)}, v3, s[4:7], s70 offen sc1")
        A(f"s_add_u32 s70, s70, {4*4608}")
        A(f"s_cmp_ge_u32 s70, {72*4608}")
        A(f"s_cselect_b32 s72, {72*4608}, 0")
        A("s_sub_u32 s70, s70, s72")
    def loadB(it):
        b = BB + 16*(it % DB)
        for q in range(4): rb[it] = A.vm(f"buffer_load_dwordx4 {vr(b+4*q,4)}, v2, s[12:15], s71 offen offset:{1024*q} sc1")
        A(f"s_add_u32 s71, s71, {4*4096}")
        A(f"s_cmp_ge_u32 s71, {72*4096}")
        A(f"s_cselect_b32 s72, {72*4096}, 0")
        A("s_sub_u32 s71, s71, s72")
    loadA(0)
    A(f"s_cmp_ge_u32 s{S_FT}, 9")
    A(f"s_cbranch_scc1 {n}_Lnu1")
    A(f"s_lshl_b32 s64, s{S_CH}, 12")
    A(f"s_add_u32 s64, s64, {WS_UT}")
    psrd(A, 16, P_WS, "s64", 4096)
    A(f"s_mul_i32 s66, s{S_W}, {ssm.USZ}")
    A(f"s_add_u32 m0, s66, {U_BASE + 480}")
    A("s_nop 0")
    for i in range(4):
        A(f"buffer_load_dwordx4 v2, s[16:19], 0 offen offset:{1024*i} sc1 lds")
    A.label(f"{n}_Lnu1")
    A("s_waitcnt vmcnt(14)")
    A.bar("N47")
    loadA(1)
    A("s_waitcnt vmcnt(10)")
    A.bar("N48")
    for r in range(80): A(f"v_mov_b32 v{ACC+r}, 0")
    A("s_waitcnt vmcnt(5)")
    A.bar("N49")
    A.bar("EPI")
    for it in range(2, DA): loadA(it)
    A.bar("PUB2")
    mb_wait(A, f"{n}_Lh", MB_H, S_O3, 16, 252, 8)
    A.stamp(9)
    for it in range(DB): loadB(it)
    for it in range(NK):
        A.wait_vm(max(ra[it], rb[it]))
        a = AB + 20*(it % DA); b = BB + 16*(it % DB)
        for nt in range(4):
            for q in range(5):
                c = ACC + (nt*5+q)*4
                A(f"v_mfma_f32_16x16x32_bf16 {vr(c,4)}, {vr(a+4*q,4)}, {vr(b+4*nt,4)}, {vr(c,4)}")
        if it + DB < NK: loadB(it + DB)
        if it + DA < NK: loadA(it + DA)
        if it == 7: A.bar("PUB4")
    A.stamp(10)
    A(f"s_mul_i32 s65, s{S_W}, 5120")
    A("v_add_u32 v1, s65, v2")
    A("v_add_u32 v3, 40960, v1")
    A("s_nop 7")
    for nt in range(4):
        for q in range(5):
            A(f"ds_write_b128 v{1 if nt < 2 else 3}, {vr(ACC+(nt*5+q)*4,4)} offset:{(nt&1)*20480+q*1024}")
    A("s_waitcnt lgkmcnt(0)")
    A.bar("RED")

def g3(A):
    A("s_waitcnt vmcnt(0)")
    A.bar("PUB4")
    A(f"s_cmp_lg_u32 s{S_W}, 0")
    A(f"s_cbranch_scc1 {n}_Cns3")
    A(f"s_cmp_ge_u32 s{S_FT}, 9")
    A(f"s_cbranch_scc1 {n}_Cns3")
    A(f"s_lshr_b32 s74, s{S_CH}, 2")
    A("s_mul_i32 s72, s74, 3641")
    A("s_lshr_b32 s72, s72, 16")
    A("s_mul_i32 s73, s72, 18")
    A("s_sub_u32 s73, s74, s73")
    mb_push(A, MB_A, 32, ["v_lshlrev_b32 v14, 3, v0", "v_add_u32 v14, s72, v14"], 73, 14, 20)
    A.label(f"{n}_Cns3")
    A("v_lshlrev_b32 v2, 4, v0")
    A("v_lshrrev_b32 v4, 4, v0")
    A("v_and_b32 v5, 15, v0")
    A("v_lshrrev_b32 v6, 2, v5")
    A("v_lshlrev_b32 v6, 3, v6")
    A("v_and_b32 v7, 3, v5")
    A("v_add_u32 v6, v6, v7")
    A(f"s_lshr_b32 s70, s{S_W}, 1")
    A("s_lshl_b32 s70, s70, 5")
    A(f"s_and_b32 s66, s{S_W}, 1")
    A("s_lshl_b32 s66, s66, 2")
    A("s_add_u32 s70, s70, s66")
    A(f"s_lshl_b32 s66, s{S_T64}, 6")
    A("s_add_u32 s66, s66, s70")
    A("v_add_u32 v6, s66, v6")
    psrd(A, 12, P_WS, WS_G, 2048*8)
    A("v_lshlrev_b32 v7, 3, v6")
    A("buffer_load_dwordx2 v[8:9], v7, s[12:15], 0 offen sc1")
    A("v_mul_u32_u24 v6, 1152, v6")
    A(f"s_mul_i32 s66, s{S_J}, 144")
    A("v_add_u32 v6, s66, v6")
    A("v_lshl_add_u32 v10, v4, 4, v6")
    A("v_lshl_add_u32 v11, v4, 3, v6")
    psrd(A, 16, P_OUT, None, 2048*1152)
    A("v_lshrrev_b32 v12, 2, v5")
    A("v_lshl_add_u32 v13, v4, 3, v12")
    A("v_lshlrev_b32 v13, 7, v13")
    A("v_and_b32 v14, 3, v5")
    A("v_lshl_add_u32 v13, v14, 4, v13")
    A("s_lshl_b32 s70, s70, 1")
    A(f"s_add_u32 s70, s70, {LDS_AT}")
    A("v_add_u32 v13, s70, v13")
    A("v_lshl_add_u32 v12, v4, 2, v12")
    A("v_lshlrev_b32 v12, 7, v12")
    A("v_lshl_add_u32 v12, v14, 4, v12")
    A("v_add_u32 v12, s70, v12")
    A(f"s_cmp_lg_u32 s{S_W}, 0")
    A(f"s_cbranch_scc1 {n}_Cna")
    A("s_sleep 40")
    mb_wait(A, f"{n}_Ca", MB_A, S_O3, 18, 16, 20, sleep=24)
    A.stamp(11)
    A(f"s_mul_i32 s64, s{S_J}, {72*4096}")
    A(f"s_lshl_b32 s65, s{S_T64}, 7")
    A("s_add_u32 s64, s64, s65")
    A(f"s_add_u32 s64, s64, {WS_AT}")
    psrd(A, 12, P_WS, "s64", 71*4096+128)
    A("v_lshrrev_b32 v5, 3, v0")
    A("v_and_b32 v6, 7, v0")
    A("v_lshlrev_b32 v5, 12, v5")
    A("v_lshl_add_u32 v5, v6, 4, v5")
    for i in range(9):
        A(f"s_mov_b32 m0, {LDS_AT + 1024*i}")
        A(f"s_mov_b32 s70, {i*8*4096}")
        A("buffer_load_dwordx4 v5, s[12:15], s70 offen sc1 lds")
    A.label(f"{n}_Cna")
    A(f"s_mul_i32 s65, s{S_W}, 20480")
    A("v_add_u32 v14, s65, v2")
    A("s_waitcnt vmcnt(0)")
    A.bar("RED")
    R = 96
    for src in range(4):
        for q in range(5):
            A(f"ds_read_b128 {vr(R+(src*5+q)*4,4)}, v14 offset:{src*5120+q*1024}")
    AR = R + 80
    for q in range(4):
        A(f"ds_read_b64_tr_b16 {vr(AR+2*q,2)}, v13 offset:{(32*(q>>1)+4*(q&1))*128}")
    A(f"ds_read_b64_tr_b16 {vr(AR+8,2)}, v12 offset:{64*128}")
    A("s_waitcnt lgkmcnt(0)")
    for i in range(20):
        A(f"v_add_f32 v{R+i}, v{R+i}, v{R+20+i}")
        A(f"v_add_f32 v{R+40+i}, v{R+40+i}, v{R+60+i}")
    for i in range(20): A(f"v_add_f32 v{R+i}, v{R+i}, v{R+40+i}")
    T = R + 20
    for i in range(10):
        A(f"v_lshlrev_b32 v{T+2*i}, 16, v{AR+i}")
        A(f"v_and_b32 v{T+2*i+1}, 0xffff0000, v{AR+i}")
    for i in range(20): A(f"v_mul_f32 v{T+i}, v8, v{T+i}")
    for i in range(20): A(f"v_fmac_f32 v{T+i}, v9, v{R+i}")
    O = R + 40
    for i in range(10): A(f"v_cvt_pk_bf16_f32 v{O+i}, v{T+2*i}, v{T+2*i+1}")
    A(f"buffer_store_dwordx4 {vr(O,4)}, v10, s[16:19], 0 offen")
    A(f"buffer_store_dwordx4 {vr(O+4,4)}, v10, s[16:19], 0 offen offset:64")
    A("s_mov_b64 exec, 0xffffffff")
    A(f"buffer_store_dwordx2 {vr(O+8,2)}, v11, s[16:19], 0 offen offset:128")
    A("s_mov_b64 exec, -1")

if __name__ == "__main__":
    diag = "--diag" in sys.argv
    out = [a for a in sys.argv[1:] if not a.startswith("--")][0]
    H = Stream(diag); C = Stream(diag); L = Stream(diag)
    header(H); gen_L(L, diag); gen_C(C, diag)
    assert C.bars == L.bars, [(a, b) for a, b in zip(C.bars, L.bars) if a != b][:5]
    launch = f"; @launch grid=(256,1,1) block=(512,1,1) lds={LDS_TOTAL}\n"
    if "--list" in sys.argv:
        launch = f"; @launch kernel={NAME} grid=(256,1,1) block=(512,1,1) lds={LDS_TOTAL}\n"
    if "nosc1" in OPT:
        L.lines = [l.replace(" sc1", "") if "buffer_load_dwordx4" in l else l for l in L.lines]
    open(out, "w").write(HEADER + launch + '.amdgcn_target "amdgcn-amd-amdhsa--gfx950"\n.text\n' + H.text() + L.text() + C.text() + '.section .rodata,"a"\n' + kernel_desc(NAME, 256))
```

```python
from asmlib import *
import math, numpy as np
LOG2E = 1.4426950408889634
GC0 = -2.0 * LOG2E * math.sqrt(2.0 / math.pi)
GC1 = GC0 * 0.044715
C_HI = float(np.float32(1.0 / (2 * math.pi)))
C_LO = float(np.float32(1.0 / (2 * math.pi) - C_HI))
L2E_HI = float(np.float32(LOG2E)); L2E_LO = float(np.float32(LOG2E - L2E_HI))
STG = 34816
S = 4
LDS_X = S * STG
LDS_TOTAL = 163840
P_U, P_LOGA, P_AIM, P_CR, P_CI, P_LOGDT, P_D, P_BX, P_WIN, P_WSP, P_BSP, P_WOUT, P_GATE, P_OUT, P_DBG, P_WS = [32 + 2*i for i in range(16)]
S_WAVE, S_W, S_FT, S_TT, S_T64, S_J = 24, 25, 26, 27, 28, 29
CN_ST, CN_Z2, CN_H, CN_A = 0, 64, 128, 192

class Stream(Asm):
    def __init__(self, diag=False):
        super().__init__()
        self.nvm = 0
        self.bars = []
        self.diag = diag
        self.vshift = 0
    def __call__(self, s):
        if isinstance(s, (list, tuple)):
            for x in s: self(x)
            return
        if self.vshift:
            import re
            sh = lambda k: k + self.vshift if 1 <= k <= 60 else k
            s = re.sub(r"\bv\[(\d+):(\d+)\]", lambda m: f"v[{sh(int(m.group(1)))}:{sh(int(m.group(2)))}]", s)
            s = re.sub(r"\bv(\d+)\b", lambda m: f"v{sh(int(m.group(1)))}", s)
        self.lines.append("    " + s)
    def vm(self, s):
        self(s); self.nvm += 1
        return self.nvm - 1
    def wait_vm(self, k, extra=""):
        n = self.nvm - 1 - k
        assert 0 <= n <= 63, n
        self(f"s_waitcnt vmcnt({n}){extra}")
    def bar(self, name):
        self("s_barrier"); self.bars.append(name)
    def stamp(self, i, real=False):
        import sys
        if "--mstamp" in sys.argv and 4 <= i <= 11:
            if i in getattr(self, "used", set()): return
            self.used = getattr(self, "used", set()) | {i}
        if "--sstamp" in sys.argv and i in getattr(self, "used", set()): return
        if self.diag:
            self(f"s_mem{'real' if real else ''}time s[{76+2*i}:{77+2*i}]")

def psrd(A, d, p, off, nbytes):
    srd(A, d, p, p+1, off, nbytes)

def gelu_ops(regs, tmp, vc1):
    o = []
    for i, r in enumerate(regs): o.append(f"v_mul_f32 v{tmp+i}, v{r}, v{r}")
    for i, r in enumerate(regs): o.append(f"v_fmaak_f32 v{tmp+i}, v{tmp+i}, v{vc1}, {f32(GC0)}")
    for i, r in enumerate(regs): o.append(f"v_mul_f32 v{tmp+i}, v{r}, v{tmp+i}")
    for i, r in enumerate(regs): o.append(f"v_exp_f32 v{tmp+i}, v{tmp+i}")
    for i, r in enumerate(regs): o.append(f"v_add_f32 v{tmp+i}, 1.0, v{tmp+i}")
    for i, r in enumerate(regs): o.append(f"v_rcp_f32 v{tmp+i}, v{tmp+i}")
    for i, r in enumerate(regs): o.append(f"v_mul_f32 v{r}, v{r}, v{tmp+i}")
    return o

def bf16_round(A, v):
    A(f"v_cvt_pk_bf16_f32 v{v}, v{v}, v{v}")
    A(f"v_and_b32 v{v}, 0xffff0000, v{v}")

def set_exec(A, lo, hi):
    A(f"s_mov_b32 exec_lo, {lo}")
    A(f"s_mov_b32 exec_hi, {hi}")

def signal(A, lbl, cn_base, idx_sreg, vt, srd_reg):
    A(f"s_lshl_b32 s64, s{idx_sreg}, 2")
    A(f"s_add_u32 s64, s64, {cn_base}")
    A(f"v_mov_b32 v{vt}, s64")
    A(f"v_mov_b32 v{vt+1}, 1")
    A("s_mov_b64 exec, 1")
    A.vm(f"buffer_atomic_add v{vt+1}, v{vt}, s[{srd_reg}:{srd_reg+3}], 0 offen")
    A("s_mov_b64 exec, -1")

def poll(A, lbl, cn_base, idx_sreg, target, vt, srd_reg, sleep=2):
    A(f"s_lshl_b32 s64, s{idx_sreg}, 2")
    A(f"s_add_u32 s64, s64, {cn_base}")
    A(f"v_mov_b32 v{vt}, s64")
    A("s_mov_b32 s65, 0")
    A.label(f"{lbl}_poll")
    A.vm(f"buffer_load_dword v{vt+1}, v{vt}, s[{srd_reg}:{srd_reg+3}], 0 offen sc1")
    A("s_waitcnt vmcnt(0)")
    A(f"v_readfirstlane_b32 s66, v{vt+1}")
    A("s_add_u32 s65, s65, 1")
    A(f"s_cmp_ge_u32 s66, {target}")
    A(f"s_cbranch_scc1 {lbl}_ok")
    A(f"s_sleep {sleep}")
    A("s_cmp_lt_u32 s65, 100000")
    A(f"s_cbranch_scc1 {lbl}_poll")
    A.label(f"{lbl}_ok")

def rowperm_voff(A, dst, pitch):
    A("v_lshrrev_b32 v5, 3, v0")
    A("v_lshrrev_b32 v6, 4, v0")
    A("v_and_b32 v7, 7, v0")
    A(f"s_and_b32 s64, s{S_W}, 1")
    A("s_lshl_b32 s65, s64, 2")
    A("v_add_u32 v8, s65, v6")
    A("v_xor_b32 v8, v8, v7")
    A("v_lshlrev_b32 v8, 4, v8")
    A("v_lshrrev_b32 v9, 5, v0")
    A("v_lshlrev_b32 v9, 3, v9")
    A("v_and_b32 v10, 3, v5")
    A("v_add_u32 v9, v9, v10")
    A("s_lshl_b32 s65, s64, 4")
    A(f"s_lshr_b32 s66, s{S_W}, 1")
    A("s_lshl_b32 s66, s66, 2")
    A("s_add_u32 s65, s65, s66")
    A("v_add_u32 v9, s65, v9")
    A(f"v_mul_u32_u24 v9, {pitch}, v9")
    A(f"v_add_u32 v{dst}, v9, v8")

def stamp_dump(A, lbl, slot):
    A("s_waitcnt lgkmcnt(0)")
    A(f"s_cmp_lg_u32 s{S_W}, 0")
    A(f"s_cbranch_scc1 {lbl}_nost")
    A("s_lshl_b32 s64, s2, 7")
    A(f"s_add_u32 s64, s64, {WS_DBG + slot*32768}")
    psrd(A, 4, P_WS, "s64", 128)
    A("v_mov_b32 v1, 0")
    for i in range(26):
        A(f"v_mov_b32 v{4+i}, s{76+i}")
    A("v_mov_b32 v30, 0"); A("v_mov_b32 v31, 0")
    for i in range(7):
        A(f"buffer_store_dwordx4 v[{4+4*i}:{7+4*i}], v1, s[4:7], 0 offen offset:{16*i}")
    A.label(f"{lbl}_nost")

WS_MB = 0x2180000
MBSZ = 65536
MB_Z2, MB_H, MB_A, MB_WF = [WS_MB + i*MBSZ for i in range(4)]
WS_UT = 0x2400000

def mb_push(A, arr, nl, vbase_ops, slot_sreg, vt, srd_reg):
    A(vbase_ops)
    A(f"v_lshlrev_b32 v{vt}, 8, v{vt}")
    A(f"s_lshl_b32 s64, s{slot_sreg}, 2")
    A(f"s_add_u32 s64, s64, {arr - WS_MB}")
    A(f"v_mov_b32 v{vt+1}, 1")
    A(f"s_mov_b64 exec, {hex((1 << nl) - 1)}")
    A(f"buffer_store_dword v{vt+1}, v{vt}, s[{srd_reg}:{srd_reg+3}], s64 offen sc1")
    A("s_mov_b64 exec, -1")

def mb_wait(A, lbl, arr, owner_sreg, nl, vt, srd_reg, sleep=4, depth=1):
    A(f"s_lshl_b32 s64, s{owner_sreg}, 8")
    A(f"s_add_u32 s64, s64, {arr - WS_MB}")
    A(f"v_min_u32 v{vt}, {nl-1}, v0")
    A(f"v_lshlrev_b32 v{vt}, 2, v{vt}")
    A("s_mov_b32 s65, 0")
    ld = lambda k: f"buffer_load_dword v{vt+1+k}, v{vt}, s[{srd_reg}:{srd_reg+3}], s64 offen sc1"
    for k in range(depth - 1):
        A(ld(k)); A(f"s_sleep {sleep}")
    A.label(f"{lbl}_poll")
    for k in range(depth):
        A(ld((k + depth - 1) % depth))
        A(f"s_waitcnt vmcnt({depth-1})")
        A(f"v_cmp_eq_u32 vcc, 0, v{vt+1+k}")
        A("s_add_u32 s65, s65, 1")
        A("s_cmp_eq_u64 vcc, 0")
        A(f"s_cbranch_scc1 {lbl}_ok")
        A(f"s_sleep {sleep}")
    A("s_cmp_lt_u32 s65, 100000")
    A(f"s_cbranch_scc1 {lbl}_poll")
    A.label(f"{lbl}_ok")

def init_wait(A, lbl, vt, dbg_srd):
    A(f"v_and_b32 v{vt}, 15, v0")
    A(f"v_lshlrev_b32 v{vt}, 2, v{vt}")
    A("s_mov_b32 s65, 0")
    A.label(f"{lbl}_poll")
    A(f"buffer_load_dword v{vt+1}, v{vt}, s[{dbg_srd}:{dbg_srd+3}], 0 offen offset:64 sc1")
    A("s_waitcnt vmcnt(0)")
    A(f"v_cmp_le_u32 vcc, 16, v{vt+1}")
    A("s_add_u32 s65, s65, 1")
    A(f"s_cmp_eq_u32 vcc_lo, -1")
    A(f"s_cbranch_scc1 {lbl}_ok")
    A(f"s_sleep 16")
    A("s_cmp_lt_u32 s65, 30000")
    A(f"s_cbranch_scc1 {lbl}_poll")
    A.label(f"{lbl}_ok")

def bg_cost(t):
    if t.startswith("ds_write"): return 45
    if t.startswith("ds_read"): return 25
    if t.startswith("v_mfma"): return 40
    if any(t.startswith(x) for x in ("v_exp", "v_sin", "v_cos", "v_rcp", "v_sqrt")): return 17
    if t.startswith("v_"): return 8.5
    return 5

def bg_split(lines, budgets):
    chunks = []; cur = []; cost = 0; full = True; prev = ""; bi = 0
    for ln in lines:
        t = ln.strip()
        safe = full and t.startswith(("v_", "ds_")) and prev.startswith(("v_", "ds_")) and "vcc" not in t
        if safe and bi < len(budgets) - 1 and cost >= budgets[bi]:
            chunks.append(cur); cur = []; cost = 0; bi += 1
        cur.append(ln)
        if "exec" in t.split(",")[0]:
            full = t.startswith("s_mov_b64 exec, -1")
        cost += bg_cost(t); prev = t
    chunks.append(cur)
    last = cost
    while len(chunks) < len(budgets): chunks.append([])
    return chunks, last

def lds_arrive(A, addr_ops, vt, last, skip_lbl):
    A(addr_ops)
    A(f"v_mov_b32 v{vt+1}, 1")
    A("s_mov_b64 exec, 1")
    A(f"ds_add_rtn_u32 v{vt+1}, v{vt}, v{vt+1}")
    A("s_mov_b64 exec, -1")
    A("s_waitcnt lgkmcnt(0)")
    A(f"v_readfirstlane_b32 s64, v{vt+1}")
    A("s_nop 0")
    A(f"s_cmp_lg_u32 s64, {last}")
    A(f"s_cbranch_scc1 {skip_lbl}")

def wg_wait(A, lbl, w_sreg, go_addr, vt, waiter):
    A(f"s_cmp_lg_u32 s{w_sreg}, 0")
    A(f"s_cbranch_scc1 {lbl}_oth")
    waiter()
    A(f"v_mov_b32 v{vt}, {go_addr}")
    A(f"v_mov_b32 v{vt+1}, 1")
    A(f"ds_write_b32 v{vt}, v{vt+1}")
    A(f"s_branch {lbl}_done")
    A.label(f"{lbl}_oth")
    A(f"v_mov_b32 v{vt}, {go_addr}")
    A("s_mov_b32 s65, 0")
    A.label(f"{lbl}_spin")
    A(f"ds_read_b32 v{vt+1}, v{vt}")
    A("s_waitcnt lgkmcnt(0)")
    A(f"v_readfirstlane_b32 s66, v{vt+1}")
    A("s_add_u32 s65, s65, 1")
    A("s_cmp_lg_u32 s66, 0")
    A(f"s_cbranch_scc1 {lbl}_done")
    A("s_sleep 1")
    A("s_cmp_lt_u32 s65, 2000000")
    A(f"s_cbranch_scc1 {lbl}_spin")
    A.label(f"{lbl}_done")
```

```python
from fz_common import *
R0_BASE = LDS_X + 1024
RSZ = 4800
R0_OFF = 640
R1SZ = 4160
USZ = 4608

def kgen_load(A, ch_sreg):
    A(f"s_lshl_b32 s64, s{ch_sreg}, 8")
    A("v_lshlrev_b32 v2, 2, v0")
    A(f"s_lshl_b32 s65, s{ch_sreg}, 1")
    A("v_mov_b32 v3, s65")
    for i, p in enumerate((P_LOGA, P_AIM, P_CR, P_CI)):
        psrd(A, 4, p, None, 576*256)
        A(f"buffer_load_dword v{4+i}, v2, s[4:7], s64 offen")
    psrd(A, 4, P_LOGDT, None, 1152)
    A("buffer_load_ushort v8, v3, s[4:7], 0 offen")

def kgen(A, st, r0_sreg, part, packed):
    ARE, AIM, CC = 12, 14, 16
    DT, KSC = 20, 22
    WP = {1: 28, 8: 32, 128: 36, 2: 40, 4: 44, 1024: 28}
    kgen_setup(A, ARE, AIM, CC, DT, KSC, WP, (1024, 8, 128) if part == 1 else (1, 8, 128))
    kgen_body(A, st, r0_sreg, part, packed, CC, KSC, WP)

KSTATE = [16, 20, 28, 36] + [64 + 4*i for i in range(8)]
def kstate_io(A, ch_sreg, store):
    A(f"s_mul_i32 s64, s{ch_sreg}, 12288")
    A(f"s_add_u32 s64, s64, {WS_KS}")
    psrd(A, 4, P_WS, "s64", 12288)
    A("v_lshlrev_b32 v1, 4, v0")
    A("s_movk_i32 s65, 4096"); A("s_movk_i32 s66, 8192")
    for i, r in enumerate(KSTATE):
        A(f"buffer_{'store' if store else 'load'}_dwordx4 {vr(r,4)}, v1, s[4:7], {['0','s65','s66'][i>>2]} offen offset:{(i&3)*1024} sc1")

def kgen_setup(A, ARE, AIM, CC, DT, KSC, WP, powers):
    A(f"v_lshlrev_b32 v{DT}, 16, v8")
    A(f"v_lshlrev_b32 v{ARE}, 16, v4");  A(f"v_and_b32 v{ARE+1}, 0xffff0000, v4")
    A(f"v_lshlrev_b32 v{AIM}, 16, v5");  A(f"v_and_b32 v{AIM+1}, 0xffff0000, v5")
    A(f"v_lshlrev_b32 v{CC}, 16, v6");   A(f"v_and_b32 v{CC+2}, 0xffff0000, v6")
    A(f"v_lshlrev_b32 v{CC+1}, 16, v7"); A(f"v_and_b32 v{CC+3}, 0xffff0000, v7")
    A(f"v_mov_b32 v23, {f32(L2E_HI)}")
    A(f"v_mov_b32 v24, {f32(L2E_LO)}")
    ops = []
    for k, r in enumerate((DT, ARE, ARE+1)):
        t = 48 + 3*k
        ops.append([f"v_mul_f32 v{t}, v{r}, v23", f"v_fma_f32 v{t+1}, v{r}, v23, -v{t}", f"v_fmac_f32 v{t+1}, v{r}, v24",
                    f"v_rndne_f32 v{t+2}, v{t}", f"v_sub_f32 v{t}, v{t}, v{t+2}", f"v_add_f32 v{t}, v{t}, v{t+1}",
                    f"v_exp_f32 v{t}, v{t}", f"v_cvt_i32_f32 v{t+2}, v{t+2}", f"v_ldexp_f32 v{r}, v{t}, v{t+2}",
                    f"v_cvt_pk_bf16_f32 v{r}, v{r}, v{r}", f"v_and_b32 v{r}, 0xffff0000, v{r}"])
    red = [f"v_max_f32 v25, abs(v{CC}), abs(v{CC+1})", f"v_max3_f32 v25, v25, abs(v{CC+2}), abs(v{CC+3})"]
    red += [f"v_max_f32_dpp v25, v25, v25 row_ror:{rot} row_mask:0xf bank_mask:0xf" for rot in (8, 4, 2, 1)]
    red += ["v_mov_b32 v26, v25", "v_permlane16_swap_b32 v25, v26", "v_max_f32 v25, v25, v26",
            "v_mov_b32 v26, v25", "v_permlane32_swap_b32 v25, v26"]
    for k, grp in enumerate(zip(*ops)):
        A(red[k]); A(list(grp))
    A("v_max_f32 v25, v25, v26")
    for mu in range(2):
        A(f"v_mul_f32 v{ARE+mu}, v{ARE+mu}, v{DT}")
        A(f"v_mul_f32 v{AIM+mu}, v{AIM+mu}, v{DT}")
        A(f"v_mul_f32 v{ARE+mu}, {f32(-LOG2E)}, v{ARE+mu}")
    A("v_and_b32 v25, 0x7f800000, v25")
    A("v_max_u32 v25, 0x00800000, v25")
    A("v_min_u32 v25, 0x7e800000, v25")
    A("v_sub_u32 v26, 0x7f000000, v25")
    for i in range(4): A(f"v_mul_f32 v{CC+i}, v{CC+i}, v26")
    A(f"v_mul_f32 v{KSC}, v25, v{DT}")
    A(f"v_add_f32 v{KSC}, v{KSC}, v{KSC}")
    A(f"v_mov_b32 v23, {f32(C_HI)}")
    A(f"v_mov_b32 v24, {f32(C_LO)}")
    for p in powers:
        b = WP[p]
        ops = [[], []]
        for mu in range(2):
            t = 48 + 4*mu
            o = ops[mu]
            o.append(f"v_mul_f32 v{t}, {f32(float(p))}, v{ARE+mu}")
            o.append(f"v_mul_f32 v{t+1}, {f32(float(-p if p == 8 else p))}, v{AIM+mu}")
            o.append(f"v_exp_f32 v{t}, v{t}")
            o.append(f"v_mul_f32 v{t+2}, v{t+1}, v23")
            o.append(f"v_fma_f32 v{t+3}, v{t+1}, v23, -v{t+2}")
            o.append(f"v_fmac_f32 v{t+3}, v{t+1}, v24")
            o.append(f"v_fract_f32 v{t+2}, v{t+2}")
            o.append(f"v_add_f32 v{t+2}, v{t+2}, v{t+3}")
            o.append(f"v_cos_f32 v{t+1}, v{t+2}")
            o.append(f"v_sin_f32 v{t+3}, v{t+2}")
            o.append(f"v_mul_f32 v{b+2*mu}, v{t}, v{t+1}")
            o.append(f"v_mul_f32 v{b+2*mu+1}, v{t}, v{t+3}")
        for x, y in zip(*ops): A(x); A(y)

def kgen_body(A, st, r0_sreg, part, packed, CC, KSC, WP):
    G = 4 if part == 1 else 8
    A("v_lshlrev_b32 v2, 3, v0")
    A(f"v_add_u32 v2, s{st}, v2")
    A("v_and_b32 v4, 15, v0")
    A("v_lshrrev_b32 v5, 4, v0")
    A(f"v_and_b32 v3, {G-1}, v0")
    A("v_mul_u32_u24 v3, 528, v3")
    A("v_lshl_add_u32 v3, v5, 4, v3")
    A(f"v_add_u32 v3, s{st}, v3")
    Z = 48; TT = 52; PK = 56; SS = CC
    OF = 64; BT = [96, 128, 96]; KA = 160
    def cmul(dst, z, w):
        o = []
        for mu in range(2):
            o.append(f"v_pk_mul_f32 {vr(TT+2*mu,2)}, {vr(z+2*mu,2)}, {vr(w+2*mu,2)} op_sel:[0,0] op_sel_hi:[0,1]")
        for mu in range(2):
            o.append(f"v_pk_fma_f32 {vr(dst+2*mu,2)}, {vr(z+2*mu,2)}, {vr(w+2*mu,2)}, {vr(TT+2*mu,2)} op_sel:[1,1,0] op_sel_hi:[1,0,1] neg_lo:[0,1,0]")
        return o
    if part != 1:
        A(cmul(WP[2], WP[1], WP[1])); A(cmul(WP[4], WP[2], WP[2]))
    else:
        A(cmul(SS, SS, WP[1024]))
    for i in range(12): A(f"v_mov_b32 v{KA+i}, 0")
    state = {"row": 0}
    def emit(src, nxt, dst, last=False):
        j = state["row"]
        pk = PK + 2*(j & 1)
        A(f"v_cvt_pk_f16_f32 v{pk}, v{src}, v{src+1}")
        A(f"v_cvt_pk_f16_f32 v{pk+1}, v{src+2}, v{src+3}")
        A(nxt)
        A(f"ds_write_b64 v2, {vr(pk,2)} offset:{528*(j % G)}")
        if j % G == G - 1 or last:
            m = ((1 << G) - 1) << (j - j % G)
            m = m | (m << 16)
            set_exec(A, hex(m), hex(m))
            for ks in range(8): A(f"ds_read_b128 {vr(dst+4*ks,4)}, v3 offset:{64*ks}")
            A("s_mov_b64 exec, -1")
        state["row"] = (j + 1) & 15
    def kmm(T):
        for ks in range(8):
            A(f"v_mfma_f32_16x16x32_f16 {vr(KA+4*T,4)}, {vr(BT[T]+4*ks,4)}, {vr(OF+4*ks,4)}, {vr(KA+4*T,4)}")
    A(f"v_mov_b32 v{Z}, 1.0"); A(f"v_mov_b32 v{Z+1}, 0"); A(f"v_mov_b32 v{Z+2}, 1.0"); A(f"v_mov_b32 v{Z+3}, 0")
    for j in range(16): emit(Z, cmul(Z, Z, WP[8]) if j < 15 else [], OF)
    rowno = 32 if part == 1 else 0
    ilast = 7 if part == 0 else 16
    for i in (range(8) if part == 0 else range(8, 17) if part == 1 else range(17)):
        sub, w = (8, 1) if i < 2 else (4, 2) if i < 4 else (2, 4) if i < 8 else (1, None)
        for e in range(sub):
            src = SS if e == 0 else Z
            if e < sub - 1: nxt = cmul(Z, src, WP[w])
            elif i < ilast: nxt = cmul(SS, SS, WP[128])
            else:           nxt = []
            emit(src, nxt, BT[rowno >> 4], last=(i == 16))
            rowno += 1
            if rowno == 24:
                A("s_waitcnt lgkmcnt(15)"); kmm(0)
    if part == 0:
        A("s_waitcnt lgkmcnt(0)"); kmm(1)
    elif part == 1:
        A("s_waitcnt lgkmcnt(0)"); kmm(2)
    else:
        A("s_waitcnt lgkmcnt(15)"); kmm(1)
        A("s_waitcnt lgkmcnt(0)"); kmm(2)
    A("v_lshlrev_b32 v8, 4, v4")
    A(f"v_sub_u32 v8, s{r0_sreg}, v8")
    A("v_lshlrev_b32 v9, 10, v5")
    A("v_sub_u32 v9, v8, v9")
    A("v_lshlrev_b32 v10, 9, v5")
    A("v_sub_u32 v10, v8, v10")
    A("v_lshlrev_b32 v11, 8, v5")
    A("v_sub_u32 v11, v8, v11")
    A("v_lshrrev_b32 v6, 1, v5")
    A("v_lshlrev_b32 v6, 8, v6")
    A("v_and_b32 v7, 1, v5")
    A("v_lshl_add_u32 v6, v7, 3, v6")
    A("v_sub_u32 v8, v8, v6")
    for i in (range(8) if part == 0 else range(8, 12) if part == 1 else range(12)):
        A(f"v_mul_f32 v{KA+i}, v{KA+i}, v{KSC}")
    if part != 0:
        Q = 64
        for r in range(4):
            A(f"v_cvt_pk_bf16_f32 v{Q+2*r}, v{KA+8+r}, v{KA+8+r}")
            A(f"v_mov_b32 v{Q+2*r+1}, v{Q+2*r}")
        for r in range(4):
            off = 2*(2056 - 1024 - 128*r)
            set_exec(A, -1, 1 if r == 0 else 0)
            A(f"ds_write_b64 v9, {vr(Q+2*r,2)} offset:{off}")
            A(f"ds_write_b32 v9, v{Q+2*r} offset:{off+8}")
            if r == 0: A("s_mov_b32 exec_lo, 0xfffffffe")
            A(f"ds_write_b16 v9, v{Q+2*r} offset:{off+12}")
            A(f"s_mov_b32 exec_lo, {'0x55555554' if r == 0 else '0x55555555'}")
            A(f"ds_write_b16 v9, v{Q+2*r} offset:{off+14}")
            if r == 0: A("s_mov_b32 exec_lo, 0x55555555")
            A(f"ds_write_b16 v9, v{Q+2*r} offset:{off-2}")
        A("s_mov_b64 exec, -1")
    if part == 1: return
    A("v_mov_b32 v6, 0")
    A("v_lshlrev_b32 v7, 2, v0")
    A(f"v_add_u32 v7, s{r0_sreg}, v7")
    A("s_mov_b64 exec, 0x3ff")
    A(f"ds_write_b32 v7, v6 offset:4120")
    A("s_mov_b64 exec, -1")
    Q = 72
    for u in range(2):
        k0, k1 = KA+4+2*u, KA+4+2*u+1
        A(f"v_cvt_pk_bf16_f32 v{Q+4*u+3}, v{k1}, v{k1}")
        A(f"v_cvt_pk_bf16_f32 v{Q+4*u}, v{k1}, v{k0}")
        A(f"v_cvt_pk_bf16_f32 v{Q+4*u+1}, v{k0}, v{k0}")
    set_exec(A, 0, -1)
    for u in range(2):
        off = 2*(2054 - 128*u)
        A(f"ds_write_b32 v10, v{Q+4*u+3} offset:{off}")
        A(f"ds_write_b64 v10, {vr(Q+4*u,2)} offset:{off+4}")
        A(f"ds_write_b32 v10, v{Q+4*u+1} offset:{off+12}")
    A("s_mov_b64 exec, -1")
    Q = 80
    k = [KA+4+r for r in range(4)]
    A(f"v_cvt_pk_bf16_f32 v{Q}, v{k[3]}, v{k[3]}")
    A(f"v_cvt_pk_bf16_f32 v{Q+1}, v{k[2]}, v{k[2]}")
    A(f"v_cvt_pk_bf16_f32 v{Q+2}, v{k[2]}, v{k[1]}")
    A(f"v_cvt_pk_bf16_f32 v{Q+3}, v{k[0]}, v{k[0]}")
    A(f"v_cvt_pk_bf16_f32 v{Q+4}, v{KA+3}, v{KA+2}")
    A(f"v_cvt_pk_bf16_f32 v{Q+5}, v{KA+1}, v{KA}")
    A("s_mov_b64 exec, 0xffffffff")
    off = 2*(2053 - 256)
    A(f"ds_write_b16 v11, v{Q} offset:{off}")
    A(f"ds_write_b32 v11, v{Q+1} offset:{off+2}")
    A(f"ds_write_b64 v11, {vr(Q+2,2)} offset:{off+6}")
    A(f"ds_write_b16 v11, v{Q+3} offset:{off+14}")
    A("s_mov_b64 exec, -1")
    A(f"ds_write_b64 v8, {vr(Q+4,2)} offset:{2*2056}")

def r1_build(A, r0_sreg, r1_sreg, T):
    A("v_lshlrev_b32 v9, 4, v0")
    A(f"v_add_u32 v8, s{r0_sreg}, v9")
    A(f"v_add_u32 v9, s{r1_sreg}, v9")
    for it in range(5):
        if it == 4: A("s_mov_b64 exec, 0xf")
        A(f"ds_read_b128 {vr(T+8*it,4)}, v8 offset:{1024*it}")
        A(f"ds_read_b32 v{T+8*it+4}, v8 offset:{1024*it + 16}")
    A("s_mov_b64 exec, -1")
    A("s_waitcnt lgkmcnt(0)")
    for it in range(5):
        for i in range(4):
            A(f"v_alignbit_b32 v{T+8*it+i}, v{T+8*it+i+1}, v{T+8*it+i}, 16")
        if it == 4: A("s_mov_b64 exec, 0xf")
        A(f"ds_write_b128 v9, {vr(T+8*it,4)} offset:{1024*it}")
    A("s_mov_b64 exec, -1")

def conv(A, r0_sreg, r1_sreg, u_sreg, ch_sreg, hook=None):
    A(f"s_lshl_b32 s65, s{ch_sreg}, 1")
    A("v_mov_b32 v3, s65")
    psrd(A, 4, P_D, None, 1152)
    A.vm("buffer_load_ushort v21, v3, s[4:7], 0 offen")
    A("v_and_b32 v4, 15, v0")
    A("v_lshrrev_b32 v5, 4, v0")
    A("v_lshlrev_b32 v8, 3, v5")
    A("v_sub_u32 v8, v8, v4")
    A("v_add_u32 v8, 2043, v8")
    A("v_and_b32 v9, 1, v8")
    A("v_sub_u32 v8, v8, v9")
    A("v_lshlrev_b32 v8, 1, v8")
    A(f"s_sub_u32 s64, s{r1_sreg}, s{r0_sreg}")
    A("v_mul_lo_u32 v9, v9, s64")
    A("v_add_u32 v8, v8, v9")
    A(f"v_add_u32 v8, s{r0_sreg}, v8")
    RA = 24
    for a in range(4): A(f"v_subrev_u32 v{RA+a}, {960 + 1024*a}, v8")
    A("v_lshlrev_b32 v28, 5, v4")
    A("v_lshl_add_u32 v29, v5, 3, v28")
    A("v_lshl_add_u32 v28, v5, 4, v28")
    A(f"v_add_u32 v28, s{u_sreg}, v28")
    A(f"v_add_u32 v30, s{u_sreg}, v29")
    YA = 32
    FS = [64, 128]
    def creads(rho):
        b = FS[rho & 1]
        o = []
        for a in range(8):
            off = 128*(1 - (a & 1)) + 16*(7 - rho)
            o.append([f"ds_read2_b32 {vr(b+4*a,2)}, v{RA+(a>>1)} offset0:{off} offset1:{off+1}",
                      f"ds_read2_b32 {vr(b+4*a+2,2)}, v{RA+(a>>1)} offset0:{off+2} offset1:{off+3}"])
            o.append([f"ds_read_b128 {vr(b+32+4*a,4)}, v28 offset:{448 - 64*rho + 512*a}"])
        return o
    for g in creads(0): A(g)
    for i in range(32): A(f"v_mov_b32 v{YA+i}, 0")
    for rho in range(8):
        b = FS[rho & 1]
        m = []
        for a in range(8):
            for be in range(8 - a):
                n = a + be
                m.append(f"v_mfma_f32_16x16x32_bf16 {vr(YA+4*n,4)}, {vr(b+4*a,4)}, {vr(b+32+4*be,4)}, {vr(YA+4*n,4)}")
        A("s_waitcnt lgkmcnt(0)")
        A(interleave(m, creads(rho+1) if rho < 7 else [[f"ds_read_b64 {vr(FS[0]+2*n,2)}, v30 offset:{480 + 512*n}"] for n in range(8)]))
        if rho == 1 and hook: hook()
    A(f"s_lshl_b32 s64, s{ch_sreg}, 12")
    A(f"s_add_u32 s64, s64, {WS_AT}")
    psrd(A, 4, P_WS, "s64", 4096)
    A("s_waitcnt vmcnt(0) lgkmcnt(0)")
    A("v_lshlrev_b32 v21, 16, v21")
    A("s_nop 3")
    T = FS[1]; DSK = 21
    for n in range(8):
        for j in range(2):
            u = FS[0] + 2*n + j; y = YA + 4*n + 2*j; t = T + 8*((2*n+j) & 3)
            A(f"v_cvt_pk_bf16_f32 v{t}, v{y}, v{y+1}")
            A(f"v_lshlrev_b32 v{t+2}, 16, v{u}")
            A(f"v_and_b32 v{t+3}, 0xffff0000, v{u}")
            A(f"v_mul_f32 v{t+2}, v{t+2}, v{DSK}")
            A(f"v_mul_f32 v{t+3}, v{t+3}, v{DSK}")
            A(f"v_and_b32 v{t+1}, 0xffff0000, v{t}")
            A(f"v_cvt_pk_bf16_f32 v{t+2}, v{t+2}, v{t+3}")
            A(f"v_lshlrev_b32 v{t}, 16, v{t}")
            A(f"v_and_b32 v{t+3}, 0xffff0000, v{t+2}")
            A(f"v_lshlrev_b32 v{t+2}, 16, v{t+2}")
            A(f"v_add_f32 v{t+1}, v{t+1}, v{t+3}")
            A(f"v_add_f32 v{t}, v{t}, v{t+2}")
            A(f"v_cvt_pk_bf16_f32 v{u}, v{t}, v{t+1}")
        A.vm(f"buffer_store_dwordx2 {vr(FS[0]+2*n,2)}, v29, s[4:7], 0 offen offset:{512*n} sc1")
```

```python
import sys
from fz_common import *
import fz_ssm as ssm
NAME = "gated_mix__ssm_conv_s4d__mixer_gmlp__prompt_kernel"
NSSM = 144
OPT = set(a[2:] for a in sys.argv if a.startswith("--"))
U_BASE = 81920
R1_BASE = 3*STG
LDS_AT = 3*STG + 19456
LDS_G = LDS_AT + 10240
XH = LDS_X + 1024 + 4*ssm.RSZ
LDS_CNT = XH + 4096
ZL = 64
S_O1, S_O3, S_CW, S_CH = 3, 75, 31, 30
S_R0 = 0
S_UTQ = 0
S_K0 = 1
KHOOK = 4500
PSLEEP = 8 if 'ps8' in OPT else 2 if 'ps2' in OPT else 4
S_KS, S_KR = 24, 31
KB0, KB1, KB2, KBG = 3000, 2300, 1100, 150
NPRE = 2 if 'pre2' in OPT else 4 if 'pre4' in OPT else 3
KSPLIT = (0.40, 0.50)
VB, VA = 250, 251
n = NAME

def touch(A, p, nbytes, idx_sreg, vdst, lbl):
    if "notouch" in OPT: return
    A(f"s_cmp_ge_u32 s{idx_sreg}, {(nbytes + 8191) // 8192}")
    A(f"s_cbranch_scc1 {lbl}")
    psrd(A, 4, p, None, nbytes)
    A(f"s_lshl_b32 s64, s{idx_sreg}, 13")
    A(f"buffer_load_dword v{vdst}, v1, s[4:7], s64 offen")
    if "touch64" in OPT:
        A(f"buffer_load_dword v{vdst+1}, v1, s[4:7], s64 offen offset:64")
    A.label(lbl)

def header(H):
    kernel_begin(H, n)
    H("s_cmp_ge_u32 s2, 256")
    H(f"s_cbranch_scc1 {n}_end")
    H("s_load_dwordx16 s[32:47], s[0:1], 0")
    H("s_load_dwordx16 s[48:63], s[0:1], 64")
    H.stamp(0); H.stamp(1, True)
    H("v_lshrrev_b32 v1, 6, v0")
    H("s_and_b32 s3, s2, 7")
    H("s_lshr_b32 s30, s2, 3")
    H(f"v_readfirstlane_b32 s{S_WAVE}, v1")
    H("s_and_b32 s64, s3, 3")
    H("s_lshl_b32 s64, s64, 2")
    H("s_and_b32 s65, s30, 3")
    H(f"s_add_u32 s{S_FT}, s64, s65")
    H("s_lshr_b32 s64, s3, 2")
    H("s_lshr_b32 s66, s30, 2")
    if "ttblk" in OPT:
        H("s_lshl_b32 s64, s64, 3")
    else:
        H("s_lshl_b32 s66, s66, 1")
    H(f"s_add_u32 s{S_TT}, s64, s66")
    if "map3new" not in OPT:
        H("s_lshr_b32 s64, s3, 1")
        H("s_lshl_b32 s64, s64, 3")
        H("s_lshr_b32 s66, s30, 2")
        H(f"s_add_u32 s{S_T64}, s64, s66")
        H("s_and_b32 s64, s3, 1")
        H("s_lshl_b32 s64, s64, 2")
        H(f"s_add_u32 s{S_J}, s64, s65")
    else:
        H("s_lshl_b32 s64, s3, 2")
        H("s_lshr_b32 s65, s30, 3")
        H(f"s_add_u32 s{S_T64}, s64, s65")
        H(f"s_and_b32 s{S_J}, s30, 7")
    H(f"s_and_b32 s{S_W}, s{S_WAVE}, 3")
    H("v_and_b32 v0, 63, v0")
    H(f"s_cmp_ge_u32 s{S_WAVE}, 4")
    H(f"s_cbranch_scc1 {n}_L")
    H("s_getpc_b64 s[64:65]")
    H.label(f"{n}_pc")
    H(f"s_sub_u32 s4, s64, {n}_pc-{n}")
    H("s_subb_u32 s5, s65, 0")
    H(f"s_mov_b32 s6, {n}_end-{n}")
    H("s_mov_b32 s7, 0x20000")
    H("s_lshl_b32 s66, s30, 2")
    H(f"s_add_u32 s66, s66, s{S_W}")
    H("s_lshl_b32 s66, s66, 10")
    H("v_lshlrev_b32 v1, 4, v0")
    H("buffer_load_dwordx4 v[240:243], v1, s[4:7], s66 offen")
    late_ids(H)
    H("s_waitcnt lgkmcnt(0)")
    H(f"s_cmp_ge_u32 s{S_FT}, 9")
    H(f"s_cbranch_scc1 {n}_C")
    ssm.kgen_load(H, S_CH)
    H(f"s_branch {n}_C")
    H.label(f"{n}_L")

def late_ids(A):
    A(f"s_lshl_b32 s64, s{S_TT}, 4")
    A(f"s_add_u32 s{S_O1}, s64, s{S_FT}")
    A(f"s_lshl_b32 s64, s{S_T64}, 3")
    A(f"s_add_u32 s{S_O3}, s64, s{S_J}")
    A(f"s_lshl_b32 s{S_CW}, s2, 2")
    A(f"s_add_u32 s{S_CW}, s{S_CW}, s{S_W}")
    A(f"s_lshl_b32 s64, s{S_FT}, 4")
    A(f"s_add_u32 s64, s64, s{S_TT}")
    A(f"s_lshl_b32 s64, s64, 2")
    A(f"s_add_u32 s{S_CH}, s64, s{S_W}")

def gen_L(A, diag):
    A.vshift = 190
    rowperm_voff(A, 2, 1152)
    A("v_lshrrev_b32 v6, 4, v0")
    A(f"s_and_b32 s64, s{S_W}, 1")
    A("s_lshl_b32 s65, s64, 2")
    A("v_add_u32 v7, s65, v6")
    A("v_and_b32 v8, 15, v0")
    A("v_lshlrev_b32 v7, 1, v7")
    A("v_xor_b32 v8, v8, v7")
    A("s_lshl_b32 s65, s64, 3")
    A(f"s_lshr_b32 s66, s{S_W}, 1")
    A("s_lshl_b32 s66, s66, 2")
    A("s_add_u32 s65, s65, s66")
    A("v_add_u32 v6, s65, v6")
    A("v_mul_u32_u24 v6, 9216, v6")
    A("v_lshl_add_u32 v3, v8, 4, v6")
    A(f"s_lshl_b32 s65, s{S_FT}, 8")
    A("v_add_u32 v3, s65, v3")
    A("v_lshrrev_b32 v6, 1, v0")
    A("v_and_b32 v7, 3, v6")
    A("v_and_b32 v8, 4, v6")
    A("v_lshl_or_b32 v7, v8, 1, v7")
    A("v_and_b32 v8, 8, v6")
    A("v_lshrrev_b32 v8, 1, v8")
    A("v_or_b32 v7, v7, v8")
    A(f"s_lshl_b32 s65, s{S_W}, 4")
    A("v_add_u32 v7, s65, v7")
    A("v_mul_u32_u24 v7, 9216, v7")
    A("v_and_b32 v8, 1, v0")
    A("v_lshl_add_u32 v4, v8, 4, v7")
    A(f"s_lshl_b32 s64, s{S_FT}, 5")
    A("s_add_u32 s64, s64, 4096")
    A("v_add_u32 v4, s64, v4")
    A(f"s_lshl_b32 s68, s{S_W}, 10")
    A(f"s_lshl_b32 s69, s{S_W}, 9")
    A("s_add_u32 s69, s69, 16384")
    A(f"s_mul_i32 s64, s{S_TT}, {128*1152}")
    A("s_waitcnt lgkmcnt(0)")
    psrd(A, 8, P_U, "s64", 128*1152)
    psrd(A, 12, P_WIN, None, 576*9216)
    ready = {}
    A(f"s_and_b32 s74, s{S_TT}, 7" if "ttblk" in OPT else f"s_lshr_b32 s74, s{S_TT}, 1")
    A(f"s_and_b32 s64, s{S_FT}, 3")
    A("s_lshl_b32 s64, s64, 1")
    A("s_add_u32 s74, s74, s64")
    A("s_cmp_ge_u32 s74, 9")
    A("s_cselect_b32 s64, 9, 0")
    A("s_sub_u32 s74, s74, s64")
    if "norot" in OPT: A("s_mov_b32 s74, 0")
    A(f"s_sub_u32 s{S_UTQ}, s{S_FT}, s74")
    A(f"s_cmp_lt_i32 s{S_UTQ}, 0")
    A("s_cselect_b32 s64, 9, 0")
    A(f"s_add_u32 s{S_UTQ}, s{S_UTQ}, s64")
    A(f"s_cmp_ge_u32 s{S_FT}, 9")
    A(f"s_cselect_b32 s{S_UTQ}, 99, s{S_UTQ}")
    def dma_g1(q):
        base = (q % S) * STG
        A(f"s_mul_i32 s72, s74, {64*9216}")
        A("s_lshl_b32 s73, s74, 7")
        if q < 9: A("s_add_u32 s72, s72, 4608")
        for i in range(4):
            A(f"s_add_u32 m0, s68, {base + i*4096}")
            A(f"s_add_u32 s70, s72, {i*16*9216}")
            A.vm("buffer_load_dwordx4 v3, s[12:15], s70 offen lds")
            A(f"s_add_u32 m0, s68, {base + 18432 + i*4096}")
            A(f"s_add_u32 s71, s73, {i*32*1152}")
            A.vm("buffer_load_dwordx4 v2, s[8:11], s71 offen lds")
        A(f"s_add_u32 m0, s69, {base}")
        A("s_mov_b64 exec, 0xffffffff")
        ready[q] = A.vm("buffer_load_dwordx4 v4, s[12:15], s72 offen lds")
        A("s_mov_b64 exec, -1")
        A("s_add_u32 s74, s74, 1")
        A("s_cmp_eq_u32 s74, 9")
        A("s_cselect_b32 s74, 0, s74")
    def kst(cnt, dst):
        A(f"s_add_u32 s{dst}, s{cnt}, s{S_FT}")
        A(f"s_and_b32 s{dst}, s{dst}, 3")
        A(f"s_andn2_b32 s64, s{cnt}, 3")
        A(f"s_or_b32 s{dst}, s{dst}, s64")
        A(f"s_cmp_lt_u32 s{cnt}, {0 if 'noquad' in OPT else 28}")
        A(f"s_cselect_b32 s{dst}, s{dst}, s{cnt}")
        A(f"s_add_u32 s{dst}, s{dst}, s{S_K0}")
        A(f"s_and_b32 s{dst}, s{dst}, 31")
        A(f"s_add_u32 s{cnt}, s{cnt}, 1")
    def dma_g2_B(sb):
        kst(72, 66)
        A("s_lshl_b32 s66, s66, 7")
        for i in range(4):
            if isinstance(sb, str):
                A(f"s_add_u32 m0, s68, {sb}"); A(f"s_add_u32 m0, m0, {18432 + i*4096}")
            else:
                A(f"s_add_u32 m0, s68, {sb + 18432 + i*4096}")
            A(f"s_add_u32 s70, s66, {i*131072}")
            r = A.vm(f"buffer_load_dwordx4 v{VB}, s[16:19], s70 offen lds")
        return r
    def dma_g2_A(sb):
        kst(73, 66)
        A("s_mul_i32 s66, s66, 18432")
        A(f"s_add_u32 m0, s67, {sb}")
        A("s_add_u32 s70, s66, s67")
        for i in range(4):
            A.vm(f"buffer_load_dwordx4 v{VA}, s[20:23], s70 offen offset:{1024*i} sc1 lds")
        A(f"s_add_u32 m0, s69, {sb}")
        A("s_add_u32 s70, s66, s69")
        A("s_mov_b64 exec, 0xffffffff")
        r = A.vm(f"buffer_load_dwordx4 v{VA}, s[20:23], s70 offen sc1 lds")
        A("s_mov_b64 exec, -1")
        return r
    sl = lambda q: (q % S) * STG

    for q in range(NPRE): dma_g1(q)
    issued = NPRE
    A.stamp(2)
    A.wait_vm(ready[0]); A.bar("B0")
    A.stamp(3)
    if issued < 3: dma_g1(2); issued = 3
    late_ids(A)
    rowperm_voff(A, VB, 4096)
    A(f"v_lshlrev_b32 v{VA}, 4, v0")
    A(f"s_lshl_b32 s64, s{S_TT}, 19")
    psrd(A, 16, P_WSP, "s64", 128*4096)
    A(f"s_mul_i32 s64, s{S_FT}, {32*18432}")
    A(f"s_add_u32 s64, s64, {WS_Z2F}")
    psrd(A, 20, P_WS, "s64", 32*18432)
    A(f"s_lshl_b32 s67, s{S_W}, 12")
    A("v_and_b32 v5, 15, v0")
    A("v_lshrrev_b32 v6, 4, v0")
    A("v_lshrrev_b32 v7, 2, v5")
    A("v_lshl_add_u32 v8, v6, 2, v7")
    A("v_lshrrev_b32 v9, 1, v8")
    A("v_bfe_u32 v10, v0, 1, 1")
    A("v_xor_b32 v9, v9, v10")
    A("v_lshlrev_b32 v9, 4, v9")
    A("v_lshl_add_u32 v9, v8, 7, v9")
    A("v_and_b32 v10, 1, v0")
    A("v_lshl_add_u32 v9, v10, 3, v9")
    A(f"s_and_b32 s64, s{S_UTQ}, 3")
    A(f"s_mul_i32 s64, s64, {STG}")
    A("s_add_u32 s64, s64, s67")
    A("s_add_u32 s64, s64, 18432")
    A("v_add_u32 v13, s64, v9")
    A("v_lshlrev_b32 v14, 12, v5")
    A("v_lshl_add_u32 v14, v6, 4, v14")
    def ut_job(q):
        if "nout" in OPT: return
        A(f"s_cmp_lg_u32 s{S_UTQ}, {q}")
        A(f"s_cbranch_scc1 {n}_Lut{q}")
        A(f"s_getpc_b64 s[64:65]")
        A.label(f"{n}_Lpc{q}")
        A(f"s_add_u32 s64, s64, {n}_Lutf-{n}_Lpc{q}")
        A("s_addc_u32 s65, s65, 0")
        A("s_swappc_b64 s[70:71], s[64:65]")
        A.label(f"{n}_Lut{q}")
    ut_job(0)
    for q in range(18):
        if q == 16: continue
        if q + 1 < 18: A.wait_vm(ready[17 if q == 15 else q+1])
        A.bar(f"M{q}")
        if "mstamp" in OPT and "m2" not in OPT and q < 8: A.stamp(4 + q)
        if "m2" in OPT and q == 7: A.used = {8}
        if "m2" in OPT and q >= 9 and q != 13: A.used.discard(8); A.stamp(4 + q - 9 - (q > 13))
        if q == 9:
            A(f"v_add_u32 v5, s68, v{VA}")
            for t in range(8): A(f"ds_read_b128 {vr(ZL+4*t,4)}, v5 offset:{(t>>2)*18432 + (t&3)*4096}")
            A(f"v_add_u32 v5, {XH}, v5")
            A(f"ds_read_b128 {vr(ZL+32,4)}, v5")
            A("s_waitcnt lgkmcnt(0)")
        if q == 13: ln_stats_issue(A)
        k = 0
        while issued < 18 and issued <= q + S and k < 2 and q != 8:
            dma_g1(issued); issued += 1; k += 1
        if q + 1 < 9: ut_job(q + 1)
        if q == 0:
            A(f"s_cmp_lg_u32 s{S_W}, 0")
            A(f"s_cbranch_scc1 {n}_Lns0")
            A("s_and_b32 s66, s2, 15")
            A("s_lshl_b32 s66, s66, 2")
            A("s_mov_b32 s65, 1")
            A(f"s_atomic_add s65, s[{P_DBG}:{P_DBG+1}], s66")
            A.label(f"{n}_Lns0")
        if q == 7:
            wot_issue(A)
            gate_issue(A)
        if q == 8:
            ut_store(A)
            A("s_waitcnt vmcnt(0)")
            wot_unit(A, 0)
            if "notouch" not in OPT:
                psrd(A, 4, P_WSP, None, 2048*4096)
                A("s_lshl_b32 s64, s2, 2")
                A(f"s_add_u32 s64, s64, s{S_W}")
                A("s_lshl_b32 s64, s64, 13")
                A("v_lshlrev_b32 v5, 7, v0")
                A.vm("buffer_load_dword v6, v5, s[4:7], s64 offen")
            gate_job(A, 0); gate_job(A, 1)
            A.stamp(8)
        if q == 10:
            psrd(A, 4, P_DBG, None, 256)
            A("v_and_b32 v5, 15, v0")
            A("v_lshlrev_b32 v5, 2, v5")
            r_init = A.vm("buffer_load_dword v6, v5, s[4:7], 0 offen sc1")
        if q == 12:
            A.wait_vm(r_init)
            A("v_cmp_le_u32 vcc, 16, v6")
            A("s_nop 0")
            A("s_cmp_eq_u32 vcc_lo, -1")
            A(f"s_cbranch_scc1 {n}_Li_ok")
            init_wait(A, f"{n}_Li", 5, 4)
        if q == 13:
            A("s_mov_b32 s72, -2")
            A("s_mov_b32 s73, 0")
            A(f"s_lshl_b32 s{S_K0}, s{S_TT}, 1")
            A(f"s_add_u32 s{S_K0}, s{S_K0}, 2")
            assert issued == 18
        if q == 14:
            A.stamp(4)
            ln_stats(A)
            A.stamp(5)
        if q == 15:
            r_z2 = ln_norm(A, range(9))
            dma_g2_B(sl(18)); dma_g2_B(sl(19))
            own_tile(A)
        if q == 17:
            dma_g2_B(sl(20)); dma_g2_B(sl(21))
    psrd(A, 8, P_WS, WS_MB, 4*MBSZ)
    A.wait_vm(r_z2)
    lds_arrive(A, [f"v_mov_b32 v10, {LDS_CNT + 4}"], 10, 3, f"{n}_Lnz")
    mb_push(A, MB_Z2, 16, ["v_lshlrev_b32 v10, 4, v0", f"v_add_u32 v10, s{S_FT}, v10"], S_TT, 10, 8)
    A.label(f"{n}_Lnz")
    A.stamp(6)
    wot_unit(A, 1)
    wg_wait(A, f"{n}_Lgz", S_W, LDS_CNT + 16, 10, lambda: mb_wait(A, f"{n}_Lz2", MB_Z2, S_O1, 16, 10, 8, sleep=PSLEEP))
    A("s_waitcnt vmcnt(0)")
    A.stamp(7)
    ready[20] = dma_g2_A(sl(20)); ready[21] = dma_g2_A(sl(21))
    A("s_waitcnt lgkmcnt(0)")
    A.bar("G2S")
    A(f"s_cmp_lg_u32 s{S_W}, 0")
    A(f"s_cbranch_scc1 {n}_Lnw")
    A(f"s_sub_u32 s65, s{S_CH}, 576")
    A("s_lshr_b32 s65, s65, 2")
    A("s_cmp_ge_u32 s65, 72")
    A(f"s_cbranch_scc1 {n}_Lnw")
    A("s_mul_i32 s66, s65, 57")
    A("s_lshr_b32 s66, s66, 9")
    A("s_mul_i32 s70, s66, 9")
    A("s_sub_u32 s70, s65, s70")
    mb_push(A, MB_WF, 32, ["v_lshlrev_b32 v20, 3, v0", "v_add_u32 v20, s66, v20"], 70, 20, 8)
    A.label(f"{n}_Lnw")
    A.bar("N18")
    dma_g2_B(sl(22)); ready[22] = dma_g2_A(sl(22))
    A.wait_vm(ready[20]); A.bar("N19")
    dma_g2_B(sl(23)); ready[23] = dma_g2_A(sl(23))
    A.wait_vm(ready[21]); A.bar("N20")
    dma_g2_B(sl(24)); ready[24] = dma_g2_A(sl(24))
    A(f"s_mov_b32 s74, {sl(25)}")
    def service():
        A("s_waitcnt vmcnt(18)")
        A("s_barrier")
        dma_g2_B("s74"); dma_g2_A("s74")
        A(f"s_add_u32 s74, s74, {STG}")
        A(f"s_cmp_eq_u32 s74, {S*STG}")
        A("s_cselect_b32 s74, 0, s74")
        A("s_sub_u32 s71, s71, 1")
    def loop(lbl, cnt):
        A(f"s_mov_b32 s71, {cnt}")
        A.label(lbl)
        service()
        A("s_cmp_lg_u32 s71, 0")
        A(f"s_cbranch_scc1 {lbl}")
    loop(f"{n}_Lg2", 12)
    A(f"s_lshl_b32 s64, s{S_O3}, 8")
    A(f"s_add_u32 s64, s64, {MB_WF - WS_MB}")
    A("v_min_u32 v10, 8, v0")
    A("v_lshlrev_b32 v10, 2, v10")
    A("buffer_load_dword v11, v10, s[8:11], s64 offen sc1")
    loop(f"{n}_Lg2b", TPOS - 12)
    A("v_cmp_eq_u32 vcc, 0, v11")
    A("s_nop 0")
    A("s_cmp_eq_u64 vcc, 0")
    A(f"s_cbranch_scc1 {n}_Lw_ok")
    mb_wait(A, f"{n}_Lw", MB_WF, S_O3, 9, 10, 8)
    if "touchA" in OPT:
        nsh = 4 if "map3new" in OPT else 8
        per = 2592 // (4*nsh)
        A(f"s_mul_i32 s64, s{S_J}, {72*4608}")
        A(f"s_add_u32 s64, s64, {WS_WOT}")
        psrd(A, 4, P_WS, "s64", 72*4608)
        A(f"s_and_b32 s64, s{S_T64}, {nsh-1}")
        A("s_lshl_b32 s64, s64, 2")
        A(f"s_add_u32 s64, s64, s{S_W}")
        A(f"s_mul_i32 s64, s64, {per*128}")
        A("v_lshlrev_b32 v10, 7, v0")
        done = 0
        while done < per:
            st = min(done, per - 64)
            A(f"s_add_u32 s65, s64, {st*128}")
            A("buffer_load_dword v11, v10, s[4:7], s65 offen sc1")
            done = st + 64
    loop(f"{n}_Lg2c", 25 - TPOS)
    for q in range(21, 46): A.bars.append(f"N{q}")
    A("s_waitcnt vmcnt(18)"); A.bar("N46")
    g3_main(A)
    if diag:
        A.stamp(12, True)
        stamp_dump(A, f"{n}_Ld", 1)
    A("s_endpgm")
    A.vshift = 190
    A.label(f"{n}_Lutf")
    for cb in range(4):
        A(f"v_xor_b32 v15, {32*cb}, v13")
        for a in range(2):
            A(f"ds_read_b64_tr_b16 {vr(UR+4*cb+2*a,2)}, v15 offset:{a*2048}")
    A("s_waitcnt lgkmcnt(0)")
    A("s_setpc_b64 s[70:71]")

UR = 160
def ut_store(A):
    A(f"s_cmp_ge_u32 s{S_FT}, 9")
    A(f"s_cbranch_scc1 {n}_Lus")
    A(f"s_lshl_b32 s64, s{S_FT}, 18")
    A(f"s_lshl_b32 s65, s{S_TT}, 8")
    A("s_add_u32 s64, s64, s65")
    A(f"s_lshl_b32 s65, s{S_W}, 6")
    A("s_add_u32 s64, s64, s65")
    A(f"s_add_u32 s64, s64, {WS_UT}")
    psrd(A, 4, P_WS, "s64", 63*4096 + 64)
    for cb in range(4):
        A(f"s_mov_b32 s64, {cb*65536}")
        A(f"buffer_store_dwordx4 {vr(UR+4*cb,4)}, v14, s[4:7], s64 offen sc1")
    A.label(f"{n}_Lus")

def ln_loads(A, T=16):
    for j in range(8):
        A(f"buffer_load_dwordx2 {vr(T+2*j,2)}, v{7 if j < 4 else 9}, s[4:7], s0 offen offset:{(j&3)*1024} sc1")

def ln_stats_issue(A):
    A(f"s_lshl_b32 s65, s{S_TT}, 14")
    A(f"s_add_u32 s65, s65, {WS_ST}")
    psrd(A, 4, P_WS, "s65", 16384)
    A("v_and_b32 v6, 31, v0")
    A("v_lshlrev_b32 v6, 3, v6")
    A("v_lshrrev_b32 v7, 5, v0")
    A("v_lshl_add_u32 v7, v7, 13, v6")
    A(f"s_lshl_b32 s0, s{S_W}, 8")
    A("v_add_u32 v9, 4096, v7")
    ln_loads(A); A.nvm += 8

def ln_stats(A):
    T = 16
    A("s_mov_b32 s65, 0")
    A("s_waitcnt vmcnt(9)")
    A(f"s_branch {n}_Lst_chk")
    A.label(f"{n}_Lst_poll")
    ln_loads(A)
    A("s_waitcnt vmcnt(0)")
    A.label(f"{n}_Lst_chk")
    A(f"v_max_u32 v8, v{T}, v{T+1}")
    for j in range(1, 8): A(f"v_max3_u32 v8, v8, v{T+2*j}, v{T+2*j+1}")
    A("v_cmp_eq_u32 vcc, -1, v8")
    A("s_add_u32 s65, s65, 1")
    A("s_cmp_eq_u64 vcc, 0")
    A(f"s_cbranch_scc1 {n}_Lst_ok")
    A("s_sleep 4")
    A("s_cmp_lt_u32 s65, 50000")
    A(f"s_cbranch_scc1 {n}_Lst_poll")
    A.label(f"{n}_Lst_ok")
    A(f"s_add_u32 s74, s0, {LDS_X}")
    A("v_add_u32 v6, s74, v6")
    for stp in (4, 2, 1):
        for j in range(stp):
            A(f"v_add_f32 v{T+2*j}, v{T+2*j}, v{T+2*(j+stp)}")
            A(f"v_add_f32 v{T+2*j+1}, v{T+2*j+1}, v{T+2*(j+stp)+1}")
    A(f"v_mov_b32 v{T+2}, v{T}")
    A(f"v_mov_b32 v{T+3}, v{T+1}")
    A("s_nop 1")
    A(f"v_permlane32_swap_b32 v{T}, v{T+2}")
    A(f"v_permlane32_swap_b32 v{T+1}, v{T+3}")
    A("s_nop 1")
    A(f"v_add_f32 v{T}, v{T}, v{T+2}")
    A(f"v_add_f32 v{T+1}, v{T+1}, v{T+3}")
    A(f"v_mul_f32 v{T}, {f32(1/2304)}, v{T}")
    A(f"v_mul_f32 v{T+1}, {f32(1/2304)}, v{T+1}")
    A(f"v_fma_f32 v{T+1}, -v{T}, v{T}, v{T+1}")
    A(f"v_max_f32 v{T+1}, 0, v{T+1}")
    bf16_round(A, T); bf16_round(A, T+1)
    A(f"v_add_f32 v{T+1}, {f32(1e-5)}, v{T+1}")
    bf16_round(A, T+1)
    A(f"v_sqrt_f32 v{T+1}, v{T+1}")
    A("s_nop 0")
    bf16_round(A, T+1)
    A(f"v_rcp_f32 v{T+2}, v{T+1}")
    A("s_nop 0")
    A(f"v_mul_f32 v{T+3}, v{T}, v{T+2}")
    A(f"v_sub_f32 v{T+3}, 0, v{T+3}")
    A(f"ds_write_b64 v6, {vr(T+2,2)}")
    A("v_lshrrev_b32 v7, 4, v0")
    A("v_lshlrev_b32 v7, 6, v7")
    A("v_add_u32 v7, s74, v7")
    for i in range(4): A(f"ds_read_b128 {vr(LSC+4*i,4)}, v7 offset:{16*i}")
    A(f"s_lshl_b32 s65, s{S_FT}, 5")
    A(f"s_lshl_b32 s71, s{S_TT}, 1")
    A("s_add_u32 s65, s65, s71")
    A("s_mul_i32 s65, s65, 18432")
    A(f"s_mul_i32 s71, s{S_W}, 9216")
    A("s_add_u32 s65, s65, s71")
    A(f"s_add_u32 s65, s65, {WS_Z2F}")
    psrd(A, 4, P_WS, "s65", 9216)
    A("s_movk_i32 s71, 4096")
    A("s_movk_i32 s74, 8192")
    A("s_waitcnt lgkmcnt(0)")

LSC = 100
def ln_norm(A, tiles):
    for t in tiles:
        tb = 16 + 8*(t & 1)
        for j in range(4):
            A(f"v_lshlrev_b32 v{tb+2*j}, 16, v{ZL+4*t+j}")
            A(f"v_and_b32 v{tb+2*j+1}, 0xffff0000, v{ZL+4*t+j}")
        for i in range(8): A(f"v_fma_f32 v{tb+i}, v{tb+i}, v{LSC+2*i}, v{LSC+2*i+1}")
        for j in range(4): A(f"v_cvt_pk_bf16_f32 v{ZL+4*t+j}, v{tb+2*j}, v{tb+2*j+1}")
        so = ["0", "s71", "s74"][t >> 2]
        r = A.vm(f"buffer_store_dwordx4 {vr(ZL+4*t,4)}, v{VA}, s[4:7], {so} offen offset:{(t&3)*1024} sc1")
    return r

def own_tile(A):
    A(f"s_lshr_b32 s64, s{S_W}, 1")
    A(f"s_mul_i32 s64, s64, {STG}")
    A(f"s_and_b32 s66, s{S_W}, 1")
    A("s_mul_i32 s66, s66, 9216")
    A("s_add_u32 s64, s64, s66")
    A(f"s_add_u32 s64, s64, {(18 % S)*STG}")
    A(f"v_add_u32 v7, s64, v{VA}")
    for t in range(9): A(f"ds_write_b128 v7, {vr(ZL+4*t,4)} offset:{t*1024}")

GX, GW = 120, 156
def gate_issue(A):
    A(f"s_cmp_lt_u32 s{S_FT}, 12")
    A(f"s_cbranch_scc1 {n}_gi")
    psrd(A, 4, P_U, None, 2048*1152)
    A(f"s_lshl_b32 s64, s{S_TT}, 2")
    A(f"s_add_u32 s64, s64, s{S_FT}")
    A("s_sub_u32 s64, s64, 12")
    A("s_lshl_b32 s64, s64, 2")
    A(f"s_add_u32 s64, s64, s{S_W}")
    A("s_lshl_b32 s64, s64, 3")
    A("v_lshrrev_b32 v45, 4, v0")
    A("v_add_u32 v45, s64, v45")
    A("v_and_b32 v6, 15, v0")
    A("v_lshlrev_b32 v6, 3, v6")
    A("v_mul_u32_u24 v7, 1152, v45")
    A("v_add_u32 v7, v7, v6")
    A(f"s_movk_i32 s64, {4*1152}")
    for rd in range(2):
        for i in range(9): A(f"buffer_load_dwordx2 {vr(GX+18*rd+2*i,2)}, v7, s[4:7], {'s64' if rd else '0'} offen offset:{128*i}")
    psrd(A, 4, P_GATE, None, 1152)
    for i in range(9): A(f"buffer_load_dwordx2 {vr(GW+2*i,2)}, v6, s[4:7], 0 offen offset:{128*i}")
    A.label(f"{n}_gi")

def gate_job(A, rd=0):
    A(f"s_cmp_lt_u32 s{S_FT}, 12")
    A(f"s_cbranch_scc1 {n}_gj{rd}")
    A("v_mov_b32 v8, 0")
    A("v_mov_b32 v9, 0x3f803f80")
    for i in range(18):
        t = 36 + 4*(i & 1)
        A(f"v_lshlrev_b32 v{t}, 16, v{GX+18*rd+i}")
        A(f"v_and_b32 v{t+1}, 0xffff0000, v{GX+18*rd+i}")
        A(f"v_lshlrev_b32 v{t+2}, 16, v{GW+i}")
        A(f"v_and_b32 v{t+3}, 0xffff0000, v{GW+i}")
        A(f"v_mul_f32 v{t}, v{t}, v{t+2}")
        A(f"v_mul_f32 v{t+1}, v{t+1}, v{t+3}")
        A(f"v_cvt_pk_bf16_f32 v{t}, v{t}, v{t+1}")
        A(f"v_and_b32 v{t+1}, 0xffff0000, v{t}")
        A(f"v_lshlrev_b32 v{t}, 16, v{t}")
        A(f"v_add_f32 v8, v8, v{t+1}")
        A(f"v_add_f32 v8, v8, v{t}")
    for rot in (8, 4, 2, 1):
        A("s_nop 1")
        A(f"v_add_f32_dpp v8, v8, v8 row_ror:{rot} row_mask:0xf bank_mask:0xf")
    bf16_round(A, 8)
    A(f"v_mul_f32 v8, {f32(-LOG2E)}, v8")
    A("v_exp_f32 v8, v8")
    A("s_nop 0")
    A("v_add_f32 v8, 1.0, v8")
    A("v_rcp_f32 v8, v8")
    A("s_nop 0")
    bf16_round(A, 8)
    A("v_sub_f32 v9, 1.0, v8")
    bf16_round(A, 9)
    psrd(A, 4, P_WS, WS_G, 2048*8)
    A("v_lshlrev_b32 v5, 3, v45")
    set_exec(A, 0x00010001, 0x00010001)
    A(f"buffer_store_dwordx2 v[8:9], v5, s[4:7], 0 offen offset:{32*rd} sc1")
    A("s_mov_b64 exec, -1")
    A.label(f"{n}_gj{rd}")

def wot_issue(A):
    for i in range(5):
        A(f"v_add_u32 v8, {64*i}, v0")
        A("v_mul_u32_u24 v9, 7282, v8")
        A("v_lshrrev_b32 v9, 16, v9")
        A("v_mul_u32_u24 v10, 9, v9")
        A("v_sub_u32 v10, v8, v10")
        A("v_mul_u32_u24 v9, 1152, v9")
        A(f"v_lshl_add_u32 v{40+i}, v10, 4, v9")
    A(f"s_sub_u32 s65, s{S_CH}, 576")
    A("s_lshr_b32 s1, s65, 2")
    A("s_cmp_ge_u32 s1, 72")
    A(f"s_cbranch_scc1 {n}_sj1")
    A("s_mul_i32 s64, s1, 57")
    A("s_lshr_b32 s64, s64, 9")
    A("s_mul_i32 s66, s64, 9")
    A("s_sub_u32 s66, s1, s66")
    A("s_lshl_b32 s66, s66, 2")
    A(f"s_add_u32 s66, s66, s{S_W}")
    A("s_lshl_b32 s66, s66, 1")
    A("s_mul_i32 s24, s64, 72")
    A("s_add_u32 s24, s24, s66")
    A(f"s_mul_i32 s0, s66, {32*1152}")
    A("s_mul_i32 s64, s64, 144")
    A("s_add_u32 s0, s0, s64")
    A(f"s_mul_i32 s31, s{S_W}, {ssm.RSZ}")
    A(f"s_add_u32 s31, s31, {LDS_X + 1024}")
    psrd(A, 4, P_WOUT, None, 2304*1152)
    wot_dma(A)
    A.label(f"{n}_sj1")

def wot_dma(A):
    for i in range(5):
        A(f"s_add_u32 m0, s31, {1024*i}")
        A("s_mov_b64 exec, 0xffffffff" if i == 4 else "s_nop 0")
        A(f"buffer_load_dwordx4 v{40+i}, s[4:7], s0 offen lds")
    A("s_mov_b64 exec, -1")

def wot_unit(A, u):
    A(f"s_sub_u32 s65, s{S_CH}, 576")
    A("s_cmp_ge_u32 s65, 288")
    A(f"s_cbranch_scc1 {n}_sj2{u}")
    A("v_lshrrev_b32 v5, 2, v0")
    A("v_mul_u32_u24 v5, 144, v5")
    A("v_and_b32 v6, 3, v0")
    A("v_lshl_add_u32 v7, v6, 4, v5")
    A("v_add_u32 v7, s31, v7")
    A("v_lshl_add_u32 v8, v6, 3, v5")
    A("v_add_u32 v8, s31, v8")
    A("v_lshlrev_b32 v9, 4, v0")
    A("v_and_b32 v10, 7, v0")
    A("v_lshrrev_b32 v13, 4, v0")
    A("v_lshl_add_u32 v10, v13, 3, v10")
    A("v_lshlrev_b32 v10, 4, v10")
    A("v_add_u32 v10, 4096, v10")
    for q in range(5):
        for h in range(2):
            if q < 4: A(f"ds_read_b64_tr_b16 {vr(16+4*q+2*h,2)}, v7 offset:{h*16*144 + 64*(q>>1) + 8*(q&1)}")
            else:     A(f"ds_read_b64_tr_b16 {vr(16+4*q+2*h,2)}, v8 offset:{h*16*144 + 128}")
    A("s_waitcnt lgkmcnt(0)")
    if u == 0:
        psrd(A, 4, P_WOUT, None, 2304*1152)
        A(f"s_add_u32 s0, s0, {32*1152}")
        wot_dma(A)
    A("s_mul_i32 s64, s24, 4608")
    A(f"s_add_u32 s64, s64, {WS_WOT + u*4608}")
    psrd(A, 4, P_WS, "s64", 4608)
    for q in range(4):
        A(f"buffer_store_dwordx4 {vr(16+4*q,4)}, v9, s[4:7], 0 offen offset:{1024*q} sc1")
    set_exec(A, 0x00ff00ff, 0x00ff00ff)
    A(f"buffer_store_dwordx4 {vr(32,4)}, v10, s[4:7], 0 offen sc1")
    A("s_mov_b64 exec, -1")
    A.label(f"{n}_sj2{u}")

def sinit_wait(A, lbl):
    A("s_mov_b32 s64, 0")
    A.label(f"{lbl}_poll")
    A(f"s_load_dwordx4 s[4:7], s[{P_DBG}:{P_DBG+1}], 0 glc")
    A("s_waitcnt lgkmcnt(0)")
    for i in range(1, 4): A(f"s_min_u32 s4, s4, s{4+i}")
    A("s_add_u32 s64, s64, 1")
    A("s_cmp_ge_u32 s4, 64")
    A(f"s_cbranch_scc1 {lbl}_ok")
    A("s_sleep 16")
    A("s_cmp_lt_u32 s64, 20000")
    A(f"s_cbranch_scc1 {lbl}_poll")
    A.label(f"{lbl}_ok")

def gen_C(A, diag):
    A.label(f"{n}_C")
    ACC2 = 16; Z2P = 16; ACC1 = 52
    SET = [124, 168]
    RX = 212; RW = 214; RWT = 222; VC1 = 15; SUM = 224; Z1P = 216
    if "noprio" not in OPT: A("s_setprio 2")
    psrd(A, 20, P_WS, WS_MB, 4*MBSZ)
    def clears(tag):
        A(f"s_cmp_lg_u32 s{S_W}, 0")
        A(f"s_cbranch_scc1 {n}_Cni{tag}")
        A.vshift = 184
        A("v_lshrrev_b32 v2, 4, v0")
        A("v_and_b32 v3, 15, v0")
        A("v_lshlrev_b32 v3, 4, v3")
        A("v_lshl_add_u32 v3, v2, 16, v3")
        A(f"v_mov_b32 v4, s{S_O3}")
        A(f"v_mov_b32 v5, s{S_O1}")
        A("v_cmp_eq_u32 vcc, 0, v2")
        A("s_nop 1")
        A("v_cndmask_b32 v4, v4, v5, vcc")
        A("v_lshl_add_u32 v3, v4, 8, v3")
        for i in range(4): A(f"v_mov_b32 v{4+i}, 0")
        A("buffer_store_dwordx4 v[4:7], v3, s[20:23], 0 offen sc1")
        A(f"v_mov_b32 v2, {LDS_CNT}")
        A("ds_write_b128 v2, v[4:7]")
        A("ds_write_b128 v2, v[4:7] offset:16")
        A(f"s_lshl_b32 s64, s{S_O1}, 10")
        A(f"s_add_u32 s64, s64, {WS_ST}")
        psrd(A, 4, P_WS, "s64", 1024)
        for i in range(4): A(f"v_mov_b32 v{8+i}, -1")
        A("v_lshlrev_b32 v1, 4, v0")
        A("buffer_store_dwordx4 v[8:11], v1, s[4:7], 0 offen sc1")
        A.vshift = 0
        A.label(f"{n}_Cni{tag}")
    A(f"s_cmp_ge_u32 s{S_FT}, 9")
    A(f"s_cbranch_scc1 {n}_Cnp")
    if "sstamp" in OPT: A.stamp(9)
    A(f"s_mul_i32 s1, s{S_W}, {ssm.RSZ}")
    A(f"s_add_u32 s1, s1, {ssm.R0_BASE}")
    A(f"s_add_u32 s{S_R0}, s1, {ssm.R0_OFF}")
    A("s_waitcnt vmcnt(0)")
    if "sstamp" in OPT: A.stamp(10)
    clears("a")
    ssm.kgen(A, 1, S_R0, 2 if 'kfull' in OPT else 0, True)
    if "sstamp" in OPT: A.stamp(11); A.used = {9, 10, 11}
    A(f"s_branch {n}_Cnk")
    A.label(f"{n}_Cnp")
    clears("b")
    A("s_waitcnt vmcnt(0)")
    A(f"s_sub_u32 s67, s{S_CH}, 576")
    A("s_cmp_ge_u32 s67, 324")
    A(f"s_cbranch_scc1 {n}_Cnk")
    A("s_lshl_b32 s64, s67, 6")
    A("v_add_u32 v2, s64, v0")
    A("v_mul_u32_u24 v3, 3641, v2")
    A("v_lshrrev_b32 v3, 17, v3")
    A("v_mul_u32_u24 v4, 36, v3")
    A("v_add_u32 v4, v4, v2")
    A("v_lshlrev_b32 v4, 7, v4")
    A("v_lshlrev_b32 v2, 7, v2")
    if "notouch1" not in OPT:
        psrd(A, 4, P_WIN, None, 576*9216)
        A("buffer_load_dword v244, v4, s[4:7], 0 offen")
        psrd(A, 4, P_WOUT, None, 2304*1152)
        A("buffer_load_dword v245, v2, s[4:7], 0 offen")
    A.label(f"{n}_Cnk")
    A("v_and_b32 v5, 15, v0")
    A("v_lshrrev_b32 v6, 4, v0")
    A("v_lshrrev_b32 v7, 1, v5")
    A("v_xor_b32 v7, v7, v6")
    A("v_lshlrev_b32 v7, 4, v7")
    A("v_lshl_add_u32 v7, v5, 7, v7")
    A(f"s_lshl_b32 s64, s{S_W}, 12")
    A("s_add_u32 s64, s64, 18432")
    A(f"v_add_u32 v{RX}, s64, v7")
    A(f"v_xor_b32 v{RX+1}, 64, v{RX}")
    A(f"v_mov_b32 v14, v{RX}")
    A("v_and_b32 v2, 1, v6")
    A("v_lshrrev_b32 v3, 2, v5")
    A("v_lshl_add_u32 v2, v2, 2, v3")
    A("v_lshrrev_b32 v3, 1, v6")
    A("v_lshl_add_u32 v3, v3, 4, v2")
    A("v_and_b32 v4, 3, v5")
    A("v_lshlrev_b32 v4, 3, v4")
    A("v_lshl_add_u32 v7, v3, 8, v4")
    A("v_lshl_add_u32 v7, v2, 5, v7")
    for b in range(8): A(f"v_xor_b32 v{RW+b}, {32*b}, v7")
    A("v_lshl_add_u32 v7, v3, 5, v4")
    A(f"v_add_u32 v{RWT}, 16384, v7")
    A(f"v_mov_b32 v{VC1}, {f32(GC1)}")
    for r in range(72): A(f"v_mov_b32 v{ACC2+r}, 0")
    A("s_mov_b32 s68, 0")
    A(f"s_mov_b32 s69, {STG}")
    def g1_reads(setid, ks):
        b = SET[setid]
        X = lambda a: [f"ds_read_b128 {vr(b+4*a,4)}, v{RX+ks} offset:{a*2048}"]
        def W(t, h):
            if t < 8: return [f"ds_read_b64_tr_b16 {vr(b+8+4*t+2*h,2)}, v{RW+t} offset:{ks*8192+h*2048}"]
            return [f"ds_read_b64_tr_b16 {vr(b+8+4*t+2*h,2)}, v{RWT} offset:{ks*1024+h*256}"]
        out = [X(0), W(0,0), W(0,1), X(1)]
        for t in range(1, 9): out += [W(t,0), W(t,1)]
        return out
    def g1_mfmas(setid, half):
        b = SET[setid]
        out = []
        for t in range(9):
            for a in range(2):
                c = (ACC2 if half == 0 else ACC1) + (t*2+a)*4
                x = vr(b+4*a,4); w = vr(b+8+4*t,4)
                out.append(f"v_mfma_f32_16x16x32_bf16 {vr(c,4)}, {x}, {w}, {vr(c,4)}" if half == 0 else
                           f"v_mfma_f32_16x16x32_bf16 {vr(c,4)}, {w}, {x}, {vr(c,4)}")
        return out
    def advance(regs):
        o = [["s_add_u32 s68, s68, 1", "s_and_b32 s68, s68, 3"], [f"s_cselect_b32 s70, s69, {-3*STG}"]]
        return o + [[f"v_add_u32 v{r}, s70, v{r}"] for r in regs]
    def g1_loop(half):
        A(f"s_mov_b32 s71, {3 - half}")
        A.raw(".p2align 6")
        A.label(f"{n}_g1{half}")
        for u in range(3):
            A("s_waitcnt lgkmcnt(0)")
            A(interleave(g1_mfmas(0, half), g1_reads(1, 1) + advance(range(RX, RWT+1)), per=2))
            A("s_waitcnt lgkmcnt(0)")
            A("s_barrier")
            A(interleave(g1_mfmas(1, half), g1_reads(0, 0), per=2))
        A("s_sub_u32 s71, s71, 1")
        A("s_cmp_lg_u32 s71, 0")
        A(f"s_cbranch_scc1 {n}_g1{half}")
        for q in range(9 if half == 0 else 6): A.bars.append(f"M{9*half+q}")
        if half:
            for u in range(3):
                A("s_waitcnt lgkmcnt(0)")
                A(interleave(g1_mfmas(0, half), g1_reads(1, 1) + (advance(range(RX, RWT+1)) if u < 2 else []), per=2))
                A("s_waitcnt lgkmcnt(0)")
                if u == 0: A.bar("M15")
                A(interleave(g1_mfmas(1, half), g1_reads(0, 0) if u < 2 else [], per=2))
    A(f"s_cmp_ge_u32 s{S_FT}, 9")
    A(f"s_cbranch_scc1 {n}_Cnw0")
    A("s_waitcnt vmcnt(0)")
    A.label(f"{n}_Cnw0")
    A.bar("B0")
    A.stamp(2)
    for g in g1_reads(0, 0): A(g)
    g1_loop(0)
    A.stamp(3)
    A("v_lshlrev_b32 v1, 4, v0")
    A(f"s_lshl_b32 s64, s{S_W}, 10")
    A("v_add_u32 v1, s64, v1")
    A(f"v_add_u32 v2, {XH}, v1")
    T = SET[1]
    for i in range(16): A(f"v_mov_b32 v{SUM+i}, 0")
    for t in range(9):
        regs = [ACC2 + 8*t + i for i in range(8)]
        A(gelu_ops(regs, T, VC1))
        for i in range(8): A(f"v_add_f32 v{SUM+2*i}, v{SUM+2*i}, v{regs[i]}")
        for i in range(8): A(f"v_fmac_f32 v{SUM+2*i+1}, v{regs[i]}, v{regs[i]}")
        for j in range(4): A(f"v_cvt_pk_bf16_f32 v{Z2P+4*t+j}, v{regs[2*j]}, v{regs[2*j+1]}")
        if t < 8: A(f"ds_write_b128 v1, {vr(Z2P+4*t,4)} offset:{(t>>2)*18432 + (t&3)*4096}")
        else:     A(f"ds_write_b128 v2, {vr(Z2P+4*t,4)}")
    for rot in (8, 4, 2, 1):
        for i in range(16):
            A(f"v_add_f32_dpp v{SUM+i}, v{SUM+i}, v{SUM+i} row_ror:{rot} row_mask:0xf bank_mask:0xf")
    A(f"s_lshl_b32 s64, s{S_O1}, 10")
    A(f"s_add_u32 s64, s64, {WS_ST}")
    psrd(A, 4, P_WS, "s64", 1024)
    A("v_lshrrev_b32 v6, 4, v0")
    A("v_lshlrev_b32 v6, 6, v6")
    A(f"s_lshl_b32 s65, s{S_W}, 8")
    A("v_add_u32 v6, s65, v6")
    set_exec(A, 0x00010001, 0x00010001)
    for i in range(4):
        A(f"buffer_store_dwordx4 {vr(SUM+4*i,4)}, v6, s[4:7], 0 offen offset:{16*i} sc1")
    A("s_mov_b64 exec, -1")
    for r in range(72): A(f"v_mov_b32 v{ACC1+r}, 0")
    A.stamp(4)
    g1_loop(1)
    A.stamp(5)
    A("v_and_b32 v5, 15, v0")
    A("v_lshrrev_b32 v8, 2, v5")
    A("v_lshlrev_b32 v8, 3, v8")
    A("v_and_b32 v9, 3, v5")
    A("v_add_u32 v8, v8, v9")
    A(f"s_lshl_b32 s64, s{S_W}, 5")
    A("v_add_u32 v8, s64, v8")
    A("v_lshlrev_b32 v11, 1, v8")
    A(f"s_lshl_b32 s64, s{S_TT}, 8")
    psrd(A, 4, P_BSP, "s64", 256)
    A("buffer_load_ushort v12, v11, s[4:7], 0 offen")
    A("buffer_load_ushort v13, v11, s[4:7], 0 offen offset:8")
    if 'kfull' not in OPT:
        A(f"s_cmp_ge_u32 s{S_FT}, 9")
        A(f"s_cbranch_scc1 {n}_Cnp2")
        A.vshift = 20
        ssm.kgen_load(A, S_CH)
        A.vshift = 0
        A.label(f"{n}_Cnp2")
    A("s_waitcnt lgkmcnt(0)")
    for t in range(9):
        regs = [ACC1 + 8*t + i for i in range(8)]
        A(gelu_ops(regs, T, VC1))
        for nb in range(2):
            for j in range(2):
                dst = Z1P + ((nb*4 + (t >> 1))*4 + (t & 1)*2 + j if t < 8 else 32 + nb*2 + j)
                A(f"v_cvt_pk_bf16_f32 v{dst}, v{regs[4*nb+2*j]}, v{regs[4*nb+2*j+1]}")
        if t == 1: A.bar("M17")
    A.stamp(6)
    A("s_waitcnt vmcnt(0)")
    if 'kfull' not in OPT:
        A(f"s_cmp_ge_u32 s{S_FT}, 9")
        A(f"s_cbranch_scc1 {n}_Cnk2")
        for i in range(3): A(f"v_mov_b32 v{212+i}, v{12+i}")
        for i in range(5): A(f"v_mov_b32 v{4+i}, v{24+i}")
        A(f"s_mul_i32 s64, s{S_W}, {ssm.RSZ}")
        A(f"s_add_u32 s1, s64, {ssm.R0_BASE}")
        A(f"s_add_u32 s72, s64, {ssm.R0_BASE + ssm.R0_OFF}")
        ssm.kgen(A, 1, 72, 1, True)
        for i in range(3): A(f"v_mov_b32 v{12+i}, v{212+i}")
        A.label(f"{n}_Cnk2")
        A.stamp(7)
    ACC = 16; SET2 = [88, 132]; RA = 176; RB = 180
    A("v_lshlrev_b32 v10, 4, v0")
    for st in range(S):
        A(f"v_add_u32 v{RA+st}, {st*STG}, v10")
        A(f"v_add_u32 v{RB+2*st}, {st*STG}, v14")
        A(f"v_xor_b32 v{RB+2*st+1}, 64, v{RB+2*st}")
    A(f"s_lshl_b32 s64, s{S_TT}, 1")
    A(f"s_lshr_b32 s65, s{S_W}, 1")
    A("s_add_u32 s64, s64, s65")
    A(f"s_mul_i32 s64, s64, {72*4096}")
    A(f"s_and_b32 s65, s{S_W}, 1")
    A("s_lshl_b32 s65, s65, 11")
    A("s_add_u32 s64, s64, s65")
    A(f"s_add_u32 s64, s64, {WS_HF}")
    psrd(A, 16, P_WS, "s64", 72*4096)
    if "prestore" in OPT:
        A(f"s_lshl_b32 s70, s{S_FT}, 14")
        for i in range(1, 4): A(f"s_add_u32 s{70+i}, s70, {4096*i}")
        for j in range(8):
            A(f"buffer_store_dwordx4 v[200:203], v10, s[16:19], s{70+(j&3)} offen offset:{(j>>2)*1024}{'' if 'plain' in OPT else ' sc1'}")
    A("v_lshlrev_b32 v12, 16, v12")
    A("v_lshlrev_b32 v13, 16, v13")
    for a in range(9):
        for nb in range(2):
            for r in range(4): A(f"v_mov_b32 v{ACC+(a*2+nb)*4+r}, v{12+nb}")
    def g2_reads(setid, slot, ks):
        b = SET2[setid]
        out = []
        for kind, i in [("B", 0), ("A", 0), ("B", 1)] + [("A", a) for a in range(1, 9)]:
            if kind == "B": out.append([f"ds_read_b128 {vr(b+4*i,4)}, v{RB+2*slot+ks} offset:{i*2048}"])
            else:           out.append([f"ds_read_b128 {vr(b+8+4*i,4)}, v{RA+slot} offset:{(ks*9+i)*1024}"])
        return out
    def g2_mfmas(setid):
        b = SET2[setid]
        return [f"v_mfma_f32_16x16x32_bf16 {vr(ACC+(a*2+nb)*4,4)}, {vr(b+8+4*a,4)}, {vr(b+4*nb,4)}, {vr(ACC+(a*2+nb)*4,4)}"
                for a in range(9) for nb in range(2)]
    A("s_waitcnt lgkmcnt(0)")
    A.bar("G2S")
    A.stamp(8)
    for g in g2_reads(0, 18 % S, 0): A(g)
    A("s_mov_b32 s71, 8")
    A.raw(".p2align 6")
    A.label(f"{n}_g2")
    for rep in range(8 if "nstamp" in OPT else 1):
        if "nstamp" in OPT: A(f"s_memtime s[{80+2*rep}:{81+2*rep}]")
        for u in range(4):
            slot = (18 + u) % S
            A("s_waitcnt lgkmcnt(0)")
            A(interleave(g2_mfmas(0), g2_reads(1, slot, 1)))
            A("s_waitcnt lgkmcnt(0)")
            A("s_barrier")
            A(interleave(g2_mfmas(1), g2_reads(0, (slot+1) % S, 0)))
    if "nstamp" in OPT:
        A("s_memtime s[96:97]"); A.diag = False
    else:
        A("s_sub_u32 s71, s71, 1")
        A("s_cmp_lg_u32 s71, 0")
        A(f"s_cbranch_scc1 {n}_g2")
    for q in range(18, 50): A.bars.append(f"N{q}")
    A.stamp(9)
    A(f"s_lshl_b32 s70, s{S_FT}, 14")
    for i in range(1, 4): A(f"s_add_u32 s{70+i}, s70, {4096*i}")
    A(f"s_lshr_b32 s64, s{S_FT}, 1")
    A("s_lshl_b32 s64, s64, 12")
    A(f"s_and_b32 s65, s{S_FT}, 1")
    A("s_lshl_b32 s65, s65, 3")
    A("s_add_u32 s64, s64, s65")
    A(f"s_add_u32 s64, s64, {64*4096}")
    A("s_waitcnt lgkmcnt(0)")
    T2 = SET2[0]
    cnt = 0
    for j in range(9):
        for i in range(4):
            if j < 8: nb, a, rr = j >> 2, 2*(j & 3) + (i >> 1), 2*(i & 1)
            else:     nb, a, rr = i >> 1, 8, 2*(i & 1)
            c = ACC + (a*2+nb)*4 + rr
            t0 = T2 + 2*(cnt % 8); cnt += 1
            z = Z1P + 4*j + i
            A(f"v_lshlrev_b32 v{t0}, 16, v{z}")
            A(f"v_and_b32 v{t0+1}, 0xffff0000, v{z}")
            A(f"v_mul_f32 v{t0}, v{t0}, v{c}")
            A(f"v_mul_f32 v{t0+1}, v{t0+1}, v{c+1}")
            A(f"v_cvt_pk_bf16_f32 v{z}, v{t0}, v{t0+1}")
        if j < 8:
            A(f"buffer_store_dwordx4 {vr(Z1P+4*j,4)}, v10, s[16:19], s{70+(j&3)} offen offset:{(j>>2)*1024} sc1")
        else:
            for nb in range(2):
                A(f"buffer_store_dwordx2 {vr(Z1P+32+2*nb,2)}, v10, s[16:19], s64 offen offset:{nb*1024} sc1")
    A.bar("EPI")
    if "estamp" in OPT: A.stamp(2)
    def pub2(tag):
        if "estamp" in OPT: A.stamp(3)
        A("s_waitcnt vmcnt(0)")
        if "estamp" in OPT: A.stamp(4)
        A(f"s_lshr_b32 s65, s{S_W}, 1")
        A("s_lshl_b32 s70, s65, 2")
        A(f"s_add_u32 s70, s70, {LDS_CNT + 8}")
        lds_arrive(A, ["v_mov_b32 v200, s70"], 200, 1, f"{n}_Cnh{tag}")
        A(f"s_lshl_b32 s71, s{S_TT}, 1")
        A("s_add_u32 s71, s71, s65")
        A("s_lshl_b32 s71, s71, 3")
        mb_push(A, MB_H, 8, ["v_add_u32 v200, s71, v0"], S_FT, 200, 20)
        A.label(f"{n}_Cnh{tag}")
    A(f"s_cmp_ge_u32 s{S_FT}, 9")
    A(f"s_cbranch_scc1 {n}_Cnc")
    A(f"s_mul_i32 s64, s{S_W}, {ssm.RSZ}")
    A(f"s_add_u32 s1, s64, {ssm.R0_BASE}")
    A(f"s_add_u32 s72, s64, {ssm.R0_BASE + ssm.R0_OFF}")
    A(f"s_add_u32 s73, s64, {R1_BASE}")
    A(f"s_mul_i32 s74, s{S_W}, {ssm.USZ}")
    A(f"s_add_u32 s74, s74, {U_BASE}")
    if 'ksplit' in OPT:
        for i in range(5): A(f"v_mov_b32 v{4+i}, v{192+i}")
        bg = Stream(False)
        ssm.kgen(bg, 1, 72, 1, True)
        kch, _ = bg_split(bg.lines, [KHOOK, 99999])
        A.lines += kch[0]
        pub2("a")
        A.lines += kch[1]
    ssm.r1_build(A, 72, 73, 16)
    A("v_mov_b32 v6, 0"); A("v_mov_b32 v7, 0")
    A("v_lshlrev_b32 v8, 3, v0")
    A("v_add_u32 v8, s74, v8")
    set_exec(A, -1, 0x0fffffff)
    A("ds_write_b64 v8, v[6:7]")
    A("s_mov_b64 exec, -1")
    if "estamp" in OPT: A.stamp(5)
    ssm.conv(A, 72, 73, 74, S_CH, hook=None if 'ksplit' in OPT else (lambda: pub2('a')))
    A("s_waitcnt vmcnt(0)")
    lds_arrive(A, [f"v_mov_b32 v6, {LDS_CNT}"], 6, 3, f"{n}_Cnc2")
    A(f"s_lshr_b32 s74, s{S_CH}, 2")
    A("s_mul_i32 s72, s74, 3641")
    A("s_lshr_b32 s72, s72, 16")
    A("s_mul_i32 s73, s72, 18")
    A("s_sub_u32 s73, s74, s73")
    mb_push(A, MB_A, 32, ["v_lshlrev_b32 v14, 3, v0", "v_add_u32 v14, s72, v14"], 73, 14, 20)
    A(f"s_branch {n}_Cnc2")
    A.label(f"{n}_Cnc")
    pub2("b")
    A.label(f"{n}_Cnc2")
    A.stamp(10)
    g3(A)
    if diag:
        A("s_waitcnt vmcnt(0)")
        A.diag = True
        A.stamp(12, True)
        stamp_dump(A, f"{n}_Cd", 0)
    A.label(f"{n}_end")
    A("s_endpgm")

NL = 4
TPOS = 21
AHINT = 10
DA, DB = (6, 3) if 'd63' in OPT else (4, 5) if 'd45' in OPT else (5, 4)
def g3_main(A):
    ACC = 4; AB = 84; BB = AB + 20*DA
    assert BB + 16*DB <= 252
    A.vshift = 0
    A("v_lshlrev_b32 v2, 4, v0")
    A("v_and_b32 v3, 7, v0")
    A("v_lshrrev_b32 v1, 4, v0")
    A("v_lshl_add_u32 v3, v1, 3, v3")
    A("v_lshlrev_b32 v3, 4, v3")
    A("v_add_u32 v3, 4096, v3")
    A(f"s_mul_i32 s64, s{S_J}, {72*4608}")
    A(f"s_add_u32 s64, s64, {WS_WOT}")
    psrd(A, 4, P_WS, "s64", 72*4608)
    A(f"s_mul_i32 s64, s{S_T64}, {72*4096}")
    A(f"s_add_u32 s64, s64, {WS_HF}")
    psrd(A, 12, P_WS, "s64", 72*4096)
    A(f"s_and_b32 s64, s{S_T64}, 3")
    A("s_lshl_b32 s64, s64, 1")
    if "rotT" not in OPT: A(f"s_add_u32 s64, s64, s{S_J}")
    A("s_and_b32 s64, s64, 7")
    A("s_mul_i32 s64, s64, 9")
    if "rotJ" in OPT: A(f"s_mul_i32 s64, s{S_J}, 9")
    elif "rot3" not in OPT: A("s_mov_b32 s64, 0")
    A(f"s_add_u32 s64, s64, s{S_W}")
    A("s_mul_i32 s70, s64, 4608")
    A("s_lshl_b32 s71, s64, 12")
    NK = 18
    ra = {}; rb = {}
    def loadA(it):
        b = AB + 20*(it % DA)
        for q in range(4): A.vm(f"buffer_load_dwordx4 {vr(b+4*q,4)}, v2, s[4:7], s70 offen offset:{1024*q} sc1")
        ra[it] = A.vm(f"buffer_load_dwordx4 {vr(b+16,4)}, v{3 if it < DA else 255}, s[4:7], s70 offen sc1")
        A(f"s_add_u32 s70, s70, {4*4608}")
        A(f"s_cmp_ge_u32 s70, {72*4608}")
        A(f"s_cselect_b32 s72, {72*4608}, 0")
        A("s_sub_u32 s70, s70, s72")
    def loadB(it):
        b = BB + 16*(it % DB)
        for q in range(4): rb[it] = A.vm(f"buffer_load_dwordx4 {vr(b+4*q,4)}, v2, s[12:15], s71 offen offset:{1024*q} sc1")
        A(f"s_add_u32 s71, s71, {4*4096}")
        A(f"s_cmp_ge_u32 s71, {72*4096}")
        A(f"s_cselect_b32 s72, {72*4096}, 0")
        A("s_sub_u32 s71, s71, s72")
    A(f"s_cmp_ge_u32 s{S_FT}, 9")
    A(f"s_cbranch_scc1 {n}_Lnu1")
    A(f"s_lshl_b32 s64, s{S_CH}, 12")
    A(f"s_add_u32 s64, s64, {WS_UT}")
    psrd(A, 16, P_WS, "s64", 4096)
    A(f"s_mul_i32 s66, s{S_W}, {ssm.USZ}")
    A(f"s_add_u32 m0, s66, {U_BASE + 480}")
    A("s_nop 0")
    for i in range(4):
        A(f"buffer_load_dwordx4 v2, s[16:19], 0 offen offset:{1024*i} sc1 lds")
    A.label(f"{n}_Lnu1")
    A("s_waitcnt vmcnt(9)")
    A.bar("N47")
    for r in range(80): A(f"v_mov_b32 v{ACC+r}, 0")
    A("s_waitcnt vmcnt(0)")
    loadA(0)
    A.bar("N48")
    loadA(1)
    A.bar("N49")
    A.bar("EPI")
    for it in range(2, DA): loadA(it)
    A(f"s_mul_i32 s73, s{S_W}, 20480")
    for u in range(NL):
        A(f"s_add_u32 m0, s73, {u*4608}")
        A("s_nop 0")
        for q in range(4): A.vm(f"buffer_load_dwordx4 v2, s[4:7], s70 offen offset:{1024*q} sc1 lds")
        A(f"s_add_u32 m0, s73, {u*4608 + 4096}")
        A("s_add_u32 s72, s70, 4096")
        A("s_mov_b64 exec, 0xffffffff")
        rl = A.vm("buffer_load_dwordx4 v2, s[4:7], s72 offen sc1 lds")
        A("s_mov_b64 exec, -1")
        A(f"s_add_u32 s70, s70, {4*4608}")
        A(f"s_cmp_ge_u32 s70, {72*4608}")
        A(f"s_cselect_b32 s72, {72*4608}, 0")
        A("s_sub_u32 s70, s70, s72")
    A("v_add_u32 v1, s73, v2")
    A("v_add_u32 v3, s73, v3")
    A("v_subrev_u32 v255, s73, v3")
    def ldsA(it):
        b = AB + 20*(it % DA); u = it - DA
        for q in range(4): A(f"ds_read_b128 {vr(b+4*q,4)}, v1 offset:{u*4608 + 1024*q}")
        A(f"ds_read_b128 {vr(b+16,4)}, v3 offset:{u*4608}")
        ra[it] = 0
    wg_wait(A, f"{n}_Lgh", S_W, LDS_CNT + 20, 252, lambda: mb_wait(A, f"{n}_Lh", MB_H, S_O3, 16, 252, 8, sleep=PSLEEP))
    A.stamp(9)
    A(f"s_lshl_b32 s64, s{S_T64}, 9")
    A(f"s_add_u32 s64, s64, {WS_G}")
    psrd(A, 16, P_WS, "s64", 512)
    A(f"s_mov_b32 m0, {LDS_G}")
    A("s_mov_b64 exec, 0xffffffff")
    A.vm("buffer_load_dwordx4 v2, s[16:19], 0 offen sc1 lds")
    A("s_mov_b64 exec, -1")
    for it in range(DB): loadB(it)
    for it in range(NK):
        A.wait_vm(max(ra[it], rb[it]), " lgkmcnt(0)" if DA <= it < DA + NL else "")
        if "gstamp" in OPT and it in (0, 1, 3, 6, 9, 12, 15): A.stamp(2 + (0, 1, 3, 6, 9, 12, 15).index(it))
        a = AB + 20*(it % DA); b = BB + 16*(it % DB)
        ia = it - 1 + DA
        fa = []
        if it >= 1 and ia < NK:
            ab = AB + 20*(ia % DA)
            if ia < DA + NL:
                u = ia - DA
                fa = [f"ds_read_b128 {vr(ab+4*q,4)}, v1 offset:{u*4608 + 1024*q}" for q in range(4)] + [f"ds_read_b128 {vr(ab+16,4)}, v3 offset:{u*4608}"]
                ra[ia] = 0
            else:
                fa = [f"buffer_load_dwordx4 {vr(ab+4*q,4)}, v2, s[4:7], s70 offen offset:{1024*q} sc1" for q in range(4)] + [f"buffer_load_dwordx4 {vr(ab+16,4)}, v255, s[4:7], s70 offen sc1"]
        for nt in range(4):
            for q in range(5):
                c = ACC + (nt*5+q)*4
                A(f"v_mfma_f32_16x16x32_bf16 {vr(c,4)}, {vr(a+4*q,4)}, {vr(b+4*nt,4)}, {vr(c,4)}")
                if fa and (q == 2 or (q == 0 and nt == 0)):
                    x = fa.pop(0)
                    if x.startswith("ds_"): A(x)
                    else: ra[ia] = A.vm(x)
            if it + DB < NK:
                rb[it+DB] = A.vm(f"buffer_load_dwordx4 {vr(b+4*nt,4)}, v2, s[12:15], s71 offen offset:{1024*nt} sc1")
        assert not fa
        if it + DB < NK:
            A(f"s_add_u32 s71, s71, {4*4096}")
            A(f"s_cmp_ge_u32 s71, {72*4096}")
            A(f"s_cselect_b32 s72, {72*4096}, 0")
            A("s_sub_u32 s71, s71, s72")
        if it >= 1 and DA + NL <= ia < NK:
            A(f"s_add_u32 s70, s70, {4*4608}")
            A(f"s_cmp_ge_u32 s70, {72*4608}")
            A(f"s_cselect_b32 s72, {72*4608}, 0")
            A("s_sub_u32 s70, s70, s72")
        if it == AHINT:
            A(f"v_mov_b32 v252, {LDS_CNT + 24}")
            A("ds_write_b32 v252, v252")
    A.stamp(10)
    A("s_nop 7")
    for nt in range(4):
        for q in range(5):
            A(f"ds_write_b128 v1, {vr(ACC+(nt*5+q)*4,4)} offset:{nt*5120+q*1024}")
    A("s_waitcnt lgkmcnt(0)")
    A.bar("RED")

def g3(A):
    A("v_lshlrev_b32 v2, 4, v0")
    A("v_lshrrev_b32 v4, 4, v0")
    A("v_and_b32 v5, 15, v0")
    A("v_lshrrev_b32 v6, 2, v5")
    A("v_lshlrev_b32 v6, 3, v6")
    A("v_and_b32 v7, 3, v5")
    A("v_add_u32 v6, v6, v7")
    A(f"s_lshr_b32 s70, s{S_W}, 1")
    A("s_lshl_b32 s70, s70, 5")
    A(f"s_and_b32 s66, s{S_W}, 1")
    A("s_lshl_b32 s66, s66, 2")
    A("s_add_u32 s70, s70, s66")
    A("v_add_u32 v6, s70, v6")
    A("v_lshlrev_b32 v15, 3, v6")
    A(f"v_add_u32 v15, {LDS_G}, v15")
    A(f"s_lshl_b32 s66, s{S_T64}, 6")
    A("v_add_u32 v6, s66, v6")
    A("v_mul_u32_u24 v6, 1152, v6")
    A(f"s_mul_i32 s66, s{S_J}, 144")
    A("v_add_u32 v6, s66, v6")
    A("v_lshl_add_u32 v10, v4, 4, v6")
    A("v_lshl_add_u32 v11, v4, 3, v6")
    psrd(A, 16, P_OUT, None, 2048*1152)
    A("v_lshrrev_b32 v12, 2, v5")
    A("v_lshl_add_u32 v13, v4, 3, v12")
    A("v_lshlrev_b32 v13, 7, v13")
    A("v_and_b32 v14, 3, v5")
    A("v_lshl_add_u32 v13, v14, 4, v13")
    A("s_lshl_b32 s70, s70, 1")
    A(f"s_add_u32 s70, s70, {LDS_AT}")
    A("v_add_u32 v13, s70, v13")
    A("v_lshl_add_u32 v12, v4, 2, v12")
    A("v_lshlrev_b32 v12, 7, v12")
    A("v_lshl_add_u32 v12, v14, 4, v12")
    A("v_add_u32 v12, s70, v12")
    A(f"s_cmp_lg_u32 s{S_W}, 0")
    A(f"s_cbranch_scc1 {n}_Cna")
    A(f"v_mov_b32 v16, {LDS_CNT + 24}")
    A("s_mov_b32 s65, 0")
    A.label(f"{n}_Cah")
    A("ds_read_b32 v17, v16")
    A("s_waitcnt lgkmcnt(0)")
    A("v_readfirstlane_b32 s66, v17")
    A("s_add_u32 s65, s65, 1")
    A("s_cmp_lg_u32 s66, 0")
    A(f"s_cbranch_scc1 {n}_Cah2")
    A("s_sleep 2")
    A("s_cmp_lt_u32 s65, 1000000")
    A(f"s_cbranch_scc1 {n}_Cah")
    A.label(f"{n}_Cah2")
    mb_wait(A, f"{n}_Ca", MB_A, S_O3, 18, 16, 20, sleep=8)
    A.stamp(11)
    A(f"s_mul_i32 s64, s{S_J}, {72*4096}")
    A(f"s_lshl_b32 s65, s{S_T64}, 7")
    A("s_add_u32 s64, s64, s65")
    A(f"s_add_u32 s64, s64, {WS_AT}")
    psrd(A, 12, P_WS, "s64", 71*4096+128)
    A("v_lshrrev_b32 v5, 3, v0")
    A("v_and_b32 v6, 7, v0")
    A("v_lshlrev_b32 v5, 12, v5")
    A("v_lshl_add_u32 v5, v6, 4, v5")
    for i in range(9):
        A(f"s_mov_b32 m0, {LDS_AT + 1024*i}")
        A(f"s_mov_b32 s70, {i*8*4096}")
        A("buffer_load_dwordx4 v5, s[12:15], s70 offen sc1 lds")
    A.label(f"{n}_Cna")
    A(f"s_mul_i32 s65, s{S_W}, 5120")
    A("v_add_u32 v14, s65, v2")
    A("v_add_u32 v3, 40960, v14")
    A("s_waitcnt vmcnt(0)")
    A.bar("RED")
    R = 96
    for src in range(4):
        for q in range(5):
            A(f"ds_read_b128 {vr(R+(src*5+q)*4,4)}, v{14 if src < 2 else 3} offset:{(src&1)*20480+q*1024}")
    AR = R + 80
    for q in range(4):
        A(f"ds_read_b64_tr_b16 {vr(AR+2*q,2)}, v13 offset:{(32*(q>>1)+4*(q&1))*128}")
    A(f"ds_read_b64_tr_b16 {vr(AR+8,2)}, v12 offset:{64*128}")
    A("ds_read_b64 v[8:9], v15")
    A("s_waitcnt lgkmcnt(0)")
    for i in range(20):
        A(f"v_add_f32 v{R+i}, v{R+i}, v{R+20+i}")
        A(f"v_add_f32 v{R+40+i}, v{R+40+i}, v{R+60+i}")
    for i in range(20): A(f"v_add_f32 v{R+i}, v{R+i}, v{R+40+i}")
    T = R + 20
    for i in range(10):
        A(f"v_lshlrev_b32 v{T+2*i}, 16, v{AR+i}")
        A(f"v_and_b32 v{T+2*i+1}, 0xffff0000, v{AR+i}")
    for i in range(20): A(f"v_mul_f32 v{T+i}, v8, v{T+i}")
    for i in range(20): A(f"v_fmac_f32 v{T+i}, v9, v{R+i}")
    O = R + 40
    for i in range(10): A(f"v_cvt_pk_bf16_f32 v{O+i}, v{T+2*i}, v{T+2*i+1}")
    A(f"buffer_store_dwordx4 {vr(O,4)}, v10, s[16:19], 0 offen")
    A(f"buffer_store_dwordx4 {vr(O+4,4)}, v10, s[16:19], 0 offen offset:64")
    A("s_mov_b64 exec, 0xffffffff")
    A(f"buffer_store_dwordx2 {vr(O+8,2)}, v11, s[16:19], 0 offen offset:128")
    A("s_mov_b64 exec, -1")

if __name__ == "__main__":
    diag = "--diag" in sys.argv
    out = [a for a in sys.argv[1:] if not a.startswith("--")][0]
    H = Stream(diag); C = Stream(diag); L = Stream(diag)
    header(H); gen_L(L, diag); gen_C(C, diag)
    assert C.bars == L.bars, [(a, b) for a, b in zip(C.bars, L.bars) if a != b][:5]
    launch = f"; @launch grid=(256,1,1) block=(512,1,1) lds={LDS_TOTAL}\n"
    if "--list" in sys.argv:
        launch = f"; @launch kernel={NAME} grid=(256,1,1) block=(512,1,1) lds={LDS_TOTAL}\n"
    if "nosc1" in OPT:
        L.lines = [l.replace(" sc1", "") if ("buffer_load_dwordx4" in l or "v201, v200, s[4:7]" in l) else l for l in L.lines]
    open(out, "w").write(HEADER + launch + '.amdgcn_target "amdgcn-amd-amdhsa--gfx950"\n.text\n' + H.text() + L.text() + C.text() + '.section .rodata,"a"\n' + kernel_desc(NAME, 256))
```

```python
import sys
from fz_common import *
import fz_ssm as ssm
NAME = "gated_mix__ssm_conv_s4d__mixer_gmlp__prompt_kernel"
NSSM = 144
OPT = set(a[2:] for a in sys.argv if a.startswith("--"))
U_BASE = 81920
R1_BASE = 3*STG
LDS_AT = 3*STG + 19456
LDS_G = LDS_AT + 10240
XH = LDS_X + 1024 + 4*ssm.RSZ
LDS_CNT = XH + 4096
ZL = 64
S_O1, S_O3, S_CW, S_CH = 3, 75, 31, 30
S_R0 = 0
S_UTQ = 0
S_K0 = 1
KHOOK = 4500
PSLEEP = 8 if 'ps8' in OPT else 2 if 'ps2' in OPT else 4
S_KS, S_KR = 24, 31
KB0, KB1, KB2, KBG = 3000, 2300, 1100, 150
NPRE = 2 if 'pre2' in OPT else 4 if 'pre4' in OPT else 3
KSPLIT = (0.40, 0.50)
VB, VA = 250, 251
n = NAME

def touch(A, p, nbytes, idx_sreg, vdst, lbl):
    if "notouch" in OPT: return
    A(f"s_cmp_ge_u32 s{idx_sreg}, {(nbytes + 8191) // 8192}")
    A(f"s_cbranch_scc1 {lbl}")
    psrd(A, 4, p, None, nbytes)
    A(f"s_lshl_b32 s64, s{idx_sreg}, 13")
    A(f"buffer_load_dword v{vdst}, v1, s[4:7], s64 offen")
    if "touch64" in OPT:
        A(f"buffer_load_dword v{vdst+1}, v1, s[4:7], s64 offen offset:64")
    A.label(lbl)

def header(H):
    kernel_begin(H, n)
    H("s_cmp_ge_u32 s2, 256")
    H(f"s_cbranch_scc1 {n}_end")
    H("s_load_dwordx16 s[32:47], s[0:1], 0")
    H("s_load_dwordx16 s[48:63], s[0:1], 64")
    H.stamp(0); H.stamp(1, True)
    H("v_lshrrev_b32 v1, 6, v0")
    H("s_and_b32 s3, s2, 7")
    H("s_lshr_b32 s30, s2, 3")
    H(f"v_readfirstlane_b32 s{S_WAVE}, v1")
    H("s_and_b32 s64, s3, 3")
    H("s_lshl_b32 s64, s64, 2")
    H("s_and_b32 s65, s30, 3")
    H(f"s_add_u32 s{S_FT}, s64, s65")
    H("s_lshr_b32 s64, s3, 2")
    H("s_lshr_b32 s66, s30, 2")
    if "ttblk" in OPT:
        H("s_lshl_b32 s64, s64, 3")
    else:
        H("s_lshl_b32 s66, s66, 1")
    H(f"s_add_u32 s{S_TT}, s64, s66")
    if "map3new" not in OPT:
        H("s_lshr_b32 s64, s3, 1")
        H("s_lshl_b32 s64, s64, 3")
        H("s_lshr_b32 s66, s30, 2")
        H(f"s_add_u32 s{S_T64}, s64, s66")
        H("s_and_b32 s64, s3, 1")
        H("s_lshl_b32 s64, s64, 2")
        H(f"s_add_u32 s{S_J}, s64, s65")
    else:
        H("s_lshl_b32 s64, s3, 2")
        H("s_lshr_b32 s65, s30, 3")
        H(f"s_add_u32 s{S_T64}, s64, s65")
        H(f"s_and_b32 s{S_J}, s30, 7")
    H(f"s_and_b32 s{S_W}, s{S_WAVE}, 3")
    H("v_and_b32 v0, 63, v0")
    H(f"s_cmp_ge_u32 s{S_WAVE}, 4")
    H(f"s_cbranch_scc1 {n}_L")
    H("s_getpc_b64 s[64:65]")
    H.label(f"{n}_pc")
    H(f"s_sub_u32 s4, s64, {n}_pc-{n}")
    H("s_subb_u32 s5, s65, 0")
    H(f"s_mov_b32 s6, {n}_end-{n}")
    H("s_mov_b32 s7, 0x20000")
    H("s_lshl_b32 s66, s30, 2")
    H(f"s_add_u32 s66, s66, s{S_W}")
    H("s_lshl_b32 s66, s66, 10")
    H("v_lshlrev_b32 v1, 4, v0")
    H("buffer_load_dwordx4 v[240:243], v1, s[4:7], s66 offen")
    late_ids(H)
    H("s_waitcnt lgkmcnt(0)")
    H(f"s_cmp_ge_u32 s{S_FT}, 9")
    H(f"s_cbranch_scc1 {n}_C")
    ssm.kgen_load(H, S_CH)
    H(f"s_branch {n}_C")
    H.label(f"{n}_L")

def late_ids(A):
    A(f"s_lshl_b32 s64, s{S_TT}, 4")
    A(f"s_add_u32 s{S_O1}, s64, s{S_FT}")
    A(f"s_lshl_b32 s64, s{S_T64}, 3")
    A(f"s_add_u32 s{S_O3}, s64, s{S_J}")
    A(f"s_lshl_b32 s{S_CW}, s2, 2")
    A(f"s_add_u32 s{S_CW}, s{S_CW}, s{S_W}")
    A(f"s_lshl_b32 s64, s{S_FT}, 4")
    A(f"s_add_u32 s64, s64, s{S_TT}")
    A(f"s_lshl_b32 s64, s64, 2")
    A(f"s_add_u32 s{S_CH}, s64, s{S_W}")

def gen_L(A, diag):
    A.vshift = 190
    rowperm_voff(A, 2, 1152)
    A("v_lshrrev_b32 v6, 4, v0")
    A(f"s_and_b32 s64, s{S_W}, 1")
    A("s_lshl_b32 s65, s64, 2")
    A("v_add_u32 v7, s65, v6")
    A("v_and_b32 v8, 15, v0")
    A("v_lshlrev_b32 v7, 1, v7")
    A("v_xor_b32 v8, v8, v7")
    A("s_lshl_b32 s65, s64, 3")
    A(f"s_lshr_b32 s66, s{S_W}, 1")
    A("s_lshl_b32 s66, s66, 2")
    A("s_add_u32 s65, s65, s66")
    A("v_add_u32 v6, s65, v6")
    A("v_mul_u32_u24 v6, 9216, v6")
    A("v_lshl_add_u32 v3, v8, 4, v6")
    A(f"s_lshl_b32 s65, s{S_FT}, 8")
    A("v_add_u32 v3, s65, v3")
    A("v_lshrrev_b32 v6, 1, v0")
    A("v_and_b32 v7, 3, v6")
    A("v_and_b32 v8, 4, v6")
    A("v_lshl_or_b32 v7, v8, 1, v7")
    A("v_and_b32 v8, 8, v6")
    A("v_lshrrev_b32 v8, 1, v8")
    A("v_or_b32 v7, v7, v8")
    A(f"s_lshl_b32 s65, s{S_W}, 4")
    A("v_add_u32 v7, s65, v7")
    A("v_mul_u32_u24 v7, 9216, v7")
    A("v_and_b32 v8, 1, v0")
    A("v_lshl_add_u32 v4, v8, 4, v7")
    A(f"s_lshl_b32 s64, s{S_FT}, 5")
    A("s_add_u32 s64, s64, 4096")
    A("v_add_u32 v4, s64, v4")
    A(f"s_lshl_b32 s68, s{S_W}, 10")
    A(f"s_lshl_b32 s69, s{S_W}, 9")
    A("s_add_u32 s69, s69, 16384")
    A(f"s_mul_i32 s64, s{S_TT}, {128*1152}")
    A("s_waitcnt lgkmcnt(0)")
    psrd(A, 8, P_U, "s64", 128*1152)
    psrd(A, 12, P_WIN, None, 576*9216)
    ready = {}
    A(f"s_and_b32 s74, s{S_TT}, 7" if "ttblk" in OPT else f"s_lshr_b32 s74, s{S_TT}, 1")
    A(f"s_and_b32 s64, s{S_FT}, 3")
    A("s_lshl_b32 s64, s64, 1")
    A("s_add_u32 s74, s74, s64")
    A("s_cmp_ge_u32 s74, 9")
    A("s_cselect_b32 s64, 9, 0")
    A("s_sub_u32 s74, s74, s64")
    if "norot" in OPT: A("s_mov_b32 s74, 0")
    A(f"s_sub_u32 s{S_UTQ}, s{S_FT}, s74")
    A(f"s_cmp_lt_i32 s{S_UTQ}, 0")
    A("s_cselect_b32 s64, 9, 0")
    A(f"s_add_u32 s{S_UTQ}, s{S_UTQ}, s64")
    A(f"s_cmp_ge_u32 s{S_FT}, 9")
    A(f"s_cselect_b32 s{S_UTQ}, 99, s{S_UTQ}")
    def dma_g1(q):
        base = (q % S) * STG
        A(f"s_mul_i32 s72, s74, {64*9216}")
        A("s_lshl_b32 s73, s74, 7")
        if q < 9: A("s_add_u32 s72, s72, 4608")
        for i in range(4):
            A(f"s_add_u32 m0, s68, {base + i*4096}")
            A(f"s_add_u32 s70, s72, {i*16*9216}")
            A.vm("buffer_load_dwordx4 v3, s[12:15], s70 offen lds")
            A(f"s_add_u32 m0, s68, {base + 18432 + i*4096}")
            A(f"s_add_u32 s71, s73, {i*32*1152}")
            A.vm("buffer_load_dwordx4 v2, s[8:11], s71 offen lds")
        A(f"s_add_u32 m0, s69, {base}")
        A("s_mov_b64 exec, 0xffffffff")
        ready[q] = A.vm("buffer_load_dwordx4 v4, s[12:15], s72 offen lds")
        A("s_mov_b64 exec, -1")
        A("s_add_u32 s74, s74, 1")
        A("s_cmp_eq_u32 s74, 9")
        A("s_cselect_b32 s74, 0, s74")
    def kst(cnt, dst):
        A(f"s_add_u32 s{dst}, s{cnt}, s{S_FT}")
        A(f"s_and_b32 s{dst}, s{dst}, 3")
        A(f"s_andn2_b32 s64, s{cnt}, 3")
        A(f"s_or_b32 s{dst}, s{dst}, s64")
        A(f"s_cmp_lt_u32 s{cnt}, {0 if 'noquad' in OPT else 28}")
        A(f"s_cselect_b32 s{dst}, s{dst}, s{cnt}")
        A(f"s_add_u32 s{dst}, s{dst}, s{S_K0}")
        A(f"s_and_b32 s{dst}, s{dst}, 31")
        A(f"s_add_u32 s{cnt}, s{cnt}, 1")
    def dma_g2_B(sb):
        kst(72, 66)
        A("s_lshl_b32 s66, s66, 7")
        for i in range(4):
            if isinstance(sb, str):
                A(f"s_add_u32 m0, s68, {sb}"); A(f"s_add_u32 m0, m0, {18432 + i*4096}")
            else:
                A(f"s_add_u32 m0, s68, {sb + 18432 + i*4096}")
            A(f"s_add_u32 s70, s66, {i*131072}")
            r = A.vm(f"buffer_load_dwordx4 v{VB}, s[16:19], s70 offen lds")
        return r
    def dma_g2_A(sb):
        kst(73, 66)
        A("s_mul_i32 s66, s66, 18432")
        A(f"s_add_u32 m0, s67, {sb}")
        A("s_add_u32 s70, s66, s67")
        for i in range(4):
            A.vm(f"buffer_load_dwordx4 v{VA}, s[20:23], s70 offen offset:{1024*i} sc1 lds")
        A(f"s_add_u32 m0, s69, {sb}")
        A("s_add_u32 s70, s66, s69")
        A("s_mov_b64 exec, 0xffffffff")
        r = A.vm(f"buffer_load_dwordx4 v{VA}, s[20:23], s70 offen sc1 lds")
        A("s_mov_b64 exec, -1")
        return r
    sl = lambda q: (q % S) * STG

    for q in range(NPRE): dma_g1(q)
    issued = NPRE
    A.stamp(2)
    A.wait_vm(ready[0]); A.bar("B0")
    A.stamp(3)
    if issued < 3: dma_g1(2); issued = 3
    late_ids(A)
    rowperm_voff(A, VB, 4096)
    A(f"v_lshlrev_b32 v{VA}, 4, v0")
    A(f"s_lshl_b32 s64, s{S_TT}, 19")
    psrd(A, 16, P_WSP, "s64", 128*4096)
    A(f"s_mul_i32 s64, s{S_FT}, {32*18432}")
    A(f"s_add_u32 s64, s64, {WS_Z2F}")
    psrd(A, 20, P_WS, "s64", 32*18432)
    A(f"s_lshl_b32 s67, s{S_W}, 12")
    A("v_and_b32 v5, 15, v0")
    A("v_lshrrev_b32 v6, 4, v0")
    A("v_lshrrev_b32 v7, 2, v5")
    A("v_lshl_add_u32 v8, v6, 2, v7")
    A("v_lshrrev_b32 v9, 1, v8")
    A("v_bfe_u32 v10, v0, 1, 1")
    A("v_xor_b32 v9, v9, v10")
    A("v_lshlrev_b32 v9, 4, v9")
    A("v_lshl_add_u32 v9, v8, 7, v9")
    A("v_and_b32 v10, 1, v0")
    A("v_lshl_add_u32 v9, v10, 3, v9")
    A(f"s_and_b32 s64, s{S_UTQ}, 3")
    A(f"s_mul_i32 s64, s64, {STG}")
    A("s_add_u32 s64, s64, s67")
    A("s_add_u32 s64, s64, 18432")
    A("v_add_u32 v13, s64, v9")
    A("v_lshlrev_b32 v14, 12, v5")
    A("v_lshl_add_u32 v14, v6, 4, v14")
    def ut_job(q):
        if "nout" in OPT: return
        A(f"s_cmp_lg_u32 s{S_UTQ}, {q}")
        A(f"s_cbranch_scc1 {n}_Lut{q}")
        A(f"s_getpc_b64 s[64:65]")
        A.label(f"{n}_Lpc{q}")
        A(f"s_add_u32 s64, s64, {n}_Lutf-{n}_Lpc{q}")
        A("s_addc_u32 s65, s65, 0")
        A("s_swappc_b64 s[70:71], s[64:65]")
        A.label(f"{n}_Lut{q}")
    ut_job(0)
    for q in range(18):
        if q == 16: continue
        if q + 1 < 18: A.wait_vm(ready[17 if q == 15 else q+1])
        A.bar(f"M{q}")
        if "mstamp" in OPT and "m2" not in OPT and q < 8: A.stamp(4 + q)
        if "m2" in OPT and q == 7: A.used = {8}
        if "m2" in OPT and q >= 9 and q != 13: A.used.discard(8); A.stamp(4 + q - 9 - (q > 13))
        if q == 9:
            A(f"v_add_u32 v5, s68, v{VA}")
            for t in range(8): A(f"ds_read_b128 {vr(ZL+4*t,4)}, v5 offset:{(t>>2)*18432 + (t&3)*4096}")
            A(f"v_add_u32 v5, {XH}, v5")
            A(f"ds_read_b128 {vr(ZL+32,4)}, v5")
            A("s_waitcnt lgkmcnt(0)")
        if q == 13: ln_stats_issue(A)
        k = 0
        while issued < 18 and issued <= q + S and k < 2 and q != 8:
            dma_g1(issued); issued += 1; k += 1
        if q + 1 < 9: ut_job(q + 1)
        if q == 0:
            A(f"s_cmp_lg_u32 s{S_W}, 0")
            A(f"s_cbranch_scc1 {n}_Lns0")
            A("s_and_b32 s66, s2, 15")
            A("s_lshl_b32 s66, s66, 2")
            A("s_add_u32 s66, s66, 64")
            A("s_mov_b32 s65, 1")
            A(f"s_atomic_add s65, s[{P_DBG}:{P_DBG+1}], s66")
            A.label(f"{n}_Lns0")
        if q == 7:
            wot_issue(A)
            gate_issue(A)
        if q == 8:
            ut_store(A)
            A("s_waitcnt vmcnt(0)")
            wot_unit(A, 0)
            if "notouch" not in OPT:
                psrd(A, 4, P_WSP, None, 2048*4096)
                A("s_lshl_b32 s64, s2, 2")
                A(f"s_add_u32 s64, s64, s{S_W}")
                A("s_lshl_b32 s64, s64, 13")
                A("v_lshlrev_b32 v5, 7, v0")
                A.vm("buffer_load_dword v6, v5, s[4:7], s64 offen")
            gate_job(A, 0); gate_job(A, 1)
            A.stamp(8)
        if q == 10:
            psrd(A, 4, P_DBG, None, 256)
            A("v_and_b32 v5, 15, v0")
            A("v_lshlrev_b32 v5, 2, v5")
            r_init = A.vm("buffer_load_dword v6, v5, s[4:7], 0 offen offset:64 sc1")
        if q == 12:
            A.wait_vm(r_init)
            A("v_cmp_le_u32 vcc, 16, v6")
            A("s_nop 0")
            A("s_cmp_eq_u32 vcc_lo, -1")
            A(f"s_cbranch_scc1 {n}_Li_ok")
            init_wait(A, f"{n}_Li", 5, 4)
        if q == 13:
            A("s_mov_b32 s72, -2")
            A("s_mov_b32 s73, 0")
            A(f"s_lshl_b32 s{S_K0}, s{S_TT}, 1")
            A(f"s_add_u32 s{S_K0}, s{S_K0}, 2")
            assert issued == 18
        if q == 14:
            A.stamp(4)
            ln_stats(A)
            A.stamp(5)
        if q == 15:
            r_z2 = ln_norm(A, range(9))
            dma_g2_B(sl(18)); dma_g2_B(sl(19))
            own_tile(A)
        if q == 17:
            dma_g2_B(sl(20)); dma_g2_B(sl(21))
    psrd(A, 8, P_WS, WS_MB, 4*MBSZ)
    A.wait_vm(r_z2)
    lds_arrive(A, [f"v_mov_b32 v10, {LDS_CNT + 4}"], 10, 3, f"{n}_Lnz")
    mb_push(A, MB_Z2, 16, ["v_lshlrev_b32 v10, 4, v0", f"v_add_u32 v10, s{S_FT}, v10"], S_TT, 10, 8)
    A.label(f"{n}_Lnz")
    A.stamp(6)
    wot_unit(A, 1)
    wg_wait(A, f"{n}_Lgz", S_W, LDS_CNT + 16, 10, lambda: mb_wait(A, f"{n}_Lz2", MB_Z2, S_O1, 16, 10, 8, sleep=PSLEEP))
    A("s_waitcnt vmcnt(0)")
    A.stamp(7)
    ready[20] = dma_g2_A(sl(20)); ready[21] = dma_g2_A(sl(21))
    A("s_waitcnt lgkmcnt(0)")
    A.bar("G2S")
    A(f"s_cmp_lg_u32 s{S_W}, 0")
    A(f"s_cbranch_scc1 {n}_Lnw")
    A(f"s_sub_u32 s65, s{S_CH}, 576")
    A("s_lshr_b32 s65, s65, 2")
    A("s_cmp_ge_u32 s65, 72")
    A(f"s_cbranch_scc1 {n}_Lnw")
    A("s_mul_i32 s66, s65, 57")
    A("s_lshr_b32 s66, s66, 9")
    A("s_mul_i32 s70, s66, 9")
    A("s_sub_u32 s70, s65, s70")
    mb_push(A, MB_WF, 32, ["v_lshlrev_b32 v20, 3, v0", "v_add_u32 v20, s66, v20"], 70, 20, 8)
    A.label(f"{n}_Lnw")
    A.bar("N18")
    dma_g2_B(sl(22)); ready[22] = dma_g2_A(sl(22))
    A.wait_vm(ready[20]); A.bar("N19")
    dma_g2_B(sl(23)); ready[23] = dma_g2_A(sl(23))
    A.wait_vm(ready[21]); A.bar("N20")
    dma_g2_B(sl(24)); ready[24] = dma_g2_A(sl(24))
    A(f"s_mov_b32 s74, {sl(25)}")
    def service():
        A("s_waitcnt vmcnt(18)")
        A("s_barrier")
        dma_g2_B("s74"); dma_g2_A("s74")
        A(f"s_add_u32 s74, s74, {STG}")
        A(f"s_cmp_eq_u32 s74, {S*STG}")
        A("s_cselect_b32 s74, 0, s74")
        A("s_sub_u32 s71, s71, 1")
    def loop(lbl, cnt):
        A(f"s_mov_b32 s71, {cnt}")
        A.label(lbl)
        service()
        A("s_cmp_lg_u32 s71, 0")
        A(f"s_cbranch_scc1 {lbl}")
    loop(f"{n}_Lg2", 12)
    A(f"s_lshl_b32 s64, s{S_O3}, 8")
    A(f"s_add_u32 s64, s64, {MB_WF - WS_MB}")
    A("v_min_u32 v10, 8, v0")
    A("v_lshlrev_b32 v10, 2, v10")
    A("buffer_load_dword v11, v10, s[8:11], s64 offen sc1")
    loop(f"{n}_Lg2b", TPOS - 12)
    A("v_cmp_eq_u32 vcc, 0, v11")
    A("s_nop 0")
    A("s_cmp_eq_u64 vcc, 0")
    A(f"s_cbranch_scc1 {n}_Lw_ok")
    mb_wait(A, f"{n}_Lw", MB_WF, S_O3, 9, 10, 8)
    if "touchA" in OPT:
        nsh = 4 if "map3new" in OPT else 8
        per = 2592 // (4*nsh)
        A(f"s_mul_i32 s64, s{S_J}, {72*4608}")
        A(f"s_add_u32 s64, s64, {WS_WOT}")
        psrd(A, 4, P_WS, "s64", 72*4608)
        A(f"s_and_b32 s64, s{S_T64}, {nsh-1}")
        A("s_lshl_b32 s64, s64, 2")
        A(f"s_add_u32 s64, s64, s{S_W}")
        A(f"s_mul_i32 s64, s64, {per*128}")
        A("v_lshlrev_b32 v10, 7, v0")
        done = 0
        while done < per:
            st = min(done, per - 64)
            A(f"s_add_u32 s65, s64, {st*128}")
            A("buffer_load_dword v11, v10, s[4:7], s65 offen sc1")
            done = st + 64
    loop(f"{n}_Lg2c", 25 - TPOS)
    for q in range(21, 46): A.bars.append(f"N{q}")
    A("s_waitcnt vmcnt(18)"); A.bar("N46")
    g3_main(A)
    if diag:
        A.stamp(12, True)
        stamp_dump(A, f"{n}_Ld", 1)
    A("s_endpgm")
    A.vshift = 190
    A.label(f"{n}_Lutf")
    for cb in range(4):
        A(f"v_xor_b32 v15, {32*cb}, v13")
        for a in range(2):
            A(f"ds_read_b64_tr_b16 {vr(UR+4*cb+2*a,2)}, v15 offset:{a*2048}")
    A("s_waitcnt lgkmcnt(0)")
    A("s_setpc_b64 s[70:71]")

UR = 160
def ut_store(A):
    A(f"s_cmp_ge_u32 s{S_FT}, 9")
    A(f"s_cbranch_scc1 {n}_Lus")
    A(f"s_lshl_b32 s64, s{S_FT}, 18")
    A(f"s_lshl_b32 s65, s{S_TT}, 8")
    A("s_add_u32 s64, s64, s65")
    A(f"s_lshl_b32 s65, s{S_W}, 6")
    A("s_add_u32 s64, s64, s65")
    A(f"s_add_u32 s64, s64, {WS_UT}")
    psrd(A, 4, P_WS, "s64", 63*4096 + 64)
    for cb in range(4):
        A(f"s_mov_b32 s64, {cb*65536}")
        A(f"buffer_store_dwordx4 {vr(UR+4*cb,4)}, v14, s[4:7], s64 offen sc1")
    A.label(f"{n}_Lus")

def ln_loads(A, T=16):
    for j in range(8):
        A(f"buffer_load_dwordx2 {vr(T+2*j,2)}, v{7 if j < 4 else 9}, s[4:7], s0 offen offset:{(j&3)*1024} sc1")

def ln_stats_issue(A):
    A(f"s_lshl_b32 s65, s{S_TT}, 14")
    A(f"s_add_u32 s65, s65, {WS_ST}")
    psrd(A, 4, P_WS, "s65", 16384)
    A("v_and_b32 v6, 31, v0")
    A("v_lshlrev_b32 v6, 3, v6")
    A("v_lshrrev_b32 v7, 5, v0")
    A("v_lshl_add_u32 v7, v7, 13, v6")
    A(f"s_lshl_b32 s0, s{S_W}, 8")
    A("v_add_u32 v9, 4096, v7")
    ln_loads(A); A.nvm += 8

def ln_stats(A):
    T = 16
    A("s_mov_b32 s65, 0")
    A("s_waitcnt vmcnt(9)")
    A(f"s_branch {n}_Lst_chk")
    A.label(f"{n}_Lst_poll")
    ln_loads(A)
    A("s_waitcnt vmcnt(0)")
    A.label(f"{n}_Lst_chk")
    A(f"v_max_u32 v8, v{T}, v{T+1}")
    for j in range(1, 8): A(f"v_max3_u32 v8, v8, v{T+2*j}, v{T+2*j+1}")
    A("v_cmp_eq_u32 vcc, -1, v8")
    A("s_add_u32 s65, s65, 1")
    A("s_cmp_eq_u64 vcc, 0")
    A(f"s_cbranch_scc1 {n}_Lst_ok")
    A("s_sleep 4")
    A("s_cmp_lt_u32 s65, 50000")
    A(f"s_cbranch_scc1 {n}_Lst_poll")
    A.label(f"{n}_Lst_ok")
    A(f"s_add_u32 s74, s0, {LDS_X}")
    A("v_add_u32 v6, s74, v6")
    for stp in (4, 2, 1):
        for j in range(stp):
            A(f"v_add_f32 v{T+2*j}, v{T+2*j}, v{T+2*(j+stp)}")
            A(f"v_add_f32 v{T+2*j+1}, v{T+2*j+1}, v{T+2*(j+stp)+1}")
    A(f"v_mov_b32 v{T+2}, v{T}")
    A(f"v_mov_b32 v{T+3}, v{T+1}")
    A("s_nop 1")
    A(f"v_permlane32_swap_b32 v{T}, v{T+2}")
    A(f"v_permlane32_swap_b32 v{T+1}, v{T+3}")
    A("s_nop 1")
    A(f"v_add_f32 v{T}, v{T}, v{T+2}")
    A(f"v_add_f32 v{T+1}, v{T+1}, v{T+3}")
    A(f"v_mul_f32 v{T}, {f32(1/2304)}, v{T}")
    A(f"v_mul_f32 v{T+1}, {f32(1/2304)}, v{T+1}")
    A(f"v_fma_f32 v{T+1}, -v{T}, v{T}, v{T+1}")
    A(f"v_max_f32 v{T+1}, 0, v{T+1}")
    bf16_round(A, T); bf16_round(A, T+1)
    A(f"v_add_f32 v{T+1}, {f32(1e-5)}, v{T+1}")
    bf16_round(A, T+1)
    A(f"v_sqrt_f32 v{T+1}, v{T+1}")
    A("s_nop 0")
    bf16_round(A, T+1)
    A(f"v_rcp_f32 v{T+2}, v{T+1}")
    A("s_nop 0")
    A(f"v_mul_f32 v{T+3}, v{T}, v{T+2}")
    A(f"v_sub_f32 v{T+3}, 0, v{T+3}")
    A(f"ds_write_b64 v6, {vr(T+2,2)}")
    A("v_lshrrev_b32 v7, 4, v0")
    A("v_lshlrev_b32 v7, 6, v7")
    A("v_add_u32 v7, s74, v7")
    for i in range(4): A(f"ds_read_b128 {vr(LSC+4*i,4)}, v7 offset:{16*i}")
    A(f"s_lshl_b32 s65, s{S_FT}, 5")
    A(f"s_lshl_b32 s71, s{S_TT}, 1")
    A("s_add_u32 s65, s65, s71")
    A("s_mul_i32 s65, s65, 18432")
    A(f"s_mul_i32 s71, s{S_W}, 9216")
    A("s_add_u32 s65, s65, s71")
    A(f"s_add_u32 s65, s65, {WS_Z2F}")
    psrd(A, 4, P_WS, "s65", 9216)
    A("s_movk_i32 s71, 4096")
    A("s_movk_i32 s74, 8192")
    A("s_waitcnt lgkmcnt(0)")

LSC = 100
def ln_norm(A, tiles):
    for t in tiles:
        tb = 16 + 8*(t & 1)
        for j in range(4):
            A(f"v_lshlrev_b32 v{tb+2*j}, 16, v{ZL+4*t+j}")
            A(f"v_and_b32 v{tb+2*j+1}, 0xffff0000, v{ZL+4*t+j}")
        for i in range(8): A(f"v_fma_f32 v{tb+i}, v{tb+i}, v{LSC+2*i}, v{LSC+2*i+1}")
        for j in range(4): A(f"v_cvt_pk_bf16_f32 v{ZL+4*t+j}, v{tb+2*j}, v{tb+2*j+1}")
        so = ["0", "s71", "s74"][t >> 2]
        r = A.vm(f"buffer_store_dwordx4 {vr(ZL+4*t,4)}, v{VA}, s[4:7], {so} offen offset:{(t&3)*1024} sc1")
    return r

def own_tile(A):
    A(f"s_lshr_b32 s64, s{S_W}, 1")
    A(f"s_mul_i32 s64, s64, {STG}")
    A(f"s_and_b32 s66, s{S_W}, 1")
    A("s_mul_i32 s66, s66, 9216")
    A("s_add_u32 s64, s64, s66")
    A(f"s_add_u32 s64, s64, {(18 % S)*STG}")
    A(f"v_add_u32 v7, s64, v{VA}")
    for t in range(9): A(f"ds_write_b128 v7, {vr(ZL+4*t,4)} offset:{t*1024}")

GX, GW = 120, 156
def gate_issue(A):
    A(f"s_cmp_lt_u32 s{S_FT}, 12")
    A(f"s_cbranch_scc1 {n}_gi")
    psrd(A, 4, P_U, None, 2048*1152)
    A(f"s_lshl_b32 s64, s{S_TT}, 2")
    A(f"s_add_u32 s64, s64, s{S_FT}")
    A("s_sub_u32 s64, s64, 12")
    A("s_lshl_b32 s64, s64, 2")
    A(f"s_add_u32 s64, s64, s{S_W}")
    A("s_lshl_b32 s64, s64, 3")
    A("v_lshrrev_b32 v45, 4, v0")
    A("v_add_u32 v45, s64, v45")
    A("v_and_b32 v6, 15, v0")
    A("v_lshlrev_b32 v6, 3, v6")
    A("v_mul_u32_u24 v7, 1152, v45")
    A("v_add_u32 v7, v7, v6")
    A(f"s_movk_i32 s64, {4*1152}")
    for rd in range(2):
        for i in range(9): A(f"buffer_load_dwordx2 {vr(GX+18*rd+2*i,2)}, v7, s[4:7], {'s64' if rd else '0'} offen offset:{128*i}")
    psrd(A, 4, P_GATE, None, 1152)
    for i in range(9): A(f"buffer_load_dwordx2 {vr(GW+2*i,2)}, v6, s[4:7], 0 offen offset:{128*i}")
    A.label(f"{n}_gi")

def gate_job(A, rd=0):
    A(f"s_cmp_lt_u32 s{S_FT}, 12")
    A(f"s_cbranch_scc1 {n}_gj{rd}")
    A("v_mov_b32 v8, 0")
    A("v_mov_b32 v9, 0x3f803f80")
    for i in range(18):
        t = 36 + 4*(i & 1)
        A(f"v_lshlrev_b32 v{t}, 16, v{GX+18*rd+i}")
        A(f"v_and_b32 v{t+1}, 0xffff0000, v{GX+18*rd+i}")
        A(f"v_lshlrev_b32 v{t+2}, 16, v{GW+i}")
        A(f"v_and_b32 v{t+3}, 0xffff0000, v{GW+i}")
        A(f"v_mul_f32 v{t}, v{t}, v{t+2}")
        A(f"v_mul_f32 v{t+1}, v{t+1}, v{t+3}")
        A(f"v_cvt_pk_bf16_f32 v{t}, v{t}, v{t+1}")
        A(f"v_and_b32 v{t+1}, 0xffff0000, v{t}")
        A(f"v_lshlrev_b32 v{t}, 16, v{t}")
        A(f"v_add_f32 v8, v8, v{t+1}")
        A(f"v_add_f32 v8, v8, v{t}")
    for rot in (8, 4, 2, 1):
        A("s_nop 1")
        A(f"v_add_f32_dpp v8, v8, v8 row_ror:{rot} row_mask:0xf bank_mask:0xf")
    bf16_round(A, 8)
    A(f"v_mul_f32 v8, {f32(-LOG2E)}, v8")
    A("v_exp_f32 v8, v8")
    A("s_nop 0")
    A("v_add_f32 v8, 1.0, v8")
    A("v_rcp_f32 v8, v8")
    A("s_nop 0")
    bf16_round(A, 8)
    A("v_sub_f32 v9, 1.0, v8")
    bf16_round(A, 9)
    psrd(A, 4, P_WS, WS_G, 2048*8)
    A("v_lshlrev_b32 v5, 3, v45")
    set_exec(A, 0x00010001, 0x00010001)
    A(f"buffer_store_dwordx2 v[8:9], v5, s[4:7], 0 offen offset:{32*rd} sc1")
    A("s_mov_b64 exec, -1")
    A.label(f"{n}_gj{rd}")

def wot_issue(A):
    for i in range(5):
        A(f"v_add_u32 v8, {64*i}, v0")
        A("v_mul_u32_u24 v9, 7282, v8")
        A("v_lshrrev_b32 v9, 16, v9")
        A("v_mul_u32_u24 v10, 9, v9")
        A("v_sub_u32 v10, v8, v10")
        A("v_mul_u32_u24 v9, 1152, v9")
        A(f"v_lshl_add_u32 v{40+i}, v10, 4, v9")
    A(f"s_sub_u32 s65, s{S_CH}, 576")
    A("s_lshr_b32 s1, s65, 2")
    A("s_cmp_ge_u32 s1, 72")
    A(f"s_cbranch_scc1 {n}_sj1")
    A("s_mul_i32 s64, s1, 57")
    A("s_lshr_b32 s64, s64, 9")
    A("s_mul_i32 s66, s64, 9")
    A("s_sub_u32 s66, s1, s66")
    A("s_lshl_b32 s66, s66, 2")
    A(f"s_add_u32 s66, s66, s{S_W}")
    A("s_lshl_b32 s66, s66, 1")
    A("s_mul_i32 s24, s64, 72")
    A("s_add_u32 s24, s24, s66")
    A(f"s_mul_i32 s0, s66, {32*1152}")
    A("s_mul_i32 s64, s64, 144")
    A("s_add_u32 s0, s0, s64")
    A(f"s_mul_i32 s31, s{S_W}, {ssm.RSZ}")
    A(f"s_add_u32 s31, s31, {LDS_X + 1024}")
    psrd(A, 4, P_WOUT, None, 2304*1152)
    wot_dma(A)
    A.label(f"{n}_sj1")

def wot_dma(A):
    for i in range(5):
        A(f"s_add_u32 m0, s31, {1024*i}")
        A("s_mov_b64 exec, 0xffffffff" if i == 4 else "s_nop 0")
        A(f"buffer_load_dwordx4 v{40+i}, s[4:7], s0 offen lds")
    A("s_mov_b64 exec, -1")

def wot_unit(A, u):
    A(f"s_sub_u32 s65, s{S_CH}, 576")
    A("s_cmp_ge_u32 s65, 288")
    A(f"s_cbranch_scc1 {n}_sj2{u}")
    A("v_lshrrev_b32 v5, 2, v0")
    A("v_mul_u32_u24 v5, 144, v5")
    A("v_and_b32 v6, 3, v0")
    A("v_lshl_add_u32 v7, v6, 4, v5")
    A("v_add_u32 v7, s31, v7")
    A("v_lshl_add_u32 v8, v6, 3, v5")
    A("v_add_u32 v8, s31, v8")
    A("v_lshlrev_b32 v9, 4, v0")
    A("v_and_b32 v10, 7, v0")
    A("v_lshrrev_b32 v13, 4, v0")
    A("v_lshl_add_u32 v10, v13, 3, v10")
    A("v_lshlrev_b32 v10, 4, v10")
    A("v_add_u32 v10, 4096, v10")
    for q in range(5):
        for h in range(2):
            if q < 4: A(f"ds_read_b64_tr_b16 {vr(16+4*q+2*h,2)}, v7 offset:{h*16*144 + 64*(q>>1) + 8*(q&1)}")
            else:     A(f"ds_read_b64_tr_b16 {vr(16+4*q+2*h,2)}, v8 offset:{h*16*144 + 128}")
    A("s_waitcnt lgkmcnt(0)")
    if u == 0:
        psrd(A, 4, P_WOUT, None, 2304*1152)
        A(f"s_add_u32 s0, s0, {32*1152}")
        wot_dma(A)
    A("s_mul_i32 s64, s24, 4608")
    A(f"s_add_u32 s64, s64, {WS_WOT + u*4608}")
    psrd(A, 4, P_WS, "s64", 4608)
    for q in range(4):
        A(f"buffer_store_dwordx4 {vr(16+4*q,4)}, v9, s[4:7], 0 offen offset:{1024*q} sc1")
    set_exec(A, 0x00ff00ff, 0x00ff00ff)
    A(f"buffer_store_dwordx4 {vr(32,4)}, v10, s[4:7], 0 offen sc1")
    A("s_mov_b64 exec, -1")
    A.label(f"{n}_sj2{u}")

def sinit_wait(A, lbl):
    A("s_mov_b32 s64, 0")
    A.label(f"{lbl}_poll")
    A(f"s_load_dwordx4 s[4:7], s[{P_DBG}:{P_DBG+1}], 0 glc")
    A("s_waitcnt lgkmcnt(0)")
    for i in range(1, 4): A(f"s_min_u32 s4, s4, s{4+i}")
    A("s_add_u32 s64, s64, 1")
    A("s_cmp_ge_u32 s4, 64")
    A(f"s_cbranch_scc1 {lbl}_ok")
    A("s_sleep 16")
    A("s_cmp_lt_u32 s64, 20000")
    A(f"s_cbranch_scc1 {lbl}_poll")
    A.label(f"{lbl}_ok")

def gen_C(A, diag):
    A.label(f"{n}_C")
    ACC2 = 16; Z2P = 16; ACC1 = 52
    SET = [124, 168]
    RX = 212; RW = 214; RWT = 222; VC1 = 15; SUM = 224; Z1P = 216
    if "noprio" not in OPT: A("s_setprio 2")
    psrd(A, 20, P_WS, WS_MB, 4*MBSZ)
    def clears(tag):
        A(f"s_cmp_lg_u32 s{S_W}, 0")
        A(f"s_cbranch_scc1 {n}_Cni{tag}")
        A.vshift = 184
        A("v_lshrrev_b32 v2, 4, v0")
        A("v_and_b32 v3, 15, v0")
        A("v_lshlrev_b32 v3, 4, v3")
        A("v_lshl_add_u32 v3, v2, 16, v3")
        A(f"v_mov_b32 v4, s{S_O3}")
        A(f"v_mov_b32 v5, s{S_O1}")
        A("v_cmp_eq_u32 vcc, 0, v2")
        A("s_nop 1")
        A("v_cndmask_b32 v4, v4, v5, vcc")
        A("v_lshl_add_u32 v3, v4, 8, v3")
        for i in range(4): A(f"v_mov_b32 v{4+i}, 0")
        A("buffer_store_dwordx4 v[4:7], v3, s[20:23], 0 offen sc1")
        A(f"v_mov_b32 v2, {LDS_CNT}")
        A("ds_write_b128 v2, v[4:7]")
        A("ds_write_b128 v2, v[4:7] offset:16")
        A(f"s_lshl_b32 s64, s{S_O1}, 10")
        A(f"s_add_u32 s64, s64, {WS_ST}")
        psrd(A, 4, P_WS, "s64", 1024)
        for i in range(4): A(f"v_mov_b32 v{8+i}, -1")
        A("v_lshlrev_b32 v1, 4, v0")
        A("buffer_store_dwordx4 v[8:11], v1, s[4:7], 0 offen sc1")
        A.vshift = 0
        A.label(f"{n}_Cni{tag}")
    A(f"s_cmp_ge_u32 s{S_FT}, 9")
    A(f"s_cbranch_scc1 {n}_Cnp")
    if "sstamp" in OPT: A.stamp(9)
    A(f"s_mul_i32 s1, s{S_W}, {ssm.RSZ}")
    A(f"s_add_u32 s1, s1, {ssm.R0_BASE}")
    A(f"s_add_u32 s{S_R0}, s1, {ssm.R0_OFF}")
    A("s_waitcnt vmcnt(0)")
    if "sstamp" in OPT: A.stamp(10)
    clears("a")
    ssm.kgen(A, 1, S_R0, 2 if 'kfull' in OPT else 0, True)
    if "sstamp" in OPT: A.stamp(11); A.used = {9, 10, 11}
    A(f"s_branch {n}_Cnk")
    A.label(f"{n}_Cnp")
    clears("b")
    A("s_waitcnt vmcnt(0)")
    A(f"s_sub_u32 s67, s{S_CH}, 576")
    A("s_cmp_ge_u32 s67, 324")
    A(f"s_cbranch_scc1 {n}_Cnk")
    A("s_lshl_b32 s64, s67, 6")
    A("v_add_u32 v2, s64, v0")
    A("v_mul_u32_u24 v3, 3641, v2")
    A("v_lshrrev_b32 v3, 17, v3")
    A("v_mul_u32_u24 v4, 36, v3")
    A("v_add_u32 v4, v4, v2")
    A("v_lshlrev_b32 v4, 7, v4")
    A("v_lshlrev_b32 v2, 7, v2")
    if "notouch1" not in OPT:
        psrd(A, 4, P_WIN, None, 576*9216)
        A("buffer_load_dword v244, v4, s[4:7], 0 offen")
        psrd(A, 4, P_WOUT, None, 2304*1152)
        A("buffer_load_dword v245, v2, s[4:7], 0 offen")
    A.label(f"{n}_Cnk")
    A("v_and_b32 v5, 15, v0")
    A("v_lshrrev_b32 v6, 4, v0")
    A("v_lshrrev_b32 v7, 1, v5")
    A("v_xor_b32 v7, v7, v6")
    A("v_lshlrev_b32 v7, 4, v7")
    A("v_lshl_add_u32 v7, v5, 7, v7")
    A(f"s_lshl_b32 s64, s{S_W}, 12")
    A("s_add_u32 s64, s64, 18432")
    A(f"v_add_u32 v{RX}, s64, v7")
    A(f"v_xor_b32 v{RX+1}, 64, v{RX}")
    A(f"v_mov_b32 v14, v{RX}")
    A("v_and_b32 v2, 1, v6")
    A("v_lshrrev_b32 v3, 2, v5")
    A("v_lshl_add_u32 v2, v2, 2, v3")
    A("v_lshrrev_b32 v3, 1, v6")
    A("v_lshl_add_u32 v3, v3, 4, v2")
    A("v_and_b32 v4, 3, v5")
    A("v_lshlrev_b32 v4, 3, v4")
    A("v_lshl_add_u32 v7, v3, 8, v4")
    A("v_lshl_add_u32 v7, v2, 5, v7")
    for b in range(8): A(f"v_xor_b32 v{RW+b}, {32*b}, v7")
    A("v_lshl_add_u32 v7, v3, 5, v4")
    A(f"v_add_u32 v{RWT}, 16384, v7")
    A(f"v_mov_b32 v{VC1}, {f32(GC1)}")
    for r in range(72): A(f"v_mov_b32 v{ACC2+r}, 0")
    A("s_mov_b32 s68, 0")
    A(f"s_mov_b32 s69, {STG}")
    def g1_reads(setid, ks):
        b = SET[setid]
        X = lambda a: [f"ds_read_b128 {vr(b+4*a,4)}, v{RX+ks} offset:{a*2048}"]
        def W(t, h):
            if t < 8: return [f"ds_read_b64_tr_b16 {vr(b+8+4*t+2*h,2)}, v{RW+t} offset:{ks*8192+h*2048}"]
            return [f"ds_read_b64_tr_b16 {vr(b+8+4*t+2*h,2)}, v{RWT} offset:{ks*1024+h*256}"]
        out = [X(0), W(0,0), W(0,1), X(1)]
        for t in range(1, 9): out += [W(t,0), W(t,1)]
        return out
    def g1_mfmas(setid, half):
        b = SET[setid]
        out = []
        for t in range(9):
            for a in range(2):
                c = (ACC2 if half == 0 else ACC1) + (t*2+a)*4
                x = vr(b+4*a,4); w = vr(b+8+4*t,4)
                out.append(f"v_mfma_f32_16x16x32_bf16 {vr(c,4)}, {x}, {w}, {vr(c,4)}" if half == 0 else
                           f"v_mfma_f32_16x16x32_bf16 {vr(c,4)}, {w}, {x}, {vr(c,4)}")
        return out
    def advance(regs):
        o = [["s_add_u32 s68, s68, 1", "s_and_b32 s68, s68, 3"], [f"s_cselect_b32 s70, s69, {-3*STG}"]]
        return o + [[f"v_add_u32 v{r}, s70, v{r}"] for r in regs]
    def g1_loop(half):
        A(f"s_mov_b32 s71, {3 - half}")
        A.raw(".p2align 6")
        A.label(f"{n}_g1{half}")
        for u in range(3):
            A("s_waitcnt lgkmcnt(0)")
            A(interleave(g1_mfmas(0, half), g1_reads(1, 1) + advance(range(RX, RWT+1)), per=2))
            A("s_waitcnt lgkmcnt(0)")
            A("s_barrier")
            A(interleave(g1_mfmas(1, half), g1_reads(0, 0), per=2))
        A("s_sub_u32 s71, s71, 1")
        A("s_cmp_lg_u32 s71, 0")
        A(f"s_cbranch_scc1 {n}_g1{half}")
        for q in range(9 if half == 0 else 6): A.bars.append(f"M{9*half+q}")
        if half:
            for u in range(3):
                A("s_waitcnt lgkmcnt(0)")
                A(interleave(g1_mfmas(0, half), g1_reads(1, 1) + (advance(range(RX, RWT+1)) if u < 2 else []), per=2))
                A("s_waitcnt lgkmcnt(0)")
                if u == 0: A.bar("M15")
                A(interleave(g1_mfmas(1, half), g1_reads(0, 0) if u < 2 else [], per=2))
    A(f"s_cmp_ge_u32 s{S_FT}, 9")
    A(f"s_cbranch_scc1 {n}_Cnw0")
    A("s_waitcnt vmcnt(0)")
    A.label(f"{n}_Cnw0")
    A.bar("B0")
    A.stamp(2)
    for g in g1_reads(0, 0): A(g)
    g1_loop(0)
    A.stamp(3)
    A("v_lshlrev_b32 v1, 4, v0")
    A(f"s_lshl_b32 s64, s{S_W}, 10")
    A("v_add_u32 v1, s64, v1")
    A(f"v_add_u32 v2, {XH}, v1")
    T = SET[1]
    for i in range(16): A(f"v_mov_b32 v{SUM+i}, 0")
    for t in range(9):
        regs = [ACC2 + 8*t + i for i in range(8)]
        A(gelu_ops(regs, T, VC1))
        for i in range(8): A(f"v_add_f32 v{SUM+2*i}, v{SUM+2*i}, v{regs[i]}")
        for i in range(8): A(f"v_fmac_f32 v{SUM+2*i+1}, v{regs[i]}, v{regs[i]}")
        for j in range(4): A(f"v_cvt_pk_bf16_f32 v{Z2P+4*t+j}, v{regs[2*j]}, v{regs[2*j+1]}")
        if t < 8: A(f"ds_write_b128 v1, {vr(Z2P+4*t,4)} offset:{(t>>2)*18432 + (t&3)*4096}")
        else:     A(f"ds_write_b128 v2, {vr(Z2P+4*t,4)}")
    for rot in (8, 4, 2, 1):
        for i in range(16):
            A(f"v_add_f32_dpp v{SUM+i}, v{SUM+i}, v{SUM+i} row_ror:{rot} row_mask:0xf bank_mask:0xf")
    A(f"s_lshl_b32 s64, s{S_O1}, 10")
    A(f"s_add_u32 s64, s64, {WS_ST}")
    psrd(A, 4, P_WS, "s64", 1024)
    A("v_lshrrev_b32 v6, 4, v0")
    A("v_lshlrev_b32 v6, 6, v6")
    A(f"s_lshl_b32 s65, s{S_W}, 8")
    A("v_add_u32 v6, s65, v6")
    set_exec(A, 0x00010001, 0x00010001)
    for i in range(4):
        A(f"buffer_store_dwordx4 {vr(SUM+4*i,4)}, v6, s[4:7], 0 offen offset:{16*i} sc1")
    A("s_mov_b64 exec, -1")
    for r in range(72): A(f"v_mov_b32 v{ACC1+r}, 0")
    A.stamp(4)
    g1_loop(1)
    A.stamp(5)
    A("v_and_b32 v5, 15, v0")
    A("v_lshrrev_b32 v8, 2, v5")
    A("v_lshlrev_b32 v8, 3, v8")
    A("v_and_b32 v9, 3, v5")
    A("v_add_u32 v8, v8, v9")
    A(f"s_lshl_b32 s64, s{S_W}, 5")
    A("v_add_u32 v8, s64, v8")
    A("v_lshlrev_b32 v11, 1, v8")
    A(f"s_lshl_b32 s64, s{S_TT}, 8")
    psrd(A, 4, P_BSP, "s64", 256)
    A("buffer_load_ushort v12, v11, s[4:7], 0 offen")
    A("buffer_load_ushort v13, v11, s[4:7], 0 offen offset:8")
    if 'kfull' not in OPT:
        A(f"s_cmp_ge_u32 s{S_FT}, 9")
        A(f"s_cbranch_scc1 {n}_Cnp2")
        A.vshift = 20
        ssm.kgen_load(A, S_CH)
        A.vshift = 0
        A.label(f"{n}_Cnp2")
    A("s_waitcnt lgkmcnt(0)")
    for t in range(9):
        regs = [ACC1 + 8*t + i for i in range(8)]
        A(gelu_ops(regs, T, VC1))
        for nb in range(2):
            for j in range(2):
                dst = Z1P + ((nb*4 + (t >> 1))*4 + (t & 1)*2 + j if t < 8 else 32 + nb*2 + j)
                A(f"v_cvt_pk_bf16_f32 v{dst}, v{regs[4*nb+2*j]}, v{regs[4*nb+2*j+1]}")
        if t == 1: A.bar("M17")
    A.stamp(6)
    A("s_waitcnt vmcnt(0)")
    if 'kfull' not in OPT:
        A(f"s_cmp_ge_u32 s{S_FT}, 9")
        A(f"s_cbranch_scc1 {n}_Cnk2")
        for i in range(3): A(f"v_mov_b32 v{212+i}, v{12+i}")
        for i in range(5): A(f"v_mov_b32 v{4+i}, v{24+i}")
        A(f"s_mul_i32 s64, s{S_W}, {ssm.RSZ}")
        A(f"s_add_u32 s1, s64, {ssm.R0_BASE}")
        A(f"s_add_u32 s72, s64, {ssm.R0_BASE + ssm.R0_OFF}")
        ssm.kgen(A, 1, 72, 1, True)
        for i in range(3): A(f"v_mov_b32 v{12+i}, v{212+i}")
        A.label(f"{n}_Cnk2")
        A.stamp(7)
    ACC = 16; SET2 = [88, 132]; RA = 176; RB = 180
    A("v_lshlrev_b32 v10, 4, v0")
    for st in range(S):
        A(f"v_add_u32 v{RA+st}, {st*STG}, v10")
        A(f"v_add_u32 v{RB+2*st}, {st*STG}, v14")
        A(f"v_xor_b32 v{RB+2*st+1}, 64, v{RB+2*st}")
    A(f"s_lshl_b32 s64, s{S_TT}, 1")
    A(f"s_lshr_b32 s65, s{S_W}, 1")
    A("s_add_u32 s64, s64, s65")
    A(f"s_mul_i32 s64, s64, {72*4096}")
    A(f"s_and_b32 s65, s{S_W}, 1")
    A("s_lshl_b32 s65, s65, 11")
    A("s_add_u32 s64, s64, s65")
    A(f"s_add_u32 s64, s64, {WS_HF}")
    psrd(A, 16, P_WS, "s64", 72*4096)
    if "prestore" in OPT:
        A(f"s_lshl_b32 s70, s{S_FT}, 14")
        for i in range(1, 4): A(f"s_add_u32 s{70+i}, s70, {4096*i}")
        for j in range(8):
            A(f"buffer_store_dwordx4 v[200:203], v10, s[16:19], s{70+(j&3)} offen offset:{(j>>2)*1024}{'' if 'plain' in OPT else ' sc1'}")
    A("v_lshlrev_b32 v12, 16, v12")
    A("v_lshlrev_b32 v13, 16, v13")
    for a in range(9):
        for nb in range(2):
            for r in range(4): A(f"v_mov_b32 v{ACC+(a*2+nb)*4+r}, v{12+nb}")
    def g2_reads(setid, slot, ks):
        b = SET2[setid]
        out = []
        for kind, i in [("B", 0), ("A", 0), ("B", 1)] + [("A", a) for a in range(1, 9)]:
            if kind == "B": out.append([f"ds_read_b128 {vr(b+4*i,4)}, v{RB+2*slot+ks} offset:{i*2048}"])
            else:           out.append([f"ds_read_b128 {vr(b+8+4*i,4)}, v{RA+slot} offset:{(ks*9+i)*1024}"])
        return out
    def g2_mfmas(setid):
        b = SET2[setid]
        return [f"v_mfma_f32_16x16x32_bf16 {vr(ACC+(a*2+nb)*4,4)}, {vr(b+8+4*a,4)}, {vr(b+4*nb,4)}, {vr(ACC+(a*2+nb)*4,4)}"
                for a in range(9) for nb in range(2)]
    A("s_waitcnt lgkmcnt(0)")
    A.bar("G2S")
    A.stamp(8)
    for g in g2_reads(0, 18 % S, 0): A(g)
    A("s_mov_b32 s71, 8")
    A.raw(".p2align 6")
    A.label(f"{n}_g2")
    for rep in range(8 if "nstamp" in OPT else 1):
        if "nstamp" in OPT: A(f"s_memtime s[{80+2*rep}:{81+2*rep}]")
        for u in range(4):
            slot = (18 + u) % S
            A("s_waitcnt lgkmcnt(0)")
            A(interleave(g2_mfmas(0), g2_reads(1, slot, 1)))
            A("s_waitcnt lgkmcnt(0)")
            A("s_barrier")
            A(interleave(g2_mfmas(1), g2_reads(0, (slot+1) % S, 0)))
    if "nstamp" in OPT:
        A("s_memtime s[96:97]"); A.diag = False
    else:
        A("s_sub_u32 s71, s71, 1")
        A("s_cmp_lg_u32 s71, 0")
        A(f"s_cbranch_scc1 {n}_g2")
    for q in range(18, 50): A.bars.append(f"N{q}")
    A.stamp(9)
    A(f"s_lshl_b32 s70, s{S_FT}, 14")
    for i in range(1, 4): A(f"s_add_u32 s{70+i}, s70, {4096*i}")
    A(f"s_lshr_b32 s64, s{S_FT}, 1")
    A("s_lshl_b32 s64, s64, 12")
    A(f"s_and_b32 s65, s{S_FT}, 1")
    A("s_lshl_b32 s65, s65, 3")
    A("s_add_u32 s64, s64, s65")
    A(f"s_add_u32 s64, s64, {64*4096}")
    A("s_waitcnt lgkmcnt(0)")
    T2 = SET2[0]
    cnt = 0
    for j in range(9):
        for i in range(4):
            if j < 8: nb, a, rr = j >> 2, 2*(j & 3) + (i >> 1), 2*(i & 1)
            else:     nb, a, rr = i >> 1, 8, 2*(i & 1)
            c = ACC + (a*2+nb)*4 + rr
            t0 = T2 + 2*(cnt % 8); cnt += 1
            z = Z1P + 4*j + i
            A(f"v_lshlrev_b32 v{t0}, 16, v{z}")
            A(f"v_and_b32 v{t0+1}, 0xffff0000, v{z}")
            A(f"v_mul_f32 v{t0}, v{t0}, v{c}")
            A(f"v_mul_f32 v{t0+1}, v{t0+1}, v{c+1}")
            A(f"v_cvt_pk_bf16_f32 v{z}, v{t0}, v{t0+1}")
        if j < 8:
            A(f"buffer_store_dwordx4 {vr(Z1P+4*j,4)}, v10, s[16:19], s{70+(j&3)} offen offset:{(j>>2)*1024} sc1")
        else:
            for nb in range(2):
                A(f"buffer_store_dwordx2 {vr(Z1P+32+2*nb,2)}, v10, s[16:19], s64 offen offset:{nb*1024} sc1")
    A.bar("EPI")
    if "estamp" in OPT: A.stamp(2)
    def pub2(tag):
        if "estamp" in OPT: A.stamp(3)
        A("s_waitcnt vmcnt(0)")
        if "estamp" in OPT: A.stamp(4)
        A(f"s_lshr_b32 s65, s{S_W}, 1")
        A("s_lshl_b32 s70, s65, 2")
        A(f"s_add_u32 s70, s70, {LDS_CNT + 8}")
        lds_arrive(A, ["v_mov_b32 v200, s70"], 200, 1, f"{n}_Cnh{tag}")
        A(f"s_lshl_b32 s71, s{S_TT}, 1")
        A("s_add_u32 s71, s71, s65")
        A("s_lshl_b32 s71, s71, 3")
        mb_push(A, MB_H, 8, ["v_add_u32 v200, s71, v0"], S_FT, 200, 20)
        A.label(f"{n}_Cnh{tag}")
    A(f"s_cmp_ge_u32 s{S_FT}, 9")
    A(f"s_cbranch_scc1 {n}_Cnc")
    A(f"s_mul_i32 s64, s{S_W}, {ssm.RSZ}")
    A(f"s_add_u32 s1, s64, {ssm.R0_BASE}")
    A(f"s_add_u32 s72, s64, {ssm.R0_BASE + ssm.R0_OFF}")
    A(f"s_add_u32 s73, s64, {R1_BASE}")
    A(f"s_mul_i32 s74, s{S_W}, {ssm.USZ}")
    A(f"s_add_u32 s74, s74, {U_BASE}")
    if 'ksplit' in OPT:
        for i in range(5): A(f"v_mov_b32 v{4+i}, v{192+i}")
        bg = Stream(False)
        ssm.kgen(bg, 1, 72, 1, True)
        kch, _ = bg_split(bg.lines, [KHOOK, 99999])
        A.lines += kch[0]
        pub2("a")
        A.lines += kch[1]
    ssm.r1_build(A, 72, 73, 16)
    A("v_mov_b32 v6, 0"); A("v_mov_b32 v7, 0")
    A("v_lshlrev_b32 v8, 3, v0")
    A("v_add_u32 v8, s74, v8")
    set_exec(A, -1, 0x0fffffff)
    A("ds_write_b64 v8, v[6:7]")
    A("s_mov_b64 exec, -1")
    if "estamp" in OPT: A.stamp(5)
    ssm.conv(A, 72, 73, 74, S_CH, hook=None if 'ksplit' in OPT else (lambda: pub2('a')))
    A("s_waitcnt vmcnt(0)")
    lds_arrive(A, [f"v_mov_b32 v6, {LDS_CNT}"], 6, 3, f"{n}_Cnc2")
    A(f"s_lshr_b32 s74, s{S_CH}, 2")
    A("s_mul_i32 s72, s74, 3641")
    A("s_lshr_b32 s72, s72, 16")
    A("s_mul_i32 s73, s72, 18")
    A("s_sub_u32 s73, s74, s73")
    mb_push(A, MB_A, 32, ["v_lshlrev_b32 v14, 3, v0", "v_add_u32 v14, s72, v14"], 73, 14, 20)
    A(f"s_branch {n}_Cnc2")
    A.label(f"{n}_Cnc")
    pub2("b")
    A.label(f"{n}_Cnc2")
    A.stamp(10)
    g3(A)
    if diag:
        A("s_waitcnt vmcnt(0)")
        A.diag = True
        A.stamp(12, True)
        stamp_dump(A, f"{n}_Cd", 0)
        if "dbgdump" in OPT:
            A("s_memtime s[64:65]")
            A("s_waitcnt lgkmcnt(0)")
            A("s_cmp_lg_u32 s2, 9")
            A(f"s_cbranch_scc1 {n}_end")
            A(f"s_cmp_lg_u32 s{S_W}, 0")
            A(f"s_cbranch_scc1 {n}_end")
            psrd(A, 4, P_DBG, None, 64)
            for i in range(2, 12):
                A(f"s_sub_u32 s66, s{76+2*i}, s76"); A(f"v_mov_b32 v{4+i-2}, s66")
            A("s_sub_u32 s66, s64, s76"); A("v_mov_b32 v14, s66")
            A("s_sub_u32 s66, s100, s78"); A("v_mov_b32 v15, s66")
            A("v_mov_b32 v1, 0")
            for i in range(3): A(f"buffer_store_dwordx4 v[{4+4*i}:{7+4*i}], v1, s[4:7], 0 offen offset:{16*i}")
    A.label(f"{n}_end")
    A("s_endpgm")

NL = 4
TPOS = 21
AHINT = 10
DA, DB = (6, 3) if 'd63' in OPT else (4, 5) if 'd45' in OPT else (5, 4)
def g3_main(A):
    ACC = 4; AB = 84; BB = AB + 20*DA
    assert BB + 16*DB <= 252
    A.vshift = 0
    A("v_lshlrev_b32 v2, 4, v0")
    A("v_and_b32 v3, 7, v0")
    A("v_lshrrev_b32 v1, 4, v0")
    A("v_lshl_add_u32 v3, v1, 3, v3")
    A("v_lshlrev_b32 v3, 4, v3")
    A("v_add_u32 v3, 4096, v3")
    A(f"s_mul_i32 s64, s{S_J}, {72*4608}")
    A(f"s_add_u32 s64, s64, {WS_WOT}")
    psrd(A, 4, P_WS, "s64", 72*4608)
    A(f"s_mul_i32 s64, s{S_T64}, {72*4096}")
    A(f"s_add_u32 s64, s64, {WS_HF}")
    psrd(A, 12, P_WS, "s64", 72*4096)
    A(f"s_and_b32 s64, s{S_T64}, 3")
    A("s_lshl_b32 s64, s64, 1")
    if "rotT" not in OPT: A(f"s_add_u32 s64, s64, s{S_J}")
    A("s_and_b32 s64, s64, 7")
    A("s_mul_i32 s64, s64, 9")
    if "rotJ" in OPT: A(f"s_mul_i32 s64, s{S_J}, 9")
    elif "rot3" not in OPT: A("s_mov_b32 s64, 0")
    A(f"s_add_u32 s64, s64, s{S_W}")
    A("s_mul_i32 s70, s64, 4608")
    A("s_lshl_b32 s71, s64, 12")
    NK = 18
    ra = {}; rb = {}
    def loadA(it):
        b = AB + 20*(it % DA)
        for q in range(4): A.vm(f"buffer_load_dwordx4 {vr(b+4*q,4)}, v2, s[4:7], s70 offen offset:{1024*q} sc1")
        ra[it] = A.vm(f"buffer_load_dwordx4 {vr(b+16,4)}, v{3 if it < DA else 255}, s[4:7], s70 offen sc1")
        A(f"s_add_u32 s70, s70, {4*4608}")
        A(f"s_cmp_ge_u32 s70, {72*4608}")
        A(f"s_cselect_b32 s72, {72*4608}, 0")
        A("s_sub_u32 s70, s70, s72")
    def loadB(it):
        b = BB + 16*(it % DB)
        for q in range(4): rb[it] = A.vm(f"buffer_load_dwordx4 {vr(b+4*q,4)}, v2, s[12:15], s71 offen offset:{1024*q} sc1")
        A(f"s_add_u32 s71, s71, {4*4096}")
        A(f"s_cmp_ge_u32 s71, {72*4096}")
        A(f"s_cselect_b32 s72, {72*4096}, 0")
        A("s_sub_u32 s71, s71, s72")
    A(f"s_cmp_ge_u32 s{S_FT}, 9")
    A(f"s_cbranch_scc1 {n}_Lnu1")
    A(f"s_lshl_b32 s64, s{S_CH}, 12")
    A(f"s_add_u32 s64, s64, {WS_UT}")
    psrd(A, 16, P_WS, "s64", 4096)
    A(f"s_mul_i32 s66, s{S_W}, {ssm.USZ}")
    A(f"s_add_u32 m0, s66, {U_BASE + 480}")
    A("s_nop 0")
    for i in range(4):
        A(f"buffer_load_dwordx4 v2, s[16:19], 0 offen offset:{1024*i} sc1 lds")
    A.label(f"{n}_Lnu1")
    A("s_waitcnt vmcnt(9)")
    A.bar("N47")
    for r in range(80): A(f"v_mov_b32 v{ACC+r}, 0")
    A("s_waitcnt vmcnt(0)")
    loadA(0)
    A.bar("N48")
    loadA(1)
    A.bar("N49")
    A.bar("EPI")
    for it in range(2, DA): loadA(it)
    A(f"s_mul_i32 s73, s{S_W}, 20480")
    for u in range(NL):
        A(f"s_add_u32 m0, s73, {u*4608}")
        A("s_nop 0")
        for q in range(4): A.vm(f"buffer_load_dwordx4 v2, s[4:7], s70 offen offset:{1024*q} sc1 lds")
        A(f"s_add_u32 m0, s73, {u*4608 + 4096}")
        A("s_add_u32 s72, s70, 4096")
        A("s_mov_b64 exec, 0xffffffff")
        rl = A.vm("buffer_load_dwordx4 v2, s[4:7], s72 offen sc1 lds")
        A("s_mov_b64 exec, -1")
        A(f"s_add_u32 s70, s70, {4*4608}")
        A(f"s_cmp_ge_u32 s70, {72*4608}")
        A(f"s_cselect_b32 s72, {72*4608}, 0")
        A("s_sub_u32 s70, s70, s72")
    A("v_add_u32 v1, s73, v2")
    A("v_add_u32 v3, s73, v3")
    A("v_subrev_u32 v255, s73, v3")
    def ldsA(it):
        b = AB + 20*(it % DA); u = it - DA
        for q in range(4): A(f"ds_read_b128 {vr(b+4*q,4)}, v1 offset:{u*4608 + 1024*q}")
        A(f"ds_read_b128 {vr(b+16,4)}, v3 offset:{u*4608}")
        ra[it] = 0
    wg_wait(A, f"{n}_Lgh", S_W, LDS_CNT + 20, 252, lambda: mb_wait(A, f"{n}_Lh", MB_H, S_O3, 16, 252, 8, sleep=PSLEEP))
    A.stamp(9)
    A(f"s_lshl_b32 s64, s{S_T64}, 9")
    A(f"s_add_u32 s64, s64, {WS_G}")
    psrd(A, 16, P_WS, "s64", 512)
    A(f"s_mov_b32 m0, {LDS_G}")
    A("s_mov_b64 exec, 0xffffffff")
    A.vm("buffer_load_dwordx4 v2, s[16:19], 0 offen sc1 lds")
    A("s_mov_b64 exec, -1")
    for it in range(DB): loadB(it)
    for it in range(NK):
        A.wait_vm(max(ra[it], rb[it]), " lgkmcnt(0)" if DA <= it < DA + NL else "")
        if "gstamp" in OPT and it in (0, 1, 3, 6, 9, 12, 15): A.stamp(2 + (0, 1, 3, 6, 9, 12, 15).index(it))
        a = AB + 20*(it % DA); b = BB + 16*(it % DB)
        ia = it - 1 + DA
        fa = []
        if it >= 1 and ia < NK:
            ab = AB + 20*(ia % DA)
            if ia < DA + NL:
                u = ia - DA
                fa = [f"ds_read_b128 {vr(ab+4*q,4)}, v1 offset:{u*4608 + 1024*q}" for q in range(4)] + [f"ds_read_b128 {vr(ab+16,4)}, v3 offset:{u*4608}"]
                ra[ia] = 0
            else:
                fa = [f"buffer_load_dwordx4 {vr(ab+4*q,4)}, v2, s[4:7], s70 offen offset:{1024*q} sc1" for q in range(4)] + [f"buffer_load_dwordx4 {vr(ab+16,4)}, v255, s[4:7], s70 offen sc1"]
        for nt in range(4):
            for q in range(5):
                c = ACC + (nt*5+q)*4
                A(f"v_mfma_f32_16x16x32_bf16 {vr(c,4)}, {vr(a+4*q,4)}, {vr(b+4*nt,4)}, {vr(c,4)}")
                if fa and (q == 2 or (q == 0 and nt == 0)):
                    x = fa.pop(0)
                    if x.startswith("ds_"): A(x)
                    else: ra[ia] = A.vm(x)
            if it + DB < NK:
                rb[it+DB] = A.vm(f"buffer_load_dwordx4 {vr(b+4*nt,4)}, v2, s[12:15], s71 offen offset:{1024*nt} sc1")
        assert not fa
        if it + DB < NK:
            A(f"s_add_u32 s71, s71, {4*4096}")
            A(f"s_cmp_ge_u32 s71, {72*4096}")
            A(f"s_cselect_b32 s72, {72*4096}, 0")
            A("s_sub_u32 s71, s71, s72")
        if it >= 1 and DA + NL <= ia < NK:
            A(f"s_add_u32 s70, s70, {4*4608}")
            A(f"s_cmp_ge_u32 s70, {72*4608}")
            A(f"s_cselect_b32 s72, {72*4608}, 0")
            A("s_sub_u32 s70, s70, s72")
        if it == AHINT:
            A(f"v_mov_b32 v252, {LDS_CNT + 24}")
            A("ds_write_b32 v252, v252")
    A.stamp(10)
    A("s_nop 7")
    for nt in range(4):
        for q in range(5):
            A(f"ds_write_b128 v1, {vr(ACC+(nt*5+q)*4,4)} offset:{nt*5120+q*1024}")
    A("s_waitcnt lgkmcnt(0)")
    A.bar("RED")

def g3(A):
    A("v_lshlrev_b32 v2, 4, v0")
    A("v_lshrrev_b32 v4, 4, v0")
    A("v_and_b32 v5, 15, v0")
    A("v_lshrrev_b32 v6, 2, v5")
    A("v_lshlrev_b32 v6, 3, v6")
    A("v_and_b32 v7, 3, v5")
    A("v_add_u32 v6, v6, v7")
    A(f"s_lshr_b32 s70, s{S_W}, 1")
    A("s_lshl_b32 s70, s70, 5")
    A(f"s_and_b32 s66, s{S_W}, 1")
    A("s_lshl_b32 s66, s66, 2")
    A("s_add_u32 s70, s70, s66")
    A("v_add_u32 v6, s70, v6")
    A("v_lshlrev_b32 v15, 3, v6")
    A(f"v_add_u32 v15, {LDS_G}, v15")
    A(f"s_lshl_b32 s66, s{S_T64}, 6")
    A("v_add_u32 v6, s66, v6")
    A("v_mul_u32_u24 v6, 1152, v6")
    A(f"s_mul_i32 s66, s{S_J}, 144")
    A("v_add_u32 v6, s66, v6")
    A("v_lshl_add_u32 v10, v4, 4, v6")
    A("v_lshl_add_u32 v11, v4, 3, v6")
    psrd(A, 16, P_OUT, None, 2048*1152)
    A("v_lshrrev_b32 v12, 2, v5")
    A("v_lshl_add_u32 v13, v4, 3, v12")
    A("v_lshlrev_b32 v13, 7, v13")
    A("v_and_b32 v14, 3, v5")
    A("v_lshl_add_u32 v13, v14, 4, v13")
    A("s_lshl_b32 s70, s70, 1")
    A(f"s_add_u32 s70, s70, {LDS_AT}")
    A("v_add_u32 v13, s70, v13")
    A("v_lshl_add_u32 v12, v4, 2, v12")
    A("v_lshlrev_b32 v12, 7, v12")
    A("v_lshl_add_u32 v12, v14, 4, v12")
    A("v_add_u32 v12, s70, v12")
    A(f"s_cmp_lg_u32 s{S_W}, 0")
    A(f"s_cbranch_scc1 {n}_Cna")
    A(f"v_mov_b32 v16, {LDS_CNT + 24}")
    A("s_mov_b32 s65, 0")
    A.label(f"{n}_Cah")
    A("ds_read_b32 v17, v16")
    A("s_waitcnt lgkmcnt(0)")
    A("v_readfirstlane_b32 s66, v17")
    A("s_add_u32 s65, s65, 1")
    A("s_cmp_lg_u32 s66, 0")
    A(f"s_cbranch_scc1 {n}_Cah2")
    A("s_sleep 2")
    A("s_cmp_lt_u32 s65, 1000000")
    A(f"s_cbranch_scc1 {n}_Cah")
    A.label(f"{n}_Cah2")
    mb_wait(A, f"{n}_Ca", MB_A, S_O3, 18, 16, 20, sleep=8)
    A.stamp(11)
    A(f"s_mul_i32 s64, s{S_J}, {72*4096}")
    A(f"s_lshl_b32 s65, s{S_T64}, 7")
    A("s_add_u32 s64, s64, s65")
    A(f"s_add_u32 s64, s64, {WS_AT}")
    psrd(A, 12, P_WS, "s64", 71*4096+128)
    A("v_lshrrev_b32 v5, 3, v0")
    A("v_and_b32 v6, 7, v0")
    A("v_lshlrev_b32 v5, 12, v5")
    A("v_lshl_add_u32 v5, v6, 4, v5")
    for i in range(9):
        A(f"s_mov_b32 m0, {LDS_AT + 1024*i}")
        A(f"s_mov_b32 s70, {i*8*4096}")
        A("buffer_load_dwordx4 v5, s[12:15], s70 offen sc1 lds")
    A.label(f"{n}_Cna")
    A(f"s_mul_i32 s65, s{S_W}, 5120")
    A("v_add_u32 v14, s65, v2")
    A("v_add_u32 v3, 40960, v14")
    A("s_waitcnt vmcnt(0)")
    A.bar("RED")
    R = 96
    for src in range(4):
        for q in range(5):
            A(f"ds_read_b128 {vr(R+(src*5+q)*4,4)}, v{14 if src < 2 else 3} offset:{(src&1)*20480+q*1024}")
    AR = R + 80
    for q in range(4):
        A(f"ds_read_b64_tr_b16 {vr(AR+2*q,2)}, v13 offset:{(32*(q>>1)+4*(q&1))*128}")
    A(f"ds_read_b64_tr_b16 {vr(AR+8,2)}, v12 offset:{64*128}")
    A("ds_read_b64 v[8:9], v15")
    A("s_waitcnt lgkmcnt(0)")
    for i in range(20):
        A(f"v_add_f32 v{R+i}, v{R+i}, v{R+20+i}")
        A(f"v_add_f32 v{R+40+i}, v{R+40+i}, v{R+60+i}")
    for i in range(20): A(f"v_add_f32 v{R+i}, v{R+i}, v{R+40+i}")
    T = R + 20
    for i in range(10):
        A(f"v_lshlrev_b32 v{T+2*i}, 16, v{AR+i}")
        A(f"v_and_b32 v{T+2*i+1}, 0xffff0000, v{AR+i}")
    for i in range(20): A(f"v_mul_f32 v{T+i}, v8, v{T+i}")
    for i in range(20): A(f"v_fmac_f32 v{T+i}, v9, v{R+i}")
    O = R + 40
    for i in range(10): A(f"v_cvt_pk_bf16_f32 v{O+i}, v{T+2*i}, v{T+2*i+1}")
    A(f"buffer_store_dwordx4 {vr(O,4)}, v10, s[16:19], 0 offen")
    A(f"buffer_store_dwordx4 {vr(O+4,4)}, v10, s[16:19], 0 offen offset:64")
    A("s_mov_b64 exec, 0xffffffff")
    A(f"buffer_store_dwordx2 {vr(O+8,2)}, v11, s[16:19], 0 offen offset:128")
    A("s_mov_b64 exec, -1")

if __name__ == "__main__":
    diag = "--diag" in sys.argv
    out = [a for a in sys.argv[1:] if not a.startswith("--")][0]
    H = Stream(diag); C = Stream(diag); L = Stream(diag)
    header(H); gen_L(L, diag); gen_C(C, diag)
    assert C.bars == L.bars, [(a, b) for a, b in zip(C.bars, L.bars) if a != b][:5]
    launch = f"; @launch grid=(256,1,1) block=(512,1,1) lds={LDS_TOTAL}\n"
    if "--list" in sys.argv:
        launch = f"; @launch kernel={NAME} grid=(256,1,1) block=(512,1,1) lds={LDS_TOTAL}\n"
    if "nosc1" in OPT:
        L.lines = [l.replace(" sc1", "") if ("buffer_load_dwordx4" in l or "v201, v200, s[4:7]" in l) else l for l in L.lines]
    open(out, "w").write(HEADER + launch + '.amdgcn_target "amdgcn-amd-amdhsa--gfx950"\n.text\n' + H.text() + L.text() + C.text() + '.section .rodata,"a"\n' + kernel_desc(NAME, 256))
```

```python
from asmlib import *
import math, numpy as np
LOG2E = 1.4426950408889634
GC0 = -2.0 * LOG2E * math.sqrt(2.0 / math.pi)
GC1 = GC0 * 0.044715
C_HI = float(np.float32(1.0 / (2 * math.pi)))
C_LO = float(np.float32(1.0 / (2 * math.pi) - C_HI))
L2E_HI = float(np.float32(LOG2E)); L2E_LO = float(np.float32(LOG2E - L2E_HI))
STG = 34816
S = 4
LDS_X = S * STG
LDS_TOTAL = 163840
P_U, P_LOGA, P_AIM, P_CR, P_CI, P_LOGDT, P_D, P_BX, P_WIN, P_WSP, P_BSP, P_WOUT, P_GATE, P_OUT, P_DBG, P_WS = [32 + 2*i for i in range(16)]
S_WAVE, S_W, S_FT, S_TT, S_T64, S_J = 24, 25, 26, 27, 28, 29
CN_ST, CN_Z2, CN_H, CN_A = 0, 64, 128, 192

class Stream(Asm):
    def __init__(self, diag=False):
        super().__init__()
        self.nvm = 0
        self.bars = []
        self.diag = diag
        self.vshift = 0
    def __call__(self, s):
        if isinstance(s, (list, tuple)):
            for x in s: self(x)
            return
        if self.vshift:
            import re
            sh = lambda k: k + self.vshift if 1 <= k <= 60 else k
            s = re.sub(r"\bv\[(\d+):(\d+)\]", lambda m: f"v[{sh(int(m.group(1)))}:{sh(int(m.group(2)))}]", s)
            s = re.sub(r"\bv(\d+)\b", lambda m: f"v{sh(int(m.group(1)))}", s)
        self.lines.append("    " + s)
    def vm(self, s):
        self(s); self.nvm += 1
        return self.nvm - 1
    def wait_vm(self, k, extra=""):
        n = self.nvm - 1 - k
        assert 0 <= n <= 63, n
        self(f"s_waitcnt vmcnt({n}){extra}")
    def bar(self, name):
        self("s_barrier"); self.bars.append(name)
    def stamp(self, i, real=False):
        import sys
        if "--mstamp" in sys.argv and 4 <= i <= 11:
            if i in getattr(self, "used", set()): return
            self.used = getattr(self, "used", set()) | {i}
        if "--sstamp" in sys.argv and i in getattr(self, "used", set()): return
        if "--rstamp" in sys.argv and i >= 2: real = True
        if self.diag:
            self(f"s_mem{'real' if real else ''}time s[{76+2*i}:{77+2*i}]")

def psrd(A, d, p, off, nbytes):
    srd(A, d, p, p+1, off, nbytes)

def gelu_ops(regs, tmp, vc1):
    o = []
    for i, r in enumerate(regs): o.append(f"v_mul_f32 v{tmp+i}, v{r}, v{r}")
    for i, r in enumerate(regs): o.append(f"v_fmaak_f32 v{tmp+i}, v{tmp+i}, v{vc1}, {f32(GC0)}")
    for i, r in enumerate(regs): o.append(f"v_mul_f32 v{tmp+i}, v{r}, v{tmp+i}")
    for i, r in enumerate(regs): o.append(f"v_exp_f32 v{tmp+i}, v{tmp+i}")
    for i, r in enumerate(regs): o.append(f"v_add_f32 v{tmp+i}, 1.0, v{tmp+i}")
    for i, r in enumerate(regs): o.append(f"v_rcp_f32 v{tmp+i}, v{tmp+i}")
    for i, r in enumerate(regs): o.append(f"v_mul_f32 v{r}, v{r}, v{tmp+i}")
    return o

def bf16_round(A, v):
    A(f"v_cvt_pk_bf16_f32 v{v}, v{v}, v{v}")
    A(f"v_and_b32 v{v}, 0xffff0000, v{v}")

def set_exec(A, lo, hi):
    A(f"s_mov_b32 exec_lo, {lo}")
    A(f"s_mov_b32 exec_hi, {hi}")

def signal(A, lbl, cn_base, idx_sreg, vt, srd_reg):
    A(f"s_lshl_b32 s64, s{idx_sreg}, 2")
    A(f"s_add_u32 s64, s64, {cn_base}")
    A(f"v_mov_b32 v{vt}, s64")
    A(f"v_mov_b32 v{vt+1}, 1")
    A("s_mov_b64 exec, 1")
    A.vm(f"buffer_atomic_add v{vt+1}, v{vt}, s[{srd_reg}:{srd_reg+3}], 0 offen")
    A("s_mov_b64 exec, -1")

def poll(A, lbl, cn_base, idx_sreg, target, vt, srd_reg, sleep=2):
    A(f"s_lshl_b32 s64, s{idx_sreg}, 2")
    A(f"s_add_u32 s64, s64, {cn_base}")
    A(f"v_mov_b32 v{vt}, s64")
    A("s_mov_b32 s65, 0")
    A.label(f"{lbl}_poll")
    A.vm(f"buffer_load_dword v{vt+1}, v{vt}, s[{srd_reg}:{srd_reg+3}], 0 offen sc1")
    A("s_waitcnt vmcnt(0)")
    A(f"v_readfirstlane_b32 s66, v{vt+1}")
    A("s_add_u32 s65, s65, 1")
    A(f"s_cmp_ge_u32 s66, {target}")
    A(f"s_cbranch_scc1 {lbl}_ok")
    A(f"s_sleep {sleep}")
    A("s_cmp_lt_u32 s65, 100000")
    A(f"s_cbranch_scc1 {lbl}_poll")
    A.label(f"{lbl}_ok")

def rowperm_voff(A, dst, pitch):
    A("v_lshrrev_b32 v5, 3, v0")
    A("v_lshrrev_b32 v6, 4, v0")
    A("v_and_b32 v7, 7, v0")
    A(f"s_and_b32 s64, s{S_W}, 1")
    A("s_lshl_b32 s65, s64, 2")
    A("v_add_u32 v8, s65, v6")
    A("v_xor_b32 v8, v8, v7")
    A("v_lshlrev_b32 v8, 4, v8")
    A("v_lshrrev_b32 v9, 5, v0")
    A("v_lshlrev_b32 v9, 3, v9")
    A("v_and_b32 v10, 3, v5")
    A("v_add_u32 v9, v9, v10")
    A("s_lshl_b32 s65, s64, 4")
    A(f"s_lshr_b32 s66, s{S_W}, 1")
    A("s_lshl_b32 s66, s66, 2")
    A("s_add_u32 s65, s65, s66")
    A("v_add_u32 v9, s65, v9")
    A(f"v_mul_u32_u24 v9, {pitch}, v9")
    A(f"v_add_u32 v{dst}, v9, v8")

def stamp_dump(A, lbl, slot):
    A("s_waitcnt lgkmcnt(0)")
    A(f"s_cmp_lg_u32 s{S_W}, 0")
    A(f"s_cbranch_scc1 {lbl}_nost")
    A("s_lshl_b32 s64, s2, 7")
    A(f"s_add_u32 s64, s64, {WS_DBG + slot*32768}")
    psrd(A, 4, P_WS, "s64", 128)
    A("v_mov_b32 v1, 0")
    for i in range(26):
        A(f"v_mov_b32 v{4+i}, s{76+i}")
    A("v_mov_b32 v30, 0"); A("v_mov_b32 v31, 0")
    for i in range(7):
        A(f"buffer_store_dwordx4 v[{4+4*i}:{7+4*i}], v1, s[4:7], 0 offen offset:{16*i}")
    A.label(f"{lbl}_nost")

WS_MB = 0x2180000
MBSZ = 65536
MB_Z2, MB_H, MB_A, MB_WF = [WS_MB + i*MBSZ for i in range(4)]
WS_KB = 0x2800000
WS_UT = 0x2400000

def mb_push(A, arr, nl, vbase_ops, slot_sreg, vt, srd_reg):
    A(vbase_ops)
    A(f"v_lshlrev_b32 v{vt}, 8, v{vt}")
    A(f"s_lshl_b32 s64, s{slot_sreg}, 2")
    A(f"s_add_u32 s64, s64, {arr - WS_MB}")
    A(f"v_mov_b32 v{vt+1}, 1")
    A(f"s_mov_b64 exec, {hex((1 << nl) - 1)}")
    A(f"buffer_store_dword v{vt+1}, v{vt}, s[{srd_reg}:{srd_reg+3}], s64 offen sc1")
    A("s_mov_b64 exec, -1")

def mb_wait(A, lbl, arr, owner_sreg, nl, vt, srd_reg, sleep=4, depth=1):
    A(f"s_lshl_b32 s64, s{owner_sreg}, 8")
    A(f"s_add_u32 s64, s64, {arr - WS_MB}")
    A(f"v_min_u32 v{vt}, {nl-1}, v0")
    A(f"v_lshlrev_b32 v{vt}, 2, v{vt}")
    A("s_mov_b32 s65, 0")
    ld = lambda k: f"buffer_load_dword v{vt+1+k}, v{vt}, s[{srd_reg}:{srd_reg+3}], s64 offen sc1"
    for k in range(depth - 1):
        A(ld(k)); A(f"s_sleep {sleep}")
    A.label(f"{lbl}_poll")
    for k in range(depth):
        A(ld((k + depth - 1) % depth))
        A(f"s_waitcnt vmcnt({depth-1})")
        A(f"v_cmp_eq_u32 vcc, 0, v{vt+1+k}")
        A("s_add_u32 s65, s65, 1")
        A("s_cmp_eq_u64 vcc, 0")
        A(f"s_cbranch_scc1 {lbl}_ok")
        A(f"s_sleep {sleep}")
    A("s_cmp_lt_u32 s65, 100000")
    A(f"s_cbranch_scc1 {lbl}_poll")
    A.label(f"{lbl}_ok")

def init_wait(A, lbl, vt, dbg_srd):
    A(f"v_and_b32 v{vt}, 15, v0")
    A(f"v_lshlrev_b32 v{vt}, 2, v{vt}")
    A("s_mov_b32 s65, 0")
    A.label(f"{lbl}_poll")
    A(f"buffer_load_dword v{vt+1}, v{vt}, s[{dbg_srd}:{dbg_srd+3}], 0 offen offset:64 sc1")
    A("s_waitcnt vmcnt(0)")
    A(f"v_cmp_le_u32 vcc, 16, v{vt+1}")
    A("s_add_u32 s65, s65, 1")
    A(f"s_cmp_eq_u32 vcc_lo, -1")
    A(f"s_cbranch_scc1 {lbl}_ok")
    A(f"s_sleep 16")
    A("s_cmp_lt_u32 s65, 30000")
    A(f"s_cbranch_scc1 {lbl}_poll")
    A.label(f"{lbl}_ok")

def bg_cost(t):
    if t.startswith("ds_write"): return 45
    if t.startswith("ds_read"): return 25
    if t.startswith("v_mfma"): return 40
    if any(t.startswith(x) for x in ("v_exp", "v_sin", "v_cos", "v_rcp", "v_sqrt")): return 17
    if t.startswith("v_"): return 8.5
    return 5

def bg_split(lines, budgets):
    chunks = []; cur = []; cost = 0; full = True; prev = ""; bi = 0
    for ln in lines:
        t = ln.strip()
        safe = full and t.startswith(("v_", "ds_")) and prev.startswith(("v_", "ds_")) and "vcc" not in t
        if safe and bi < len(budgets) - 1 and cost >= budgets[bi]:
            chunks.append(cur); cur = []; cost = 0; bi += 1
        cur.append(ln)
        if "exec" in t.split(",")[0]:
            full = t.startswith("s_mov_b64 exec, -1")
        cost += bg_cost(t); prev = t
    chunks.append(cur)
    last = cost
    while len(chunks) < len(budgets): chunks.append([])
    return chunks, last

def lds_arrive(A, addr_ops, vt, last, skip_lbl):
    A(addr_ops)
    A(f"v_mov_b32 v{vt+1}, 1")
    A("s_mov_b64 exec, 1")
    A(f"ds_add_rtn_u32 v{vt+1}, v{vt}, v{vt+1}")
    A("s_mov_b64 exec, -1")
    A("s_waitcnt lgkmcnt(0)")
    A(f"v_readfirstlane_b32 s64, v{vt+1}")
    A("s_nop 0")
    A(f"s_cmp_lg_u32 s64, {last}")
    A(f"s_cbranch_scc1 {skip_lbl}")

def wg_wait(A, lbl, w_sreg, go_addr, vt, waiter):
    A(f"s_cmp_lg_u32 s{w_sreg}, 0")
    A(f"s_cbranch_scc1 {lbl}_oth")
    waiter()
    A(f"v_mov_b32 v{vt}, {go_addr}")
    A(f"v_mov_b32 v{vt+1}, 1")
    A(f"ds_write_b32 v{vt}, v{vt+1}")
    A(f"s_branch {lbl}_done")
    A.label(f"{lbl}_oth")
    A(f"v_mov_b32 v{vt}, {go_addr}")
    A("s_mov_b32 s65, 0")
    A.label(f"{lbl}_spin")
    A(f"ds_read_b32 v{vt+1}, v{vt}")
    A("s_waitcnt lgkmcnt(0)")
    A(f"v_readfirstlane_b32 s66, v{vt+1}")
    A("s_add_u32 s65, s65, 1")
    A("s_cmp_lg_u32 s66, 0")
    A(f"s_cbranch_scc1 {lbl}_done")
    A("s_sleep 1")
    A("s_cmp_lt_u32 s65, 2000000")
    A(f"s_cbranch_scc1 {lbl}_spin")
    A.label(f"{lbl}_done")

def gelu_pk(regs, tmp, kc):
    o = []
    P = [regs[2*i] for i in range(len(regs)//2)]
    pr = lambda r: f"v[{r}:{r+1}]"
    for i, r in enumerate(P): o.append(f"v_pk_mul_f32 {pr(tmp+2*i)}, {pr(r)}, {pr(r)}")
    for i, r in enumerate(P): o.append(f"v_pk_fma_f32 {pr(tmp+2*i)}, {pr(tmp+2*i)}, {pr(kc)}, {pr(kc+2)}")
    for i, r in enumerate(P): o.append(f"v_pk_mul_f32 {pr(tmp+2*i)}, {pr(r)}, {pr(tmp+2*i)}")
    for i in range(len(regs)): o.append(f"v_exp_f32 v{tmp+i}, v{tmp+i}")
    for i, r in enumerate(P): o.append(f"v_pk_add_f32 {pr(tmp+2*i)}, {pr(tmp+2*i)}, {pr(kc+4)}")
    for i in range(len(regs)): o.append(f"v_rcp_f32 v{tmp+i}, v{tmp+i}")
    for i, r in enumerate(P): o.append(f"v_pk_mul_f32 {pr(r)}, {pr(r)}, {pr(tmp+2*i)}")
    return o
```

```python
import sys
from fz_common import *
import fz_ssm as ssm
NAME = "gated_mix__ssm_conv_s4d__mixer_gmlp__prompt_kernel"
NSSM = 144
OPT = set(a[2:] for a in sys.argv if a.startswith("--"))
U_BASE = 81920
R1_BASE = 3*STG
LDS_AT = 3*STG + 19456
LDS_G = LDS_AT + 10240
XH = LDS_X + 1024 + 4*ssm.RSZ
LDS_CNT = XH + 4096
ZL = 64
S_O1, S_O3, S_CW, S_CH = 3, 75, 31, 30
S_R0 = 0
S_UTQ = 0
S_K0 = 1
KHOOK = 3800
KM17 = 2500
QS = 10 if 'qs10' in OPT else 11
TQ = (3, 5, 7) if 'tq3' in OPT else ()
PSLEEP = 8 if 'ps8' in OPT else 2 if 'ps2' in OPT else 4
S_KS, S_KR = 24, 31
KB0, KB1, KB2, KBG = 3000, 2300, 1100, 150
NPRE = 2 if 'pre2' in OPT else 4 if 'pre4' in OPT else 3
KSPLIT = (0.40, 0.50)
VB, VA = 250, 251
n = NAME

def touch(A, p, nbytes, idx_sreg, vdst, lbl):
    if "notouch" in OPT: return
    A(f"s_cmp_ge_u32 s{idx_sreg}, {(nbytes + 8191) // 8192}")
    A(f"s_cbranch_scc1 {lbl}")
    psrd(A, 4, p, None, nbytes)
    A(f"s_lshl_b32 s64, s{idx_sreg}, 13")
    A(f"buffer_load_dword v{vdst}, v1, s[4:7], s64 offen")
    if "touch64" in OPT:
        A(f"buffer_load_dword v{vdst+1}, v1, s[4:7], s64 offen offset:64")
    A.label(lbl)

def header(H):
    kernel_begin(H, n)
    H("s_cmp_ge_u32 s2, 256")
    H(f"s_cbranch_scc1 {n}_end")
    H("s_load_dwordx16 s[32:47], s[0:1], 0")
    H("s_load_dwordx16 s[48:63], s[0:1], 64")
    H.stamp(0); H.stamp(1, True)
    H("v_lshrrev_b32 v1, 6, v0")
    H("s_and_b32 s3, s2, 7")
    H("s_lshr_b32 s30, s2, 3")
    H(f"v_readfirstlane_b32 s{S_WAVE}, v1")
    H("s_and_b32 s64, s3, 3")
    H("s_lshl_b32 s64, s64, 2")
    H("s_and_b32 s65, s30, 3")
    H(f"s_add_u32 s{S_FT}, s64, s65")
    H("s_lshr_b32 s64, s3, 2")
    H("s_lshr_b32 s66, s30, 2")
    if "ttblk" in OPT:
        H("s_lshl_b32 s64, s64, 3")
    else:
        H("s_lshl_b32 s66, s66, 1")
    H(f"s_add_u32 s{S_TT}, s64, s66")
    if "map3new" not in OPT:
        H("s_lshr_b32 s64, s3, 1")
        H("s_lshl_b32 s64, s64, 3")
        H("s_lshr_b32 s66, s30, 2")
        H(f"s_add_u32 s{S_T64}, s64, s66")
        H("s_and_b32 s64, s3, 1")
        H("s_lshl_b32 s64, s64, 2")
        H(f"s_add_u32 s{S_J}, s64, s65")
    else:
        H("s_lshl_b32 s64, s3, 2")
        H("s_lshr_b32 s65, s30, 3")
        H(f"s_add_u32 s{S_T64}, s64, s65")
        H(f"s_and_b32 s{S_J}, s30, 7")
    H(f"s_and_b32 s{S_W}, s{S_WAVE}, 3")
    H("v_and_b32 v0, 63, v0")
    H(f"s_cmp_ge_u32 s{S_WAVE}, 4")
    H(f"s_cbranch_scc1 {n}_L")
    H("s_getpc_b64 s[64:65]")
    H.label(f"{n}_pc")
    H(f"s_sub_u32 s4, s64, {n}_pc-{n}")
    H("s_subb_u32 s5, s65, 0")
    H(f"s_mov_b32 s6, {n}_end-{n}")
    H("s_mov_b32 s7, 0x20000")
    H("s_lshl_b32 s66, s30, 2")
    H(f"s_add_u32 s66, s66, s{S_W}")
    H("s_lshl_b32 s66, s66, 10")
    H("v_lshlrev_b32 v1, 4, v0")
    H("buffer_load_dwordx4 v[240:243], v1, s[4:7], s66 offen")
    late_ids(H)
    H("s_waitcnt lgkmcnt(0)")
    if "klate" not in OPT:
        H(f"s_cmp_ge_u32 s{S_FT}, 9")
        H(f"s_cbranch_scc1 {n}_C")
        ssm.kgen_load(H, S_CH)
    H(f"s_branch {n}_C")
    H.label(f"{n}_L")

def late_ids(A):
    A(f"s_lshl_b32 s64, s{S_TT}, 4")
    A(f"s_add_u32 s{S_O1}, s64, s{S_FT}")
    A(f"s_lshl_b32 s64, s{S_T64}, 3")
    A(f"s_add_u32 s{S_O3}, s64, s{S_J}")
    A(f"s_lshl_b32 s{S_CW}, s2, 2")
    A(f"s_add_u32 s{S_CW}, s{S_CW}, s{S_W}")
    A(f"s_lshl_b32 s64, s{S_FT}, 4")
    A(f"s_add_u32 s64, s64, s{S_TT}")
    A(f"s_lshl_b32 s64, s64, 2")
    A(f"s_add_u32 s{S_CH}, s64, s{S_W}")

def gen_L(A, diag):
    A.vshift = 190
    rowperm_voff(A, 2, 1152)
    A("v_lshrrev_b32 v6, 4, v0")
    A(f"s_and_b32 s64, s{S_W}, 1")
    A("s_lshl_b32 s65, s64, 2")
    A("v_add_u32 v7, s65, v6")
    A("v_and_b32 v8, 15, v0")
    A("v_lshlrev_b32 v7, 1, v7")
    A("v_xor_b32 v8, v8, v7")
    A("s_lshl_b32 s65, s64, 3")
    A(f"s_lshr_b32 s66, s{S_W}, 1")
    A("s_lshl_b32 s66, s66, 2")
    A("s_add_u32 s65, s65, s66")
    A("v_add_u32 v6, s65, v6")
    A("v_mul_u32_u24 v6, 9216, v6")
    A("v_lshl_add_u32 v3, v8, 4, v6")
    A(f"s_lshl_b32 s65, s{S_FT}, 8")
    A("v_add_u32 v3, s65, v3")
    A("v_lshrrev_b32 v6, 1, v0")
    A("v_and_b32 v7, 3, v6")
    A("v_and_b32 v8, 4, v6")
    A("v_lshl_or_b32 v7, v8, 1, v7")
    A("v_and_b32 v8, 8, v6")
    A("v_lshrrev_b32 v8, 1, v8")
    A("v_or_b32 v7, v7, v8")
    A(f"s_lshl_b32 s65, s{S_W}, 4")
    A("v_add_u32 v7, s65, v7")
    A("v_mul_u32_u24 v7, 9216, v7")
    A("v_and_b32 v8, 1, v0")
    A("v_lshl_add_u32 v4, v8, 4, v7")
    A(f"s_lshl_b32 s64, s{S_FT}, 5")
    A("s_add_u32 s64, s64, 4096")
    A("v_add_u32 v4, s64, v4")
    A(f"s_lshl_b32 s68, s{S_W}, 10")
    A(f"s_lshl_b32 s69, s{S_W}, 9")
    A("s_add_u32 s69, s69, 16384")
    A(f"s_mul_i32 s64, s{S_TT}, {128*1152}")
    A("s_waitcnt lgkmcnt(0)")
    psrd(A, 8, P_U, "s64", 128*1152)
    psrd(A, 12, P_WIN, None, 576*9216)
    ready = {}
    A(f"s_and_b32 s74, s{S_TT}, 7" if "ttblk" in OPT else f"s_lshr_b32 s74, s{S_TT}, 1")
    A(f"s_and_b32 s64, s{S_FT}, 3")
    A("s_lshl_b32 s64, s64, 1")
    A("s_add_u32 s74, s74, s64")
    A("s_cmp_ge_u32 s74, 9")
    A("s_cselect_b32 s64, 9, 0")
    A("s_sub_u32 s74, s74, s64")
    if "norot" in OPT: A("s_mov_b32 s74, 0")
    A(f"s_sub_u32 s{S_UTQ}, s{S_FT}, s74")
    A(f"s_cmp_lt_i32 s{S_UTQ}, 0")
    A("s_cselect_b32 s64, 9, 0")
    A(f"s_add_u32 s{S_UTQ}, s{S_UTQ}, s64")
    A(f"s_cmp_ge_u32 s{S_FT}, 9")
    A(f"s_cselect_b32 s{S_UTQ}, 99, s{S_UTQ}")
    def dma_g1(q):
        base = (q % S) * STG
        A(f"s_mul_i32 s72, s74, {64*9216}")
        A("s_lshl_b32 s73, s74, 7")
        if q < 9: A("s_add_u32 s72, s72, 4608")
        for i in range(4):
            A(f"s_add_u32 m0, s68, {base + i*4096}")
            A(f"s_add_u32 s70, s72, {i*16*9216}")
            A.vm("buffer_load_dwordx4 v3, s[12:15], s70 offen lds")
            A(f"s_add_u32 m0, s68, {base + 18432 + i*4096}")
            A(f"s_add_u32 s71, s73, {i*32*1152}")
            A.vm("buffer_load_dwordx4 v2, s[8:11], s71 offen lds")
        A(f"s_add_u32 m0, s69, {base}")
        A("s_mov_b64 exec, 0xffffffff")
        ready[q] = A.vm("buffer_load_dwordx4 v4, s[12:15], s72 offen lds")
        A("s_mov_b64 exec, -1")
        A("s_add_u32 s74, s74, 1")
        A("s_cmp_eq_u32 s74, 9")
        A("s_cselect_b32 s74, 0, s74")
    def kst(cnt, dst):
        A(f"s_add_u32 s{dst}, s{cnt}, s{S_FT}")
        A(f"s_and_b32 s{dst}, s{dst}, 3")
        A(f"s_andn2_b32 s64, s{cnt}, 3")
        A(f"s_or_b32 s{dst}, s{dst}, s64")
        A(f"s_cmp_lt_u32 s{cnt}, {0 if 'noquad' in OPT else 28}")
        A(f"s_cselect_b32 s{dst}, s{dst}, s{cnt}")
        A(f"s_add_u32 s{dst}, s{dst}, s{S_K0}")
        A(f"s_and_b32 s{dst}, s{dst}, 31")
        A(f"s_add_u32 s{cnt}, s{cnt}, 1")
    def dma_g2_B(sb):
        kst(72, 66)
        A("s_lshl_b32 s66, s66, 7")
        for i in range(4):
            if isinstance(sb, str):
                A(f"s_add_u32 m0, s68, {sb}"); A(f"s_add_u32 m0, m0, {18432 + i*4096}")
            else:
                A(f"s_add_u32 m0, s68, {sb + 18432 + i*4096}")
            A(f"s_add_u32 s70, s66, {i*131072}")
            r = A.vm(f"buffer_load_dwordx4 v{VB}, s[16:19], s70 offen lds")
        return r
    def dma_g2_A(sb):
        kst(73, 66)
        A("s_mul_i32 s66, s66, 18432")
        A(f"s_add_u32 m0, s67, {sb}")
        A("s_add_u32 s70, s66, s67")
        for i in range(4):
            A.vm(f"buffer_load_dwordx4 v{VA}, s[20:23], s70 offen offset:{1024*i} sc1 lds")
        A(f"s_add_u32 m0, s69, {sb}")
        A("s_add_u32 s70, s66, s69")
        A("s_mov_b64 exec, 0xffffffff")
        r = A.vm(f"buffer_load_dwordx4 v{VA}, s[20:23], s70 offen sc1 lds")
        A("s_mov_b64 exec, -1")
        return r
    sl = lambda q: (q % S) * STG

    if "lstamp" in OPT: A.stamp(9)
    for q in range(NPRE):
        dma_g1(q)
        if "lstamp" in OPT and q == 0: A.stamp(10)
    if "lstamp" in OPT:
        A.wait_vm(ready[0]); A.stamp(11); A.used = {9, 10, 11}
    issued = NPRE
    A.stamp(2)
    late_ids(A)
    A.wait_vm(ready[0])
    A.bar("B0")
    A.stamp(3)
    if issued < 3: dma_g1(2); issued = 3
    rowperm_voff(A, VB, 4096)
    A(f"v_lshlrev_b32 v{VA}, 4, v0")
    A(f"s_lshl_b32 s64, s{S_TT}, 19")
    psrd(A, 16, P_WSP, "s64", 128*4096)
    A(f"s_mul_i32 s64, s{S_FT}, {32*18432}")
    A(f"s_add_u32 s64, s64, {WS_Z2F}")
    psrd(A, 20, P_WS, "s64", 32*18432)
    A(f"s_lshl_b32 s67, s{S_W}, 12")
    A("v_and_b32 v5, 15, v0")
    A("v_lshrrev_b32 v6, 4, v0")
    A("v_lshrrev_b32 v7, 2, v5")
    A("v_lshl_add_u32 v8, v6, 2, v7")
    A("v_lshrrev_b32 v9, 1, v8")
    A("v_bfe_u32 v10, v0, 1, 1")
    A("v_xor_b32 v9, v9, v10")
    A("v_lshlrev_b32 v9, 4, v9")
    A("v_lshl_add_u32 v9, v8, 7, v9")
    A("v_and_b32 v10, 1, v0")
    A("v_lshl_add_u32 v9, v10, 3, v9")
    A(f"s_and_b32 s64, s{S_UTQ}, 3")
    A(f"s_mul_i32 s64, s64, {STG}")
    A("s_add_u32 s64, s64, s67")
    A("s_add_u32 s64, s64, 18432")
    A("v_add_u32 v13, s64, v9")
    A("v_lshlrev_b32 v14, 12, v5")
    A("v_lshl_add_u32 v14, v6, 4, v14")
    def ut_job(q):
        if "nout" in OPT: return
        A(f"s_cmp_lg_u32 s{S_UTQ}, {q}")
        A(f"s_cbranch_scc1 {n}_Lut{q}")
        A(f"s_getpc_b64 s[64:65]")
        A.label(f"{n}_Lpc{q}")
        A(f"s_add_u32 s64, s64, {n}_Lutf-{n}_Lpc{q}")
        A("s_addc_u32 s65, s65, 0")
        A("s_swappc_b64 s[70:71], s[64:65]")
        A.label(f"{n}_Lut{q}")
    def wsp_touch(i):
        if "notouch" in OPT: return
        psrd(A, 4, P_WSP, None, 2048*4096)
        A("s_lshl_b32 s64, s2, 2")
        A(f"s_add_u32 s64, s64, s{S_W}")
        A("s_lshl_b32 s64, s64, 13")
        A("s_add_u32 s65, s64, 4096")
        A("v_lshlrev_b32 v5, 7, v0")
        A("s_mov_b64 exec, 0xffff")
        A.vm(f"buffer_load_dword v57, v5, s[4:7], s64 offen offset:{2048*(i&1)}" if i < 2 else f"buffer_load_dword v57, v5, s[4:7], s65 offen offset:{2048*(i&1)}")
        A("s_mov_b64 exec, -1")
    ut_job(0)
    for q in range(18):
        if q == 16: continue
        if q + 1 < 18: A.wait_vm(ready[17 if q == 15 else q+1])
        A.bar(f"M{q}")
        if "mstamp" in OPT and "m2" not in OPT and q < 8: A.stamp(4 + q)
        if "m2" in OPT and q == 7: A.used = {8}
        if "m2" in OPT and q >= 9 and q != 13: A.used.discard(8); A.stamp(4 + q - 9 - (q > 13))
        if q == 9:
            A(f"v_add_u32 v5, s68, v{VA}")
            for t in range(8): A(f"ds_read_b128 {vr(ZL+4*t,4)}, v5 offset:{(t>>2)*18432 + (t&3)*4096}")
            A(f"v_add_u32 v5, {XH}, v5")
            A(f"ds_read_b128 {vr(ZL+32,4)}, v5")
            A("s_waitcnt lgkmcnt(0)")
        if q == QS: ln_stats_issue(A)
        k = 0
        while issued < 18 and issued <= q + S and k < 2 and q != 8:
            dma_g1(issued); issued += 1; k += 1
        if q + 1 < 9: ut_job(q + 1)
        if q == 0:
            A(f"s_cmp_lg_u32 s{S_W}, 0")
            A(f"s_cbranch_scc1 {n}_Lns0")
            A("s_and_b32 s66, s2, 15")
            A("s_lshl_b32 s66, s66, 2")
            A("s_add_u32 s66, s66, 64")
            A("s_mov_b32 s65, 1")
            A(f"s_atomic_add s65, s[{P_DBG}:{P_DBG+1}], s66")
            A.label(f"{n}_Lns0")
        if q == 7:
            wot_issue(A)
        if q == 8:
            gate_issue(A)
            ut_store(A)
            psrd(A, 4, P_DBG, None, 256)
            init_wait(A, f"{n}_Li", 5, 4)
            wot_unit(A, 0)
            if 'touch' in OPT:
                for i in range(4): wsp_touch(i)
            gate_job(A, 0)
            A.stamp(8)
        if q == QS + 1:
            A.stamp(4)
            ln_stats(A)
            A.stamp(5)
            ln_norm(A, range(0, 2))
        if q == QS + 2: ln_norm(A, range(2, 6))
        if q == QS + 3: r_z2 = ln_norm(A, range(6, 9))
        if q == 13:
            A("s_mov_b32 s72, -2")
            A("s_mov_b32 s73, 0")
            A(f"s_lshl_b32 s{S_K0}, s{S_TT}, 1")
            A(f"s_add_u32 s{S_K0}, s{S_K0}, 2")
            assert issued == 18
        if q == 15:
            psrd(A, 8, P_WS, WS_MB, 4*MBSZ)
            own_tile(A)
            A.wait_vm(r_z2)
            lds_arrive(A, [f"v_mov_b32 v10, {LDS_CNT + 4}"], 10, 3, f"{n}_Lnz")
            mb_push(A, MB_Z2, 16, ["v_lshlrev_b32 v10, 4, v0", f"v_add_u32 v10, s{S_FT}, v10"], S_TT, 10, 8)
            A.label(f"{n}_Lnz")
            A.stamp(6)
            dma_g2_B(sl(18)); dma_g2_B(sl(19))
        if q == 17:
            dma_g2_B(sl(20)); dma_g2_B(sl(21))
    wot_unit(A, 1)
    wg_wait(A, f"{n}_Lgz", S_W, LDS_CNT + 16, 10, lambda: mb_wait(A, f"{n}_Lz2", MB_Z2, S_O1, 16, 10, 8, sleep=PSLEEP))
    A("s_waitcnt vmcnt(0)")
    A.stamp(7)
    ready[20] = dma_g2_A(sl(20)); ready[21] = dma_g2_A(sl(21))
    A("s_waitcnt lgkmcnt(0)")
    A.bar("G2S")
    A(f"s_cmp_lg_u32 s{S_W}, 0")
    A(f"s_cbranch_scc1 {n}_Lnw")
    A(f"s_sub_u32 s65, s{S_CH}, 576")
    A("s_lshr_b32 s65, s65, 2")
    A("s_cmp_ge_u32 s65, 72")
    A(f"s_cbranch_scc1 {n}_Lnw")
    A("s_mul_i32 s66, s65, 57")
    A("s_lshr_b32 s66, s66, 9")
    A("s_mul_i32 s70, s66, 9")
    A("s_sub_u32 s70, s65, s70")
    mb_push(A, MB_WF, 32, ["v_lshlrev_b32 v20, 3, v0", "v_add_u32 v20, s66, v20"], 70, 20, 8)
    A.label(f"{n}_Lnw")
    A.bar("N18")
    dma_g2_B(sl(22)); ready[22] = dma_g2_A(sl(22))
    A.wait_vm(ready[20]); A.bar("N19")
    dma_g2_B(sl(23)); ready[23] = dma_g2_A(sl(23))
    A.wait_vm(ready[21]); A.bar("N20")
    dma_g2_B(sl(24)); ready[24] = dma_g2_A(sl(24))
    A(f"s_mov_b32 s74, {sl(25)}")
    def service():
        A("s_waitcnt vmcnt(18)")
        A("s_barrier")
        dma_g2_B("s74"); dma_g2_A("s74")
        A(f"s_add_u32 s74, s74, {STG}")
        A(f"s_cmp_eq_u32 s74, {S*STG}")
        A("s_cselect_b32 s74, 0, s74")
        A("s_sub_u32 s71, s71, 1")
    def loop(lbl, cnt):
        A(f"s_mov_b32 s71, {cnt}")
        A.label(lbl)
        service()
        A("s_cmp_lg_u32 s71, 0")
        A(f"s_cbranch_scc1 {lbl}")
    loop(f"{n}_Lg2", 12)
    A(f"s_lshl_b32 s64, s{S_O3}, 8")
    A(f"s_add_u32 s64, s64, {MB_WF - WS_MB}")
    A("v_min_u32 v10, 8, v0")
    A("v_lshlrev_b32 v10, 2, v10")
    A("buffer_load_dword v11, v10, s[8:11], s64 offen sc1")
    loop(f"{n}_Lg2b", TPOS - 12)
    A("v_cmp_eq_u32 vcc, 0, v11")
    A("s_nop 0")
    A("s_cmp_eq_u64 vcc, 0")
    A(f"s_cbranch_scc1 {n}_Lw_ok")
    mb_wait(A, f"{n}_Lw", MB_WF, S_O3, 9, 10, 8)
    if "touchA" in OPT:
        nsh = 4 if "map3new" in OPT else 8
        per = 2592 // (4*nsh)
        A(f"s_mul_i32 s64, s{S_J}, {72*4608}")
        A(f"s_add_u32 s64, s64, {WS_WOT}")
        psrd(A, 4, P_WS, "s64", 72*4608)
        A(f"s_and_b32 s64, s{S_T64}, {nsh-1}")
        A("s_lshl_b32 s64, s64, 2")
        A(f"s_add_u32 s64, s64, s{S_W}")
        A(f"s_mul_i32 s64, s64, {per*128}")
        A("v_lshlrev_b32 v10, 7, v0")
        done = 0
        while done < per:
            st = min(done, per - 64)
            A(f"s_add_u32 s65, s64, {st*128}")
            A("buffer_load_dword v11, v10, s[4:7], s65 offen sc1")
            done = st + 64
    loop(f"{n}_Lg2c", 25 - TPOS)
    for q in range(21, 46): A.bars.append(f"N{q}")
    A("s_waitcnt vmcnt(18)"); A.bar("N46")
    g3_main(A)
    if diag:
        A.stamp(12, True)
        stamp_dump(A, f"{n}_Ld", 1)
    A("s_endpgm")
    A.vshift = 190
    A.label(f"{n}_Lutf")
    for cb in range(4):
        A(f"v_xor_b32 v15, {32*cb}, v13")
        for a in range(2):
            A(f"ds_read_b64_tr_b16 {vr(UR+4*cb+2*a,2)}, v15 offset:{a*2048}")
    A("s_waitcnt lgkmcnt(0)")
    A("s_setpc_b64 s[70:71]")

UR = 160
def ut_store(A):
    A(f"s_cmp_ge_u32 s{S_FT}, 9")
    A(f"s_cbranch_scc1 {n}_Lus")
    A(f"s_lshl_b32 s64, s{S_FT}, 18")
    A(f"s_lshl_b32 s65, s{S_TT}, 8")
    A("s_add_u32 s64, s64, s65")
    A(f"s_lshl_b32 s65, s{S_W}, 6")
    A("s_add_u32 s64, s64, s65")
    A(f"s_add_u32 s64, s64, {WS_UT}")
    psrd(A, 4, P_WS, "s64", 63*4096 + 64)
    for cb in range(4):
        A(f"s_mov_b32 s64, {cb*65536}")
        A(f"buffer_store_dwordx4 {vr(UR+4*cb,4)}, v14, s[4:7], s64 offen sc1")
    A.label(f"{n}_Lus")

def ln_loads(A, T=16):
    for j in range(8):
        A(f"buffer_load_dwordx2 {vr(T+2*j,2)}, v{7 if j < 4 else 9}, s[4:7], s0 offen offset:{(j&3)*1024} sc1")

def ln_stats_issue(A):
    A(f"s_lshl_b32 s65, s{S_TT}, 14")
    A(f"s_add_u32 s65, s65, {WS_ST}")
    psrd(A, 4, P_WS, "s65", 16384)
    A("v_and_b32 v6, 31, v0")
    A("v_lshlrev_b32 v6, 3, v6")
    A("v_lshrrev_b32 v7, 5, v0")
    A("v_lshl_add_u32 v7, v7, 13, v6")
    A(f"s_lshl_b32 s0, s{S_W}, 8")
    A("v_add_u32 v9, 4096, v7")
    ln_loads(A); A.nvm += 8

def ln_stats(A):
    T = 16
    A("s_mov_b32 s65, 0")
    A("s_waitcnt vmcnt(18)")
    A(f"s_branch {n}_Lst_chk")
    A.label(f"{n}_Lst_poll")
    ln_loads(A)
    A("s_waitcnt vmcnt(0)")
    A.label(f"{n}_Lst_chk")
    A(f"v_max_u32 v8, v{T}, v{T+1}")
    for j in range(1, 8): A(f"v_max3_u32 v8, v8, v{T+2*j}, v{T+2*j+1}")
    A("v_cmp_eq_u32 vcc, -1, v8")
    A("s_add_u32 s65, s65, 1")
    A("s_cmp_eq_u64 vcc, 0")
    A(f"s_cbranch_scc1 {n}_Lst_ok")
    A("s_sleep 4")
    A("s_cmp_lt_u32 s65, 50000")
    A(f"s_cbranch_scc1 {n}_Lst_poll")
    A.label(f"{n}_Lst_ok")
    A(f"s_add_u32 s66, s0, {LDS_X}")
    A("v_add_u32 v6, s66, v6")
    for stp in (4, 2, 1):
        for j in range(stp):
            A(f"v_add_f32 v{T+2*j}, v{T+2*j}, v{T+2*(j+stp)}")
            A(f"v_add_f32 v{T+2*j+1}, v{T+2*j+1}, v{T+2*(j+stp)+1}")
    A(f"v_mov_b32 v{T+2}, v{T}")
    A(f"v_mov_b32 v{T+3}, v{T+1}")
    A("s_nop 1")
    A(f"v_permlane32_swap_b32 v{T}, v{T+2}")
    A(f"v_permlane32_swap_b32 v{T+1}, v{T+3}")
    A("s_nop 1")
    A(f"v_add_f32 v{T}, v{T}, v{T+2}")
    A(f"v_add_f32 v{T+1}, v{T+1}, v{T+3}")
    A(f"v_mul_f32 v{T}, {f32(1/2304)}, v{T}")
    A(f"v_mul_f32 v{T+1}, {f32(1/2304)}, v{T+1}")
    A(f"v_fma_f32 v{T+1}, -v{T}, v{T}, v{T+1}")
    A(f"v_max_f32 v{T+1}, 0, v{T+1}")
    bf16_round(A, T); bf16_round(A, T+1)
    A(f"v_add_f32 v{T+1}, {f32(1e-5)}, v{T+1}")
    bf16_round(A, T+1)
    A(f"v_sqrt_f32 v{T+1}, v{T+1}")
    A("s_nop 0")
    bf16_round(A, T+1)
    A(f"v_rcp_f32 v{T+2}, v{T+1}")
    A("s_nop 0")
    A(f"v_mul_f32 v{T+3}, v{T}, v{T+2}")
    A(f"v_sub_f32 v{T+3}, 0, v{T+3}")
    A(f"ds_write_b64 v6, {vr(T+2,2)}")
    A("v_lshrrev_b32 v7, 4, v0")
    A("v_lshlrev_b32 v7, 6, v7")
    A("v_add_u32 v7, s66, v7")
    for i in range(4): A(f"ds_read_b128 {vr(LSC+4*i,4)}, v7 offset:{16*i}")
    A(f"s_lshl_b32 s65, s{S_FT}, 5")
    A(f"s_lshl_b32 s66, s{S_TT}, 1")
    A("s_add_u32 s65, s65, s66")
    A("s_mul_i32 s65, s65, 18432")
    A(f"s_mul_i32 s66, s{S_W}, 9216")
    A("s_add_u32 s65, s65, s66")
    A(f"s_add_u32 s65, s65, {WS_Z2F}")
    psrd(A, 4, P_WS, "s65", 9216)
    A(f"v_add_u32 v33, 4096, v{VA}")
    A(f"v_add_u32 v34, 8192, v{VA}")
    A("s_waitcnt lgkmcnt(0)")

LSC = 100
def ln_norm(A, tiles):
    for t in tiles:
        tb = 16 + 8*(t & 1)
        for j in range(4):
            A(f"v_lshlrev_b32 v{tb+2*j}, 16, v{ZL+4*t+j}")
            A(f"v_and_b32 v{tb+2*j+1}, 0xffff0000, v{ZL+4*t+j}")
        for i in range(8): A(f"v_fma_f32 v{tb+i}, v{tb+i}, v{LSC+2*i}, v{LSC+2*i+1}")
        for j in range(4): A(f"v_cvt_pk_bf16_f32 v{ZL+4*t+j}, v{tb+2*j}, v{tb+2*j+1}")
        r = A.vm(f"buffer_store_dwordx4 {vr(ZL+4*t,4)}, v{[VA, 33, 34][t >> 2]}, s[4:7], 0 offen offset:{(t&3)*1024} sc1")
    return r

def own_tile(A):
    A(f"s_lshr_b32 s64, s{S_W}, 1")
    A(f"s_mul_i32 s64, s64, {STG}")
    A(f"s_and_b32 s66, s{S_W}, 1")
    A("s_mul_i32 s66, s66, 9216")
    A("s_add_u32 s64, s64, s66")
    A(f"s_add_u32 s64, s64, {(18 % S)*STG}")
    A(f"v_add_u32 v7, s64, v{VA}")
    for t in range(9): A(f"ds_write_b128 v7, {vr(ZL+4*t,4)} offset:{t*1024}")

GX, GW = 120, 140
def gate_issue(A):
    A(f"s_cmp_ge_u32 s{S_FT}, 8")
    A(f"s_cbranch_scc1 {n}_gi")
    psrd(A, 4, P_U, None, 2048*1152)
    A(f"s_lshl_b32 s64, s{S_TT}, 3")
    A(f"s_add_u32 s64, s64, s{S_FT}")
    A("s_lshl_b32 s64, s64, 2")
    A(f"s_add_u32 s64, s64, s{S_W}")
    A("s_lshl_b32 s64, s64, 2")
    A("v_lshrrev_b32 v45, 4, v0")
    A("v_add_u32 v45, s64, v45")
    A("v_and_b32 v6, 15, v0")
    A("v_lshlrev_b32 v6, 3, v6")
    A("v_mul_u32_u24 v7, 1152, v45")
    A("v_add_u32 v7, v7, v6")
    A(f"s_movk_i32 s64, {4*1152}")
    for rd in range(1):
        for i in range(9): A(f"buffer_load_dwordx2 {vr(GX+18*rd+2*i,2)}, v7, s[4:7], {'s64' if rd else '0'} offen offset:{128*i}")
    psrd(A, 4, P_GATE, None, 1152)
    for i in range(9): A(f"buffer_load_dwordx2 {vr(GW+2*i,2)}, v6, s[4:7], 0 offen offset:{128*i}")
    A.label(f"{n}_gi")

def gate_job(A, rd=0):
    A(f"s_cmp_ge_u32 s{S_FT}, 8")
    A(f"s_cbranch_scc1 {n}_gj{rd}")
    A("v_mov_b32 v8, 0")
    A("v_mov_b32 v9, 0x3f803f80")
    for i in range(18):
        t = 36 + 4*(i & 1)
        A(f"v_lshlrev_b32 v{t}, 16, v{GX+18*rd+i}")
        A(f"v_and_b32 v{t+1}, 0xffff0000, v{GX+18*rd+i}")
        A(f"v_lshlrev_b32 v{t+2}, 16, v{GW+i}")
        A(f"v_and_b32 v{t+3}, 0xffff0000, v{GW+i}")
        A(f"v_mul_f32 v{t}, v{t}, v{t+2}")
        A(f"v_mul_f32 v{t+1}, v{t+1}, v{t+3}")
        A(f"v_cvt_pk_bf16_f32 v{t}, v{t}, v{t+1}")
        A(f"v_and_b32 v{t+1}, 0xffff0000, v{t}")
        A(f"v_lshlrev_b32 v{t}, 16, v{t}")
        A(f"v_add_f32 v8, v8, v{t+1}")
        A(f"v_add_f32 v8, v8, v{t}")
    for rot in (8, 4, 2, 1):
        A("s_nop 1")
        A(f"v_add_f32_dpp v8, v8, v8 row_ror:{rot} row_mask:0xf bank_mask:0xf")
    bf16_round(A, 8)
    A(f"v_mul_f32 v8, {f32(-LOG2E)}, v8")
    A("v_exp_f32 v8, v8")
    A("s_nop 0")
    A("v_add_f32 v8, 1.0, v8")
    A("v_rcp_f32 v8, v8")
    A("s_nop 0")
    bf16_round(A, 8)
    A("v_sub_f32 v9, 1.0, v8")
    bf16_round(A, 9)
    psrd(A, 4, P_WS, WS_G, 2048*8)
    A("v_lshlrev_b32 v5, 3, v45")
    set_exec(A, 0x00010001, 0x00010001)
    A(f"buffer_store_dwordx2 v[8:9], v5, s[4:7], 0 offen offset:{32*rd} sc1")
    A("s_mov_b64 exec, -1")
    A.label(f"{n}_gj{rd}")

def wot_issue(A):
    for i in range(5):
        A(f"v_add_u32 v8, {64*i}, v0")
        A("v_mul_u32_u24 v9, 7282, v8")
        A("v_lshrrev_b32 v9, 16, v9")
        A("v_mul_u32_u24 v10, 9, v9")
        A("v_sub_u32 v10, v8, v10")
        A("v_mul_u32_u24 v9, 1152, v9")
        A(f"v_lshl_add_u32 v{40+i}, v10, 4, v9")
    A(f"s_sub_u32 s65, s{S_CH}, 576")
    A("s_lshr_b32 s1, s65, 2")
    A("s_cmp_ge_u32 s1, 72")
    A(f"s_cbranch_scc1 {n}_sj1")
    A("s_mul_i32 s64, s1, 57")
    A("s_lshr_b32 s64, s64, 9")
    A("s_mul_i32 s66, s64, 9")
    A("s_sub_u32 s66, s1, s66")
    A("s_lshl_b32 s66, s66, 2")
    A(f"s_add_u32 s66, s66, s{S_W}")
    A("s_lshl_b32 s66, s66, 1")
    A("s_mul_i32 s24, s64, 72")
    A("s_add_u32 s24, s24, s66")
    A(f"s_mul_i32 s0, s66, {32*1152}")
    A("s_mul_i32 s64, s64, 144")
    A("s_add_u32 s0, s0, s64")
    A(f"s_mul_i32 s31, s{S_W}, {ssm.RSZ}")
    A(f"s_add_u32 s31, s31, {LDS_X + 1024}")
    psrd(A, 4, P_WOUT, None, 2304*1152)
    wot_dma(A)
    A.label(f"{n}_sj1")

def wot_dma(A):
    for i in range(5):
        A(f"s_add_u32 m0, s31, {1024*i}")
        A("s_mov_b64 exec, 0xffffffff" if i == 4 else "s_nop 0")
        A(f"buffer_load_dwordx4 v{40+i}, s[4:7], s0 offen lds")
    A("s_mov_b64 exec, -1")

def wot_unit(A, u):
    A(f"s_sub_u32 s65, s{S_CH}, 576")
    A("s_cmp_ge_u32 s65, 288")
    A(f"s_cbranch_scc1 {n}_sj2{u}")
    A("v_lshrrev_b32 v5, 2, v0")
    A("v_mul_u32_u24 v5, 144, v5")
    A("v_and_b32 v6, 3, v0")
    A("v_lshl_add_u32 v7, v6, 4, v5")
    A("v_add_u32 v7, s31, v7")
    A("v_lshl_add_u32 v8, v6, 3, v5")
    A("v_add_u32 v8, s31, v8")
    A("v_lshlrev_b32 v9, 4, v0")
    A("v_and_b32 v10, 7, v0")
    A("v_lshrrev_b32 v13, 4, v0")
    A("v_lshl_add_u32 v10, v13, 3, v10")
    A("v_lshlrev_b32 v10, 4, v10")
    A("v_add_u32 v10, 4096, v10")
    for q in range(5):
        for h in range(2):
            if q < 4: A(f"ds_read_b64_tr_b16 {vr(16+4*q+2*h,2)}, v7 offset:{h*16*144 + 64*(q>>1) + 8*(q&1)}")
            else:     A(f"ds_read_b64_tr_b16 {vr(16+4*q+2*h,2)}, v8 offset:{h*16*144 + 128}")
    A("s_waitcnt lgkmcnt(0)")
    if u == 0:
        psrd(A, 4, P_WOUT, None, 2304*1152)
        A(f"s_add_u32 s0, s0, {32*1152}")
        wot_dma(A)
    A("s_mul_i32 s64, s24, 4608")
    A(f"s_add_u32 s64, s64, {WS_WOT + u*4608}")
    psrd(A, 4, P_WS, "s64", 4608)
    for q in range(4):
        A(f"buffer_store_dwordx4 {vr(16+4*q,4)}, v9, s[4:7], 0 offen offset:{1024*q} sc1")
    set_exec(A, 0x00ff00ff, 0x00ff00ff)
    A(f"buffer_store_dwordx4 {vr(32,4)}, v10, s[4:7], 0 offen sc1")
    A("s_mov_b64 exec, -1")
    A.label(f"{n}_sj2{u}")

def sinit_wait(A, lbl):
    A("s_mov_b32 s64, 0")
    A.label(f"{lbl}_poll")
    A(f"s_load_dwordx4 s[4:7], s[{P_DBG}:{P_DBG+1}], 0 glc")
    A("s_waitcnt lgkmcnt(0)")
    for i in range(1, 4): A(f"s_min_u32 s4, s4, s{4+i}")
    A("s_add_u32 s64, s64, 1")
    A("s_cmp_ge_u32 s4, 64")
    A(f"s_cbranch_scc1 {lbl}_ok")
    A("s_sleep 16")
    A("s_cmp_lt_u32 s64, 20000")
    A(f"s_cbranch_scc1 {lbl}_poll")
    A.label(f"{lbl}_ok")

def gen_C(A, diag):
    A.label(f"{n}_C")
    ACC2 = 16; Z2P = 16; ACC1 = 52
    SET = [124, 168]
    RX = 212; RW = 214; RWT = 222; VC1 = 15; SUM = 224; Z1P = 216
    if "noprio" not in OPT: A("s_setprio 2")
    psrd(A, 20, P_WS, WS_MB, 4*MBSZ)
    def clears(tag):
        A(f"s_cmp_lg_u32 s{S_W}, 0")
        A(f"s_cbranch_scc1 {n}_Cni{tag}")
        A.vshift = 184
        A("v_lshrrev_b32 v2, 4, v0")
        A("v_and_b32 v3, 15, v0")
        A("v_lshlrev_b32 v3, 4, v3")
        A("v_lshl_add_u32 v3, v2, 16, v3")
        A(f"v_mov_b32 v4, s{S_O3}")
        A(f"v_mov_b32 v5, s{S_O1}")
        A("v_cmp_eq_u32 vcc, 0, v2")
        A("s_nop 1")
        A("v_cndmask_b32 v4, v4, v5, vcc")
        A("v_lshl_add_u32 v3, v4, 8, v3")
        for i in range(4): A(f"v_mov_b32 v{4+i}, 0")
        A("buffer_store_dwordx4 v[4:7], v3, s[20:23], 0 offen sc1")
        A(f"v_mov_b32 v2, {LDS_CNT}")
        A("ds_write_b128 v2, v[4:7]")
        A("ds_write_b128 v2, v[4:7] offset:16")
        A(f"s_lshl_b32 s64, s{S_O1}, 10")
        A(f"s_add_u32 s64, s64, {WS_ST}")
        psrd(A, 4, P_WS, "s64", 1024)
        for i in range(4): A(f"v_mov_b32 v{8+i}, -1")
        A("v_lshlrev_b32 v1, 4, v0")
        A("buffer_store_dwordx4 v[8:11], v1, s[4:7], 0 offen sc1")
        A.vshift = 0
        A.label(f"{n}_Cni{tag}")
    A(f"s_cmp_ge_u32 s{S_FT}, {0 if 'klate' in OPT else 9}")
    A(f"s_cbranch_scc1 {n}_Cnp")
    if "sstamp" in OPT: A.stamp(9)
    A(f"s_mul_i32 s1, s{S_W}, {ssm.RSZ}")
    A(f"s_add_u32 s1, s1, {ssm.R0_BASE}")
    A(f"s_add_u32 s{S_R0}, s1, {ssm.R0_OFF}")
    A("s_waitcnt vmcnt(0)")
    if "sstamp" in OPT: A.stamp(10)
    clears("a")
    if 'klate' not in OPT: ssm.kgen(A, 1, S_R0, 2 if 'kfull' in OPT else 0, True)
    if "sstamp" in OPT: A.stamp(11); A.used = {9, 10, 11}
    A(f"s_branch {n}_Cnk")
    A.label(f"{n}_Cnp")
    clears("b")
    A("s_waitcnt vmcnt(0)")
    A.label(f"{n}_Cnk")
    A("v_and_b32 v5, 15, v0")
    A("v_lshrrev_b32 v6, 4, v0")
    A("v_lshrrev_b32 v7, 1, v5")
    A("v_xor_b32 v7, v7, v6")
    A("v_lshlrev_b32 v7, 4, v7")
    A("v_lshl_add_u32 v7, v5, 7, v7")
    A(f"s_lshl_b32 s64, s{S_W}, 12")
    A("s_add_u32 s64, s64, 18432")
    A(f"v_add_u32 v{RX}, s64, v7")
    A(f"v_xor_b32 v{RX+1}, 64, v{RX}")
    A(f"v_mov_b32 v14, v{RX}")
    A("v_and_b32 v2, 1, v6")
    A("v_lshrrev_b32 v3, 2, v5")
    A("v_lshl_add_u32 v2, v2, 2, v3")
    A("v_lshrrev_b32 v3, 1, v6")
    A("v_lshl_add_u32 v3, v3, 4, v2")
    A("v_and_b32 v4, 3, v5")
    A("v_lshlrev_b32 v4, 3, v4")
    A("v_lshl_add_u32 v7, v3, 8, v4")
    A("v_lshl_add_u32 v7, v2, 5, v7")
    for b in range(8): A(f"v_xor_b32 v{RW+b}, {32*b}, v7")
    A("v_lshl_add_u32 v7, v3, 5, v4")
    A(f"v_add_u32 v{RWT}, 16384, v7")
    A(f"v_mov_b32 v{VC1}, {f32(GC1)}")
    for r in range(72): A(f"v_mov_b32 v{ACC2+r}, 0")
    A("s_mov_b32 s68, 0")
    A(f"s_mov_b32 s69, {STG}")
    def g1_reads(setid, ks):
        b = SET[setid]
        X = lambda a: [f"ds_read_b128 {vr(b+4*a,4)}, v{RX+ks} offset:{a*2048}"]
        def W(t, h):
            if t < 8: return [f"ds_read_b64_tr_b16 {vr(b+8+4*t+2*h,2)}, v{RW+t} offset:{ks*8192+h*2048}"]
            return [f"ds_read_b64_tr_b16 {vr(b+8+4*t+2*h,2)}, v{RWT} offset:{ks*1024+h*256}"]
        out = [X(0), W(0,0), W(0,1), X(1)]
        for t in range(1, 9): out += [W(t,0), W(t,1)]
        return out
    def g1_mfmas(setid, half):
        b = SET[setid]
        out = []
        for t in range(9):
            for a in range(2):
                c = (ACC2 if half == 0 else ACC1) + (t*2+a)*4
                x = vr(b+4*a,4); w = vr(b+8+4*t,4)
                out.append(f"v_mfma_f32_16x16x32_bf16 {vr(c,4)}, {x}, {w}, {vr(c,4)}" if half == 0 else
                           f"v_mfma_f32_16x16x32_bf16 {vr(c,4)}, {w}, {x}, {vr(c,4)}")
        return out
    def advance(regs):
        o = [["s_add_u32 s68, s68, 1", "s_and_b32 s68, s68, 3"], [f"s_cselect_b32 s70, s69, {-3*STG}"]]
        return o + [[f"v_add_u32 v{r}, s70, v{r}"] for r in regs]
    def g1_loop(half):
        A(f"s_mov_b32 s71, {3 - half}")
        A.raw(".p2align 6")
        A.label(f"{n}_g1{half}")
        for u in range(3):
            A("s_waitcnt lgkmcnt(0)")
            A(interleave(g1_mfmas(0, half), g1_reads(1, 1) + advance(range(RX, RWT+1)), per=2))
            A("s_waitcnt lgkmcnt(0)")
            A("s_barrier")
            A(interleave(g1_mfmas(1, half), g1_reads(0, 0), per=2))
        A("s_sub_u32 s71, s71, 1")
        A("s_cmp_lg_u32 s71, 0")
        A(f"s_cbranch_scc1 {n}_g1{half}")
        for q in range(9 if half == 0 else 6): A.bars.append(f"M{9*half+q}")
        if half:
            for u in range(3):
                A("s_waitcnt lgkmcnt(0)")
                A(interleave(g1_mfmas(0, half), g1_reads(1, 1) + (advance(range(RX, RWT+1)) if u < 2 else []), per=2))
                A("s_waitcnt lgkmcnt(0)")
                if u == 0: A.bar("M15")
                A(interleave(g1_mfmas(1, half), g1_reads(0, 0) if u < 2 else [], per=2))
    A(f"s_cmp_ge_u32 s{S_FT}, 9")
    A(f"s_cbranch_scc1 {n}_Cnw0")
    A("s_waitcnt vmcnt(0)")
    A.label(f"{n}_Cnw0")
    A.bar("B0")
    A.stamp(2)
    for g in g1_reads(0, 0): A(g)
    g1_loop(0)
    A.stamp(3)
    A("v_lshlrev_b32 v1, 4, v0")
    A(f"s_lshl_b32 s64, s{S_W}, 10")
    A("v_add_u32 v1, s64, v1")
    A(f"v_add_u32 v2, {XH}, v1")
    T = SET[1]
    for i in range(16): A(f"v_mov_b32 v{SUM+i}, 0")
    KC = 4
    for i, v in enumerate((GC1, GC1, GC0, GC0, 1.0, 1.0)): A(f"v_mov_b32 v{KC+i}, {f32(v)}")
    for t in range(9):
        regs = [ACC2 + 8*t + i for i in range(8)]
        A(gelu_pk(regs, T, KC))
        for i in range(4): A(f"v_pk_add_f32 {vr(SUM+2*i,2)}, {vr(SUM+2*i,2)}, {vr(regs[2*i],2)}")
        for i in range(4): A(f"v_pk_fma_f32 {vr(SUM+8+2*i,2)}, {vr(regs[2*i],2)}, {vr(regs[2*i],2)}, {vr(SUM+8+2*i,2)}")
        for j in range(4): A(f"v_cvt_pk_bf16_f32 v{Z2P+4*t+j}, v{regs[2*j]}, v{regs[2*j+1]}")
        if t < 8: A(f"ds_write_b128 v1, {vr(Z2P+4*t,4)} offset:{(t>>2)*18432 + (t&3)*4096}")
        else:     A(f"ds_write_b128 v2, {vr(Z2P+4*t,4)}")
    for rot in (8, 4, 2, 1):
        for i in range(16):
            d = SUM + i if rot > 1 else T + 2*(i & 7) + (i >> 3)
            A(f"v_add_f32_dpp v{d}, v{SUM+i}, v{SUM+i} row_ror:{rot} row_mask:0xf bank_mask:0xf")
    A(f"s_lshl_b32 s64, s{S_O1}, 10")
    A(f"s_add_u32 s64, s64, {WS_ST}")
    psrd(A, 4, P_WS, "s64", 1024)
    A("v_lshrrev_b32 v6, 4, v0")
    A("v_lshlrev_b32 v6, 6, v6")
    A(f"s_lshl_b32 s65, s{S_W}, 8")
    A("v_add_u32 v6, s65, v6")
    set_exec(A, 0x00010001, 0x00010001)
    for i in range(4):
        A(f"buffer_store_dwordx4 {vr(T+4*i,4)}, v6, s[4:7], 0 offen offset:{16*i} sc1")
    A("s_mov_b64 exec, -1")
    A("v_and_b32 v5, 15, v0")
    A("v_lshrrev_b32 v8, 2, v5")
    A("v_lshlrev_b32 v8, 3, v8")
    A("v_and_b32 v9, 3, v5")
    A("v_add_u32 v8, v8, v9")
    A(f"s_lshl_b32 s64, s{S_W}, 5")
    A("v_add_u32 v8, s64, v8")
    A("v_lshlrev_b32 v11, 1, v8")
    A(f"s_lshl_b32 s64, s{S_TT}, 8")
    psrd(A, 4, P_BSP, "s64", 256)
    A("buffer_load_ushort v12, v11, s[4:7], 0 offen")
    A("buffer_load_ushort v13, v11, s[4:7], 0 offen offset:8")
    if 'kfull' not in OPT:
        A(f"s_cmp_ge_u32 s{S_FT}, 9")
        A(f"s_cbranch_scc1 {n}_Cnp2")
        A.vshift = 20
        ssm.kgen_load(A, S_CH)
        A.vshift = 0
        A.label(f"{n}_Cnp2")
    for r in range(72): A(f"v_mov_b32 v{ACC1+r}, 0")
    A.stamp(4)
    g1_loop(1)
    A.stamp(5)
    A("s_waitcnt lgkmcnt(0)")
    A("s_nop 4")
    for t in range(9):
        regs = [ACC1 + 8*t + i for i in range(8)]
        if "gelu1pre" in OPT: A(gelu_ops(regs, T, VC1))
        for nb in range(2):
            for j in range(2):
                dst = Z1P + ((nb*4 + (t >> 1))*4 + (t & 1)*2 + j if t < 8 else 32 + nb*2 + j)
                A(f"v_cvt_pk_bf16_f32 v{dst}, v{regs[4*nb+2*j]}, v{regs[4*nb+2*j+1]}")
    A.bar("M17")
    A.stamp(6)
    A("s_waitcnt vmcnt(0)")
    if 'kfull' not in OPT:
        A(f"s_cmp_ge_u32 s{S_FT}, 9")
        A(f"s_cbranch_scc1 {n}_Cnk2")
        for i in range(3): A(f"v_mov_b32 v{212+i}, v{12+i}")
        for i in range(5): A(f"v_mov_b32 v{4+i}, v{24+i}")
        A(f"s_mul_i32 s64, s{S_W}, {ssm.RSZ}")
        A(f"s_add_u32 s1, s64, {ssm.R0_BASE}")
        A(f"s_add_u32 s72, s64, {ssm.R0_BASE + ssm.R0_OFF}")
        if "klate" in OPT:
            for i in range(5): A(f"v_mov_b32 v{207+i}, v{24+i}")
        ssm.kgen(A, 1, 72, 0 if "klate" in OPT else 1, True)
        for i in range(3): A(f"v_mov_b32 v{12+i}, v{212+i}")
        if "klate" in OPT:
            for i in range(5): A(f"v_mov_b32 v{1+i}, v{207+i}")
        A.label(f"{n}_Cnk2")
        A.stamp(7)
    ACC = 16; SET2 = [88, 132]; RA = 176; RB = 180
    A("v_lshlrev_b32 v10, 4, v0")
    for st in range(S):
        A(f"v_add_u32 v{RA+st}, {st*STG}, v10")
        A(f"v_add_u32 v{RB+2*st}, {st*STG}, v14")
        A(f"v_xor_b32 v{RB+2*st+1}, 64, v{RB+2*st}")
    A(f"s_lshl_b32 s64, s{S_TT}, 1")
    A(f"s_lshr_b32 s65, s{S_W}, 1")
    A("s_add_u32 s64, s64, s65")
    A(f"s_mul_i32 s64, s64, {72*4096}")
    A(f"s_and_b32 s65, s{S_W}, 1")
    A("s_lshl_b32 s65, s65, 11")
    A("s_add_u32 s64, s64, s65")
    A(f"s_add_u32 s64, s64, {WS_HF}")
    psrd(A, 16, P_WS, "s64", 72*4096)
    if "prestore" in OPT:
        A(f"s_lshl_b32 s70, s{S_FT}, 14")
        for i in range(1, 4): A(f"s_add_u32 s{70+i}, s70, {4096*i}")
        for j in range(8):
            A(f"buffer_store_dwordx4 v[200:203], v10, s[16:19], s{70+(j&3)} offen offset:{(j>>2)*1024}{'' if 'plain' in OPT else ' sc1'}")
    A("v_lshlrev_b32 v12, 16, v12")
    A("v_lshlrev_b32 v13, 16, v13")
    for a in range(9):
        for nb in range(2):
            for r in range(4): A(f"v_mov_b32 v{ACC+(a*2+nb)*4+r}, v{12+nb}")
    def g2_reads(setid, slot, ks):
        b = SET2[setid]
        out = []
        for kind, i in [("B", 0), ("A", 0), ("B", 1)] + [("A", a) for a in range(1, 9)]:
            if kind == "B": out.append([f"ds_read_b128 {vr(b+4*i,4)}, v{RB+2*slot+ks} offset:{i*2048}"])
            else:           out.append([f"ds_read_b128 {vr(b+8+4*i,4)}, v{RA+slot} offset:{(ks*9+i)*1024}"])
        return out
    def g2_mfmas(setid):
        b = SET2[setid]
        return [f"v_mfma_f32_16x16x32_bf16 {vr(ACC+(a*2+nb)*4,4)}, {vr(b+8+4*a,4)}, {vr(b+4*nb,4)}, {vr(ACC+(a*2+nb)*4,4)}"
                for a in range(9) for nb in range(2)]
    GT = 188
    def gelu_fill():
        if "gelu1pre" in OPT: return []
        f = [["s_set_gpr_idx_on s70, 0x1", "s_nop 0"] + [f"v_mov_b32 v{GT+k}, v{Z1P+k}" for k in range(5)] + ["s_set_gpr_idx_off"]]
        for k in range(5):
            f.append([f"v_lshlrev_b32 v{GT+5+2*k}, 16, v{GT+k}"]); f.append([f"v_and_b32 v{GT+6+2*k}, 0xffff0000, v{GT+k}"])
        f += [[x] for x in gelu_ops([GT+5+i for i in range(10)], GT+15, VC1)]
        f.append(["s_set_gpr_idx_on s70, 0x8", "s_nop 0"] + [f"v_cvt_pk_bf16_f32 v{Z1P+k}, v{GT+5+2*k}, v{GT+6+2*k}" for k in range(5)] + ["s_set_gpr_idx_off", "s_add_u32 s70, s70, 5"])
        return f
    A(f"v_mov_b32 v{VC1}, {f32(GC1)}")
    A("s_mov_b32 s70, 0")
    for i in range(4): A(f"v_mov_b32 v{252+i}, 0")
    A("s_waitcnt lgkmcnt(0)")
    A.bar("G2S")
    A.stamp(8)
    for g in g2_reads(0, 18 % S, 0): A(g)
    A("s_mov_b32 s71, 8")
    A.raw(".p2align 6")
    A.label(f"{n}_g2")
    for rep in range(8 if "nstamp" in OPT else 1):
        if "nstamp" in OPT: A(f"s_memtime s[{80+2*rep}:{81+2*rep}]")
        fill = gelu_fill()
        for u in range(4):
            slot = (18 + u) % S
            for hf in range(2):
                A("s_waitcnt lgkmcnt(0)")
                if hf: A("s_barrier")
                rd = g2_reads(1, slot, 1) if hf == 0 else g2_reads(0, (slot+1) % S, 0)
                grp = []
                for gp in range(7):
                    g, cost = [], 0
                    while fill and cost < 2:
                        x = fill.pop(0); g += x
                        cost += sum(2 if ("v_exp" in y or "v_rcp" in y) else 1 for y in x)
                    grp.append(g)
                A(interleave(g2_mfmas(hf), rd + grp))
        assert not fill, len(fill)
    if "nstamp" in OPT:
        A("s_memtime s[96:97]"); A.diag = False
    else:
        A("s_sub_u32 s71, s71, 1")
        A("s_cmp_lg_u32 s71, 0")
        A(f"s_cbranch_scc1 {n}_g2")
    for q in range(18, 50): A.bars.append(f"N{q}")
    A.stamp(9)
    A(f"s_lshl_b32 s70, s{S_FT}, 14")
    for i in range(1, 4): A(f"s_add_u32 s{70+i}, s70, {4096*i}")
    A(f"s_lshr_b32 s64, s{S_FT}, 1")
    A("s_lshl_b32 s64, s64, 12")
    A(f"s_and_b32 s65, s{S_FT}, 1")
    A("s_lshl_b32 s65, s65, 3")
    A("s_add_u32 s64, s64, s65")
    A(f"s_add_u32 s64, s64, {64*4096}")
    A("s_waitcnt lgkmcnt(0)")
    T2 = SET2[0]
    cnt = 0
    for j in range(9):
        for i in range(4):
            if j < 8: nb, a, rr = j >> 2, 2*(j & 3) + (i >> 1), 2*(i & 1)
            else:     nb, a, rr = i >> 1, 8, 2*(i & 1)
            c = ACC + (a*2+nb)*4 + rr
            t0 = T2 + 2*(cnt % 8); cnt += 1
            z = Z1P + 4*j + i
            A(f"v_lshlrev_b32 v{t0}, 16, v{z}")
            A(f"v_and_b32 v{t0+1}, 0xffff0000, v{z}")
            A(f"v_mul_f32 v{t0}, v{t0}, v{c}")
            A(f"v_mul_f32 v{t0+1}, v{t0+1}, v{c+1}")
            A(f"v_cvt_pk_bf16_f32 v{z}, v{t0}, v{t0+1}")
        if j < 8:
            A(f"buffer_store_dwordx4 {vr(Z1P+4*j,4)}, v10, s[16:19], s{70+(j&3)} offen offset:{(j>>2)*1024} sc1")
        else:
            for nb in range(2):
                A(f"buffer_store_dwordx2 {vr(Z1P+32+2*nb,2)}, v10, s[16:19], s64 offen offset:{nb*1024} sc1")
    A.bar("EPI")
    if "estamp" in OPT: A.stamp(2)
    def pub2(tag):
        if "estamp" in OPT: A.stamp(3)
        A("s_waitcnt vmcnt(0)")
        if "estamp" in OPT: A.stamp(4)
        A(f"s_lshr_b32 s65, s{S_W}, 1")
        A("s_lshl_b32 s70, s65, 2")
        A(f"s_add_u32 s70, s70, {LDS_CNT + 8}")
        lds_arrive(A, ["v_mov_b32 v200, s70"], 200, 1, f"{n}_Cnh{tag}")
        A(f"s_lshl_b32 s71, s{S_TT}, 1")
        A("s_add_u32 s71, s71, s65")
        A("s_lshl_b32 s71, s71, 3")
        mb_push(A, MB_H, 8, ["v_add_u32 v200, s71, v0"], S_FT, 200, 20)
        A.label(f"{n}_Cnh{tag}")
    A(f"s_cmp_ge_u32 s{S_FT}, 9")
    A(f"s_cbranch_scc1 {n}_Cnc")
    A(f"s_mul_i32 s64, s{S_W}, {ssm.RSZ}")
    A(f"s_add_u32 s1, s64, {ssm.R0_BASE}")
    A(f"s_add_u32 s72, s64, {ssm.R0_BASE + ssm.R0_OFF}")
    A(f"s_add_u32 s73, s64, {R1_BASE}")
    A(f"s_mul_i32 s74, s{S_W}, {ssm.USZ}")
    A(f"s_add_u32 s74, s74, {U_BASE}")
    if 'klate' in OPT:
        for i in range(4, -1, -1): A(f"v_mov_b32 v{4+i}, v{1+i}")
        bg = Stream(False)
        ssm.kgen(bg, 1, 72, 1, True)
        kch, _ = bg_split(bg.lines, [KHOOK, 99999])
        A.lines += kch[0]
        pub2("a")
        A.lines += kch[1]
    ssm.r1_build(A, 72, 73, 16)
    A("v_mov_b32 v6, 0"); A("v_mov_b32 v7, 0")
    A("v_lshlrev_b32 v8, 3, v0")
    A("v_add_u32 v8, s74, v8")
    set_exec(A, -1, 0x0fffffff)
    A("ds_write_b64 v8, v[6:7]")
    A("s_mov_b64 exec, -1")
    if "estamp" in OPT: A.stamp(5)
    ssm.conv(A, 72, 73, 74, S_CH, hook=None if 'klate' in OPT else (lambda: pub2('a')))
    A("s_waitcnt vmcnt(0)")
    lds_arrive(A, [f"v_mov_b32 v6, {LDS_CNT}"], 6, 3, f"{n}_Cnc2")
    A(f"s_lshr_b32 s74, s{S_CH}, 2")
    A("s_mul_i32 s72, s74, 3641")
    A("s_lshr_b32 s72, s72, 16")
    A("s_mul_i32 s73, s72, 18")
    A("s_sub_u32 s73, s74, s73")
    mb_push(A, MB_A, 32, ["v_lshlrev_b32 v14, 3, v0", "v_add_u32 v14, s72, v14"], 73, 14, 20)
    A(f"s_branch {n}_Cnc2")
    A.label(f"{n}_Cnc")
    pub2("b")
    A.label(f"{n}_Cnc2")
    A.stamp(10)
    g3(A)
    if diag:
        A("s_waitcnt vmcnt(0)")
        A.diag = True
        if "tstamp" in OPT: A.stamp(5)
        A.stamp(12, True)
        stamp_dump(A, f"{n}_Cd", 0)
        if "dbgdump" in OPT:
            A("s_memtime s[64:65]")
            A("s_waitcnt lgkmcnt(0)")
            A("s_cmp_lg_u32 s2, 9")
            A(f"s_cbranch_scc1 {n}_end")
            A(f"s_cmp_lg_u32 s{S_W}, 0")
            A(f"s_cbranch_scc1 {n}_end")
            psrd(A, 4, P_DBG, None, 64)
            for i in range(2, 12):
                A(f"s_sub_u32 s66, s{76+2*i}, s76"); A(f"v_mov_b32 v{4+i-2}, s66")
            A("s_sub_u32 s66, s64, s76"); A("v_mov_b32 v14, s66")
            A("s_sub_u32 s66, s100, s78"); A("v_mov_b32 v15, s66")
            A("v_mov_b32 v1, 0")
            for i in range(3): A(f"buffer_store_dwordx4 v[{4+4*i}:{7+4*i}], v1, s[4:7], 0 offen offset:{16*i}")
    A.label(f"{n}_end")
    A("s_endpgm")

NL = 4
TPOS = 21
AHINT = 10
DA, DB = (6, 3) if 'd63' in OPT else (4, 5) if 'd45' in OPT else (5, 4)
def g3_main(A):
    ACC = 4; AB = 84; BB = AB + 20*DA
    assert BB + 16*DB <= 252
    A.vshift = 0
    A("v_lshlrev_b32 v2, 4, v0")
    A("v_and_b32 v3, 7, v0")
    A("v_lshrrev_b32 v1, 4, v0")
    A("v_lshl_add_u32 v3, v1, 3, v3")
    A("v_lshlrev_b32 v3, 4, v3")
    A("v_add_u32 v3, 4096, v3")
    A(f"s_mul_i32 s64, s{S_J}, {72*4608}")
    A(f"s_add_u32 s64, s64, {WS_WOT}")
    psrd(A, 4, P_WS, "s64", 72*4608)
    A(f"s_mul_i32 s64, s{S_T64}, {72*4096}")
    A(f"s_add_u32 s64, s64, {WS_HF}")
    psrd(A, 12, P_WS, "s64", 72*4096)
    A(f"s_and_b32 s64, s{S_T64}, 3")
    A("s_lshl_b32 s64, s64, 1")
    if "rotT" not in OPT: A(f"s_add_u32 s64, s64, s{S_J}")
    A("s_and_b32 s64, s64, 7")
    A("s_mul_i32 s64, s64, 9")
    if "rotJ" in OPT: A(f"s_mul_i32 s64, s{S_J}, 9")
    elif "rot3" not in OPT: A("s_mov_b32 s64, 0")
    A(f"s_add_u32 s64, s64, s{S_W}")
    A("s_mul_i32 s70, s64, 4608")
    A("s_lshl_b32 s71, s64, 12")
    NK = 18
    ra = {}; rb = {}
    def loadA(it):
        b = AB + 20*(it % DA)
        for q in range(4): A.vm(f"buffer_load_dwordx4 {vr(b+4*q,4)}, v2, s[4:7], s70 offen offset:{1024*q} sc1")
        ra[it] = A.vm(f"buffer_load_dwordx4 {vr(b+16,4)}, v{3 if it < DA else 255}, s[4:7], s70 offen sc1")
        A(f"s_add_u32 s70, s70, {4*4608}")
        A(f"s_cmp_ge_u32 s70, {72*4608}")
        A(f"s_cselect_b32 s72, {72*4608}, 0")
        A("s_sub_u32 s70, s70, s72")
    def loadB(it):
        b = BB + 16*(it % DB)
        for q in range(4): rb[it] = A.vm(f"buffer_load_dwordx4 {vr(b+4*q,4)}, v2, s[12:15], s71 offen offset:{1024*q} sc1")
        A(f"s_add_u32 s71, s71, {4*4096}")
        A(f"s_cmp_ge_u32 s71, {72*4096}")
        A(f"s_cselect_b32 s72, {72*4096}, 0")
        A("s_sub_u32 s71, s71, s72")
    A(f"s_cmp_ge_u32 s{S_FT}, 9")
    A(f"s_cbranch_scc1 {n}_Lnu1")
    A(f"s_lshl_b32 s64, s{S_CH}, 12")
    A(f"s_add_u32 s64, s64, {WS_UT}")
    psrd(A, 16, P_WS, "s64", 4096)
    A(f"s_mul_i32 s66, s{S_W}, {ssm.USZ}")
    A(f"s_add_u32 m0, s66, {U_BASE + 480}")
    A("s_nop 0")
    for i in range(4):
        A(f"buffer_load_dwordx4 v2, s[16:19], 0 offen offset:{1024*i} sc1 lds")
    A.label(f"{n}_Lnu1")
    A("s_waitcnt vmcnt(9)")
    A.bar("N47")
    for r in range(80): A(f"v_mov_b32 v{ACC+r}, 0")
    A("s_waitcnt vmcnt(0)")
    loadA(0)
    A.bar("N48")
    loadA(1)
    A.bar("N49")
    A.bar("EPI")
    for it in range(2, DA): loadA(it)
    A(f"s_mul_i32 s73, s{S_W}, 20480")
    for u in range(NL):
        A(f"s_add_u32 m0, s73, {u*4608}")
        A("s_nop 0")
        for q in range(4): A.vm(f"buffer_load_dwordx4 v2, s[4:7], s70 offen offset:{1024*q} sc1 lds")
        A(f"s_add_u32 m0, s73, {u*4608 + 4096}")
        A("s_add_u32 s72, s70, 4096")
        A("s_mov_b64 exec, 0xffffffff")
        rl = A.vm("buffer_load_dwordx4 v2, s[4:7], s72 offen sc1 lds")
        A("s_mov_b64 exec, -1")
        A(f"s_add_u32 s70, s70, {4*4608}")
        A(f"s_cmp_ge_u32 s70, {72*4608}")
        A(f"s_cselect_b32 s72, {72*4608}, 0")
        A("s_sub_u32 s70, s70, s72")
    A("v_add_u32 v1, s73, v2")
    A("v_add_u32 v3, s73, v3")
    A("v_subrev_u32 v255, s73, v3")
    def ldsA(it):
        b = AB + 20*(it % DA); u = it - DA
        for q in range(4): A(f"ds_read_b128 {vr(b+4*q,4)}, v1 offset:{u*4608 + 1024*q}")
        A(f"ds_read_b128 {vr(b+16,4)}, v3 offset:{u*4608}")
        ra[it] = 0
    wg_wait(A, f"{n}_Lgh", S_W, LDS_CNT + 20, 252, lambda: mb_wait(A, f"{n}_Lh", MB_H, S_O3, 16, 252, 8, sleep=PSLEEP))
    A.stamp(9)
    A(f"s_lshl_b32 s64, s{S_T64}, 9")
    A(f"s_add_u32 s64, s64, {WS_G}")
    psrd(A, 16, P_WS, "s64", 512)
    A(f"s_mov_b32 m0, {LDS_G}")
    A("s_mov_b64 exec, 0xffffffff")
    A.vm("buffer_load_dwordx4 v2, s[16:19], 0 offen sc1 lds")
    A("s_mov_b64 exec, -1")
    for it in range(DB): loadB(it)
    for it in range(NK):
        A.wait_vm(max(ra[it], rb[it]), " lgkmcnt(0)" if DA <= it < DA + NL else "")
        if "gstamp" in OPT and it in (0, 1, 3, 6, 9, 12, 15): A.stamp(2 + (0, 1, 3, 6, 9, 12, 15).index(it))
        a = AB + 20*(it % DA); b = BB + 16*(it % DB)
        ia = it - 1 + DA
        fa = []
        if it >= 1 and ia < NK:
            ab = AB + 20*(ia % DA)
            if ia < DA + NL:
                u = ia - DA
                fa = [f"ds_read_b128 {vr(ab+4*q,4)}, v1 offset:{u*4608 + 1024*q}" for q in range(4)] + [f"ds_read_b128 {vr(ab+16,4)}, v3 offset:{u*4608}"]
                ra[ia] = 0
            else:
                fa = [f"buffer_load_dwordx4 {vr(ab+4*q,4)}, v2, s[4:7], s70 offen offset:{1024*q} sc1" for q in range(4)] + [f"buffer_load_dwordx4 {vr(ab+16,4)}, v255, s[4:7], s70 offen sc1"]
        for nt in range(4):
            for q in range(5):
                c = ACC + (nt*5+q)*4
                A(f"v_mfma_f32_16x16x32_bf16 {vr(c,4)}, {vr(a+4*q,4)}, {vr(b+4*nt,4)}, {vr(c,4)}")
                if it == NK - 1 and nt*5 + q >= 8:
                    k = nt*5 + q - 8
                    A(f"ds_write_b128 v1, {vr(ACC+k*4,4)} offset:{k*1024}")
                if fa and (q == 2 or (q == 0 and nt == 0)):
                    x = fa.pop(0)
                    if x.startswith("ds_"): A(x)
                    else: ra[ia] = A.vm(x)
            if it + DB < NK:
                rb[it+DB] = A.vm(f"buffer_load_dwordx4 {vr(b+4*nt,4)}, v2, s[12:15], s71 offen offset:{1024*nt} sc1")
        assert not fa
        if it + DB < NK:
            A(f"s_add_u32 s71, s71, {4*4096}")
            A(f"s_cmp_ge_u32 s71, {72*4096}")
            A(f"s_cselect_b32 s72, {72*4096}, 0")
            A("s_sub_u32 s71, s71, s72")
        if it >= 1 and DA + NL <= ia < NK:
            A(f"s_add_u32 s70, s70, {4*4608}")
            A(f"s_cmp_ge_u32 s70, {72*4608}")
            A(f"s_cselect_b32 s72, {72*4608}, 0")
            A("s_sub_u32 s70, s70, s72")
        if it == AHINT:
            A(f"v_mov_b32 v252, {LDS_CNT + 24}")
            A("ds_write_b32 v252, v252")
    A.stamp(10)
    for k in range(12, 20):
        if k == 16: A("s_nop 3")
        A(f"ds_write_b128 v1, {vr(ACC+k*4,4)} offset:{k*1024}")
    A("s_waitcnt lgkmcnt(0)")
    A.bar("RED")

def g3(A):
    A("v_lshlrev_b32 v2, 4, v0")
    A("v_lshrrev_b32 v4, 4, v0")
    A("v_and_b32 v5, 15, v0")
    A("v_lshrrev_b32 v6, 2, v5")
    A("v_lshlrev_b32 v6, 3, v6")
    A("v_and_b32 v7, 3, v5")
    A("v_add_u32 v6, v6, v7")
    A(f"s_lshr_b32 s70, s{S_W}, 1")
    A("s_lshl_b32 s70, s70, 5")
    A(f"s_and_b32 s66, s{S_W}, 1")
    A("s_lshl_b32 s66, s66, 2")
    A("s_add_u32 s70, s70, s66")
    A("v_add_u32 v6, s70, v6")
    A("v_lshlrev_b32 v15, 3, v6")
    A(f"v_add_u32 v15, {LDS_G}, v15")
    A(f"s_lshl_b32 s66, s{S_T64}, 6")
    A("v_add_u32 v6, s66, v6")
    A("v_mul_u32_u24 v6, 1152, v6")
    A(f"s_mul_i32 s66, s{S_J}, 144")
    A("v_add_u32 v6, s66, v6")
    A("v_lshl_add_u32 v10, v4, 4, v6")
    A("v_lshl_add_u32 v11, v4, 3, v6")
    psrd(A, 16, P_OUT, None, 2048*1152)
    A("v_lshrrev_b32 v12, 2, v5")
    A("v_lshl_add_u32 v13, v4, 3, v12")
    A("v_lshlrev_b32 v13, 7, v13")
    A("v_and_b32 v14, 3, v5")
    A("v_lshl_add_u32 v13, v14, 4, v13")
    A("s_lshl_b32 s70, s70, 1")
    A(f"s_add_u32 s70, s70, {LDS_AT}")
    A("v_add_u32 v13, s70, v13")
    A("v_lshl_add_u32 v12, v4, 2, v12")
    A("v_lshlrev_b32 v12, 7, v12")
    A("v_lshl_add_u32 v12, v14, 4, v12")
    A("v_add_u32 v12, s70, v12")
    A(f"s_cmp_lg_u32 s{S_W}, 0")
    A(f"s_cbranch_scc1 {n}_Cna")
    A(f"v_mov_b32 v16, {LDS_CNT + 24}")
    A("s_mov_b32 s65, 0")
    A.label(f"{n}_Cah")
    A("ds_read_b32 v17, v16")
    A("s_waitcnt lgkmcnt(0)")
    A("v_readfirstlane_b32 s66, v17")
    A("s_add_u32 s65, s65, 1")
    A("s_cmp_lg_u32 s66, 0")
    A(f"s_cbranch_scc1 {n}_Cah2")
    A("s_sleep 2")
    A("s_cmp_lt_u32 s65, 1000000")
    A(f"s_cbranch_scc1 {n}_Cah")
    A.label(f"{n}_Cah2")
    mb_wait(A, f"{n}_Ca", MB_A, S_O3, 18, 16, 20, sleep=8)
    A.stamp(11)
    A(f"s_mul_i32 s64, s{S_J}, {72*4096}")
    A(f"s_lshl_b32 s65, s{S_T64}, 7")
    A("s_add_u32 s64, s64, s65")
    A(f"s_add_u32 s64, s64, {WS_AT}")
    psrd(A, 12, P_WS, "s64", 71*4096+128)
    A("v_lshrrev_b32 v5, 3, v0")
    A("v_and_b32 v6, 7, v0")
    A("v_lshlrev_b32 v5, 12, v5")
    A("v_lshl_add_u32 v5, v6, 4, v5")
    for i in range(9):
        A(f"s_mov_b32 m0, {LDS_AT + 1024*i}")
        A(f"s_mov_b32 s70, {i*8*4096}")
        A("buffer_load_dwordx4 v5, s[12:15], s70 offen sc1 lds")
    A(f"v_mov_b32 v16, {LDS_CNT + 28}")
    A("s_waitcnt vmcnt(0)")
    A("ds_write_b32 v16, v16")
    A(f"s_branch {n}_Cna2")
    A.label(f"{n}_Cna")
    A(f"v_mov_b32 v16, {LDS_CNT + 28}")
    A("s_mov_b32 s65, 0")
    A.label(f"{n}_Cas")
    A("ds_read_b32 v17, v16")
    A("s_waitcnt lgkmcnt(0)")
    A("v_readfirstlane_b32 s66, v17")
    A("s_add_u32 s65, s65, 1")
    A("s_cmp_lg_u32 s66, 0")
    A(f"s_cbranch_scc1 {n}_Cna2")
    A("s_sleep 2")
    A("s_cmp_lt_u32 s65, 2000000")
    A(f"s_cbranch_scc1 {n}_Cas")
    A.label(f"{n}_Cna2")
    R = 96; AR = 16; T = 32
    for q in range(4):
        A(f"ds_read_b64_tr_b16 {vr(AR+2*q,2)}, v13 offset:{(32*(q>>1)+4*(q&1))*128}")
    A(f"ds_read_b64_tr_b16 {vr(AR+8,2)}, v12 offset:{64*128}")
    A("ds_read_b64 v[8:9], v15")
    A(f"s_mul_i32 s65, s{S_W}, 5120")
    A("v_add_u32 v14, s65, v2")
    A("v_add_u32 v3, 40960, v14")
    A("s_waitcnt lgkmcnt(0)")
    for i in range(10):
        A(f"v_lshlrev_b32 v{T+2*i}, 16, v{AR+i}")
        A(f"v_and_b32 v{T+2*i+1}, 0xffff0000, v{AR+i}")
    for i in range(20): A(f"v_mul_f32 v{T+i}, v8, v{T+i}")
    A("v_mov_b32 v8, v9")
    if "tstamp" in OPT: A.stamp(2)
    A.bar("RED")
    if "tstamp" in OPT: A.stamp(3); A("s_waitcnt lgkmcnt(0)")
    for q in range(5):
        for src in range(4):
            A(f"ds_read_b128 {vr(R+(src*5+q)*4,4)}, v{14 if src < 2 else 3} offset:{(src&1)*20480+q*1024}")
    O = 56
    for q in range(5):
        A(f"s_waitcnt lgkmcnt({min(15, 16 - 4*q)})")
        for h in range(2):
            r = R + 4*q + 2*h
            A(f"v_pk_add_f32 {vr(r,2)}, {vr(r,2)}, {vr(r+20,2)}")
            A(f"v_pk_add_f32 {vr(r+40,2)}, {vr(r+40,2)}, {vr(r+60,2)}")
        for h in range(2):
            r = R + 4*q + 2*h
            A(f"v_pk_add_f32 {vr(r,2)}, {vr(r,2)}, {vr(r+40,2)}")
        for h in range(2):
            r = R + 4*q + 2*h
            A(f"v_pk_fma_f32 {vr(T+4*q+2*h,2)}, {vr(r,2)}, v[8:9], {vr(T+4*q+2*h,2)}")
        for h in range(2):
            A(f"v_cvt_pk_bf16_f32 v{O+2*q+h}, v{T+4*q+2*h}, v{T+4*q+2*h+1}")
        if q == 1: A(f"buffer_store_dwordx4 {vr(O,4)}, v10, s[16:19], 0 offen")
        if q == 3: A(f"buffer_store_dwordx4 {vr(O+4,4)}, v10, s[16:19], 0 offen offset:64")
    if "tstamp" in OPT: A.stamp(4)
    A("s_mov_b64 exec, 0xffffffff")
    A(f"buffer_store_dwordx2 {vr(O+8,2)}, v11, s[16:19], 0 offen offset:128")
    A("s_mov_b64 exec, -1")

if __name__ == "__main__":
    diag = "--diag" in sys.argv
    out = [a for a in sys.argv[1:] if not a.startswith("--")][0]
    H = Stream(diag); C = Stream(diag); L = Stream(diag)
    header(H); gen_L(L, diag); gen_C(C, diag)
    assert C.bars == L.bars, [(a, b) for a, b in zip(C.bars, L.bars) if a != b][:5]
    launch = f"; @launch grid=(256,1,1) block=(512,1,1) lds={LDS_TOTAL}\n"
    if "--list" in sys.argv:
        launch = f"; @launch kernel={NAME} grid=(256,1,1) block=(512,1,1) lds={LDS_TOTAL}\n"
    if "nosc1" in OPT:
        L.lines = [l.replace(" sc1", "") if ("buffer_load_dwordx4" in l or "v201, v200, s[4:7]" in l) else l for l in L.lines]
    open(out, "w").write(HEADER + launch + '.amdgcn_target "amdgcn-amd-amdhsa--gfx950"\n.text\n' + H.text() + L.text() + C.text() + '.section .rodata,"a"\n' + kernel_desc(NAME, 256))
```

```python
from fz_common import *
R0_BASE = LDS_X + 1024
RSZ = 4800
R0_OFF = 640
R1SZ = 4160
USZ = 4608
import sys
HOOKR = 1 if "--hook1" in sys.argv else 0

def kgen_load(A, ch_sreg):
    A(f"s_lshl_b32 s64, s{ch_sreg}, 8")
    A("v_lshlrev_b32 v2, 2, v0")
    A(f"s_lshl_b32 s65, s{ch_sreg}, 1")
    A("v_mov_b32 v3, s65")
    for i, p in enumerate((P_LOGA, P_AIM, P_CR, P_CI)):
        psrd(A, 4, p, None, 576*256)
        A(f"buffer_load_dword v{4+i}, v2, s[4:7], s64 offen")
    psrd(A, 4, P_LOGDT, None, 1152)
    A("buffer_load_ushort v8, v3, s[4:7], 0 offen")

def kgen(A, st, r0_sreg, part, packed, G=None):
    ARE, AIM, CC = 12, 14, 16
    DT, KSC = 20, 22
    WP = {1: 28, 8: 32, 128: 36, 2: 40, 4: 44, 1024: 28}
    kgen_setup(A, ARE, AIM, CC, DT, KSC, WP, (1024, 8, 128) if part == 1 else (1, 8, 128))
    kgen_body(A, st, r0_sreg, part, packed, CC, KSC, WP, G)

KSTATE = [16, 20, 28, 36] + [64 + 4*i for i in range(8)]
def kstate_io(A, ch_sreg, store):
    A(f"s_mul_i32 s64, s{ch_sreg}, 12288")
    A(f"s_add_u32 s64, s64, {WS_KS}")
    psrd(A, 4, P_WS, "s64", 12288)
    A("v_lshlrev_b32 v1, 4, v0")
    A("s_movk_i32 s65, 4096"); A("s_movk_i32 s66, 8192")
    for i, r in enumerate(KSTATE):
        A(f"buffer_{'store' if store else 'load'}_dwordx4 {vr(r,4)}, v1, s[4:7], {['0','s65','s66'][i>>2]} offen offset:{(i&3)*1024} sc1")

def kgen_setup(A, ARE, AIM, CC, DT, KSC, WP, powers):
    A(f"v_lshlrev_b32 v{DT}, 16, v8")
    A(f"v_lshlrev_b32 v{ARE}, 16, v4");  A(f"v_and_b32 v{ARE+1}, 0xffff0000, v4")
    A(f"v_lshlrev_b32 v{AIM}, 16, v5");  A(f"v_and_b32 v{AIM+1}, 0xffff0000, v5")
    A(f"v_lshlrev_b32 v{CC}, 16, v6");   A(f"v_and_b32 v{CC+2}, 0xffff0000, v6")
    A(f"v_lshlrev_b32 v{CC+1}, 16, v7"); A(f"v_and_b32 v{CC+3}, 0xffff0000, v7")
    A(f"v_mov_b32 v23, {f32(L2E_HI)}")
    A(f"v_mov_b32 v24, {f32(L2E_LO)}")
    ops = []
    for k, r in enumerate((DT, ARE, ARE+1)):
        t = 48 + 3*k
        ops.append([f"v_mul_f32 v{t}, v{r}, v23", f"v_fma_f32 v{t+1}, v{r}, v23, -v{t}", f"v_fmac_f32 v{t+1}, v{r}, v24",
                    f"v_rndne_f32 v{t+2}, v{t}", f"v_sub_f32 v{t}, v{t}, v{t+2}", f"v_add_f32 v{t}, v{t}, v{t+1}",
                    f"v_exp_f32 v{t}, v{t}", f"v_cvt_i32_f32 v{t+2}, v{t+2}", f"v_ldexp_f32 v{r}, v{t}, v{t+2}",
                    f"v_cvt_pk_bf16_f32 v{r}, v{r}, v{r}", f"v_and_b32 v{r}, 0xffff0000, v{r}"])
    red = [f"v_max_f32 v25, abs(v{CC}), abs(v{CC+1})", f"v_max3_f32 v25, v25, abs(v{CC+2}), abs(v{CC+3})"]
    red += [f"v_max_f32_dpp v25, v25, v25 row_ror:{rot} row_mask:0xf bank_mask:0xf" for rot in (8, 4, 2, 1)]
    red += ["v_mov_b32 v26, v25", "v_permlane16_swap_b32 v25, v26", "v_max_f32 v25, v25, v26",
            "v_mov_b32 v26, v25", "v_permlane32_swap_b32 v25, v26"]
    for k, grp in enumerate(zip(*ops)):
        A(red[k]); A(list(grp))
    A("v_max_f32 v25, v25, v26")
    for mu in range(2):
        A(f"v_mul_f32 v{ARE+mu}, v{ARE+mu}, v{DT}")
        A(f"v_mul_f32 v{AIM+mu}, v{AIM+mu}, v{DT}")
        A(f"v_mul_f32 v{ARE+mu}, {f32(-LOG2E)}, v{ARE+mu}")
    A("v_and_b32 v25, 0x7f800000, v25")
    A("v_max_u32 v25, 0x00800000, v25")
    A("v_min_u32 v25, 0x7e800000, v25")
    A("v_sub_u32 v26, 0x7f000000, v25")
    for i in range(4): A(f"v_mul_f32 v{CC+i}, v{CC+i}, v26")
    A(f"v_mul_f32 v{KSC}, v25, v{DT}")
    A(f"v_add_f32 v{KSC}, v{KSC}, v{KSC}")
    A(f"v_mov_b32 v23, {f32(C_HI)}")
    A(f"v_mov_b32 v24, {f32(C_LO)}")
    for p in powers:
        b = WP[p]
        ops = [[], []]
        for mu in range(2):
            t = 48 + 4*mu
            o = ops[mu]
            o.append(f"v_mul_f32 v{t}, {f32(float(p))}, v{ARE+mu}")
            o.append(f"v_mul_f32 v{t+1}, {f32(float(-p if p == 8 else p))}, v{AIM+mu}")
            o.append(f"v_exp_f32 v{t}, v{t}")
            o.append(f"v_mul_f32 v{t+2}, v{t+1}, v23")
            o.append(f"v_fma_f32 v{t+3}, v{t+1}, v23, -v{t+2}")
            o.append(f"v_fmac_f32 v{t+3}, v{t+1}, v24")
            o.append(f"v_fract_f32 v{t+2}, v{t+2}")
            o.append(f"v_add_f32 v{t+2}, v{t+2}, v{t+3}")
            o.append(f"v_cos_f32 v{t+1}, v{t+2}")
            o.append(f"v_sin_f32 v{t+3}, v{t+2}")
            o.append(f"v_mul_f32 v{b+2*mu}, v{t}, v{t+1}")
            o.append(f"v_mul_f32 v{b+2*mu+1}, v{t}, v{t+3}")
        for x, y in zip(*ops): A(x); A(y)

def kgen_body(A, st, r0_sreg, part, packed, CC, KSC, WP, G):
    if G is None: G = 4 if part == 1 else 8
    A("v_lshlrev_b32 v2, 3, v0")
    A(f"v_add_u32 v2, s{st}, v2")
    A("v_and_b32 v4, 15, v0")
    A("v_lshrrev_b32 v5, 4, v0")
    A(f"v_and_b32 v3, {G-1}, v0")
    A("v_mul_u32_u24 v3, 528, v3")
    A("v_lshl_add_u32 v3, v5, 4, v3")
    A(f"v_add_u32 v3, s{st}, v3")
    Z = 48; TT = 52; PK = 56; SS = CC
    OF = 64; BT = [96, 128, 96]; KA = 160
    def cmul(dst, z, w):
        o = []
        for mu in range(2):
            o.append(f"v_pk_mul_f32 {vr(TT+2*mu,2)}, {vr(z+2*mu,2)}, {vr(w+2*mu,2)} op_sel:[0,0] op_sel_hi:[0,1]")
        for mu in range(2):
            o.append(f"v_pk_fma_f32 {vr(dst+2*mu,2)}, {vr(z+2*mu,2)}, {vr(w+2*mu,2)}, {vr(TT+2*mu,2)} op_sel:[1,1,0] op_sel_hi:[1,0,1] neg_lo:[0,1,0]")
        return o
    if part != 1:
        A(cmul(WP[2], WP[1], WP[1])); A(cmul(WP[4], WP[2], WP[2]))
    else:
        A(cmul(SS, SS, WP[1024]))
    for i in range(12): A(f"v_mov_b32 v{KA+i}, 0")
    state = {"row": 0}
    def emit(src, nxt, dst, last=False):
        j = state["row"]
        pk = PK + 2*(j & 1)
        A(f"v_cvt_pk_f16_f32 v{pk}, v{src}, v{src+1}")
        A(f"v_cvt_pk_f16_f32 v{pk+1}, v{src+2}, v{src+3}")
        A(nxt)
        A(f"ds_write_b64 v2, {vr(pk,2)} offset:{528*(j % G)}")
        if j % G == G - 1 or last:
            m = ((1 << G) - 1) << (j - j % G)
            m = m | (m << 16)
            set_exec(A, hex(m), hex(m))
            for ks in range(8): A(f"ds_read_b128 {vr(dst+4*ks,4)}, v3 offset:{64*ks}")
            A("s_mov_b64 exec, -1")
        state["row"] = (j + 1) & 15
    def kmm(T):
        for ks in range(8):
            A(f"v_mfma_f32_16x16x32_f16 {vr(KA+4*T,4)}, {vr(BT[T]+4*ks,4)}, {vr(OF+4*ks,4)}, {vr(KA+4*T,4)}")
    A(f"v_mov_b32 v{Z}, 1.0"); A(f"v_mov_b32 v{Z+1}, 0"); A(f"v_mov_b32 v{Z+2}, 1.0"); A(f"v_mov_b32 v{Z+3}, 0")
    for j in range(16): emit(Z, cmul(Z, Z, WP[8]) if j < 15 else [], OF)
    rowno = 32 if part == 1 else 0
    ilast = 7 if part == 0 else 16
    for i in (range(8) if part == 0 else range(8, 17) if part == 1 else range(17)):
        sub, w = (8, 1) if i < 2 else (4, 2) if i < 4 else (2, 4) if i < 8 else (1, None)
        for e in range(sub):
            src = SS if e == 0 else Z
            if e < sub - 1: nxt = cmul(Z, src, WP[w])
            elif i < ilast: nxt = cmul(SS, SS, WP[128])
            else:           nxt = []
            emit(src, nxt, BT[rowno >> 4], last=(i == 16))
            rowno += 1
            if rowno == 24:
                A("s_waitcnt lgkmcnt(15)"); kmm(0)
    if part == 0:
        A("s_waitcnt lgkmcnt(0)"); kmm(1)
    elif part == 1:
        A("s_waitcnt lgkmcnt(0)"); kmm(2)
    else:
        A("s_waitcnt lgkmcnt(15)"); kmm(1)
        A("s_waitcnt lgkmcnt(0)"); kmm(2)
    A("v_lshlrev_b32 v8, 4, v4")
    A(f"v_sub_u32 v8, s{r0_sreg}, v8")
    A("v_lshlrev_b32 v9, 10, v5")
    A("v_sub_u32 v9, v8, v9")
    A("v_lshlrev_b32 v10, 9, v5")
    A("v_sub_u32 v10, v8, v10")
    A("v_lshlrev_b32 v11, 8, v5")
    A("v_sub_u32 v11, v8, v11")
    A("v_lshrrev_b32 v6, 1, v5")
    A("v_lshlrev_b32 v6, 8, v6")
    A("v_and_b32 v7, 1, v5")
    A("v_lshl_add_u32 v6, v7, 3, v6")
    A("v_sub_u32 v8, v8, v6")
    for i in (range(8) if part == 0 else range(8, 12) if part == 1 else range(12)):
        A(f"v_mul_f32 v{KA+i}, v{KA+i}, v{KSC}")
    if part != 0:
        Q = 64
        for r in range(4):
            A(f"v_cvt_pk_bf16_f32 v{Q+2*r}, v{KA+8+r}, v{KA+8+r}")
            A(f"v_mov_b32 v{Q+2*r+1}, v{Q+2*r}")
        for r in range(4):
            off = 2*(2056 - 1024 - 128*r)
            set_exec(A, -1, 1 if r == 0 else 0)
            A(f"ds_write_b64 v9, {vr(Q+2*r,2)} offset:{off}")
            A(f"ds_write_b32 v9, v{Q+2*r} offset:{off+8}")
            if r == 0: A("s_mov_b32 exec_lo, 0xfffffffe")
            A(f"ds_write_b16 v9, v{Q+2*r} offset:{off+12}")
            A(f"s_mov_b32 exec_lo, {'0x55555554' if r == 0 else '0x55555555'}")
            A(f"ds_write_b16 v9, v{Q+2*r} offset:{off+14}")
            if r == 0: A("s_mov_b32 exec_lo, 0x55555555")
            A(f"ds_write_b16 v9, v{Q+2*r} offset:{off-2}")
        A("s_mov_b64 exec, -1")
    if part == 1: return
    A("v_mov_b32 v6, 0")
    A("v_lshlrev_b32 v7, 2, v0")
    A(f"v_add_u32 v7, s{r0_sreg}, v7")
    A("s_mov_b64 exec, 0x3ff")
    A(f"ds_write_b32 v7, v6 offset:4120")
    A("s_mov_b64 exec, -1")
    Q = 72
    for u in range(2):
        k0, k1 = KA+4+2*u, KA+4+2*u+1
        A(f"v_cvt_pk_bf16_f32 v{Q+4*u+3}, v{k1}, v{k1}")
        A(f"v_cvt_pk_bf16_f32 v{Q+4*u}, v{k1}, v{k0}")
        A(f"v_cvt_pk_bf16_f32 v{Q+4*u+1}, v{k0}, v{k0}")
    set_exec(A, 0, -1)
    for u in range(2):
        off = 2*(2054 - 128*u)
        A(f"ds_write_b32 v10, v{Q+4*u+3} offset:{off}")
        A(f"ds_write_b64 v10, {vr(Q+4*u,2)} offset:{off+4}")
        A(f"ds_write_b32 v10, v{Q+4*u+1} offset:{off+12}")
    A("s_mov_b64 exec, -1")
    Q = 80
    k = [KA+4+r for r in range(4)]
    A(f"v_cvt_pk_bf16_f32 v{Q}, v{k[3]}, v{k[3]}")
    A(f"v_cvt_pk_bf16_f32 v{Q+1}, v{k[2]}, v{k[2]}")
    A(f"v_cvt_pk_bf16_f32 v{Q+2}, v{k[2]}, v{k[1]}")
    A(f"v_cvt_pk_bf16_f32 v{Q+3}, v{k[0]}, v{k[0]}")
    A(f"v_cvt_pk_bf16_f32 v{Q+4}, v{KA+3}, v{KA+2}")
    A(f"v_cvt_pk_bf16_f32 v{Q+5}, v{KA+1}, v{KA}")
    A("s_mov_b64 exec, 0xffffffff")
    off = 2*(2053 - 256)
    A(f"ds_write_b16 v11, v{Q} offset:{off}")
    A(f"ds_write_b32 v11, v{Q+1} offset:{off+2}")
    A(f"ds_write_b64 v11, {vr(Q+2,2)} offset:{off+6}")
    A(f"ds_write_b16 v11, v{Q+3} offset:{off+14}")
    A("s_mov_b64 exec, -1")
    A(f"ds_write_b64 v8, {vr(Q+4,2)} offset:{2*2056}")

def r1_build(A, r0_sreg, r1_sreg, T):
    A("v_lshlrev_b32 v9, 4, v0")
    A(f"v_add_u32 v8, s{r0_sreg}, v9")
    A(f"v_add_u32 v9, s{r1_sreg}, v9")
    for it in range(5):
        if it == 4: A("s_mov_b64 exec, 0xf")
        A(f"ds_read_b128 {vr(T+8*it,4)}, v8 offset:{1024*it}")
        A(f"ds_read_b32 v{T+8*it+4}, v8 offset:{1024*it + 16}")
    A("s_mov_b64 exec, -1")
    A("s_waitcnt lgkmcnt(0)")
    for it in range(5):
        for i in range(4):
            A(f"v_alignbit_b32 v{T+8*it+i}, v{T+8*it+i+1}, v{T+8*it+i}, 16")
        if it == 4: A("s_mov_b64 exec, 0xf")
        A(f"ds_write_b128 v9, {vr(T+8*it,4)} offset:{1024*it}")
    A("s_mov_b64 exec, -1")

def conv(A, r0_sreg, r1_sreg, u_sreg, ch_sreg, hook=None):
    A("v_and_b32 v4, 15, v0")
    A("v_lshrrev_b32 v5, 4, v0")
    A("v_lshlrev_b32 v8, 3, v5")
    A("v_sub_u32 v8, v8, v4")
    A("v_add_u32 v8, 2043, v8")
    A("v_and_b32 v9, 1, v8")
    A("v_sub_u32 v8, v8, v9")
    A("v_lshlrev_b32 v8, 1, v8")
    A(f"s_sub_u32 s64, s{r1_sreg}, s{r0_sreg}")
    A("v_mul_lo_u32 v9, v9, s64")
    A("v_add_u32 v8, v8, v9")
    A(f"v_add_u32 v8, s{r0_sreg}, v8")
    RA = 24
    for a in range(4): A(f"v_subrev_u32 v{RA+a}, {960 + 1024*a}, v8")
    A("v_lshlrev_b32 v28, 5, v4")
    A("v_lshl_add_u32 v29, v5, 3, v28")
    A("v_lshl_add_u32 v28, v5, 4, v28")
    A(f"v_add_u32 v28, s{u_sreg}, v28")
    A(f"v_add_u32 v30, s{u_sreg}, v29")
    YA = 32
    FS = [64, 128]
    def creads(rho):
        b = FS[rho & 1]
        o = []
        for a in range(8):
            off = 128*(1 - (a & 1)) + 16*(7 - rho)
            o.append([f"ds_read2_b32 {vr(b+4*a,2)}, v{RA+(a>>1)} offset0:{off} offset1:{off+1}",
                      f"ds_read2_b32 {vr(b+4*a+2,2)}, v{RA+(a>>1)} offset0:{off+2} offset1:{off+3}"])
            o.append([f"ds_read_b128 {vr(b+32+4*a,4)}, v28 offset:{448 - 64*rho + 512*a}"])
        return o
    for g in creads(0): A(g)
    for i in range(32): A(f"v_mov_b32 v{YA+i}, 0")
    for rho in range(8):
        b = FS[rho & 1]
        m = []
        for a in range(8):
            for be in range(8 - a):
                n = a + be
                m.append(f"v_mfma_f32_16x16x32_bf16 {vr(YA+4*n,4)}, {vr(b+4*a,4)}, {vr(b+32+4*be,4)}, {vr(YA+4*n,4)}")
        A("s_waitcnt lgkmcnt(0)")
        A(interleave(m, creads(rho+1) if rho < 7 else [[f"ds_read_b64 {vr(FS[0]+2*n,2)}, v30 offset:{480 + 512*n}"] for n in range(8)]))
        if rho == HOOKR and hook: hook()
    A(f"s_lshl_b32 s64, s{ch_sreg}, 12")
    A(f"s_add_u32 s64, s64, {WS_AT}")
    psrd(A, 4, P_WS, "s64", 4096)
    A("s_waitcnt lgkmcnt(0)")
    A("v_lshlrev_b32 v21, 16, v215")
    A("s_nop 3")
    T = FS[1]; DSK = 21
    for n in range(8):
        for j in range(2):
            u = FS[0] + 2*n + j; y = YA + 4*n + 2*j; t = T + 8*((2*n+j) & 3)
            A(f"v_cvt_pk_bf16_f32 v{t}, v{y}, v{y+1}")
            A(f"v_lshlrev_b32 v{t+2}, 16, v{u}")
            A(f"v_and_b32 v{t+3}, 0xffff0000, v{u}")
            A(f"v_mul_f32 v{t+2}, v{t+2}, v{DSK}")
            A(f"v_mul_f32 v{t+3}, v{t+3}, v{DSK}")
            A(f"v_and_b32 v{t+1}, 0xffff0000, v{t}")
            A(f"v_cvt_pk_bf16_f32 v{t+2}, v{t+2}, v{t+3}")
            A(f"v_lshlrev_b32 v{t}, 16, v{t}")
            A(f"v_and_b32 v{t+3}, 0xffff0000, v{t+2}")
            A(f"v_lshlrev_b32 v{t+2}, 16, v{t+2}")
            A(f"v_add_f32 v{t+1}, v{t+1}, v{t+3}")
            A(f"v_add_f32 v{t}, v{t}, v{t+2}")
            A(f"v_cvt_pk_bf16_f32 v{u}, v{t}, v{t+1}")
        A.vm(f"buffer_store_dwordx2 {vr(FS[0]+2*n,2)}, v29, s[4:7], 0 offen offset:{512*n} sc1")
```

```python
import sys
from fz_common import *
import fz_ssm as ssm
NAME = "gated_mix__ssm_conv_s4d__mixer_gmlp__prompt_kernel"
NSSM = 144
OPT = set(a[2:] for a in sys.argv if a.startswith("--"))
U_BASE = 81920
R1_BASE = 3*STG + 64
LDS_AT = 3*STG + 19456
LDS_G = LDS_AT + 10240
XH = LDS_X + 1024 + 4*ssm.RSZ
LDS_CNT = XH + 4096
ZL = 64
S_O1, S_O3, S_CW, S_CH = 3, 75, 31, 30
S_R0 = 0
S_UTQ = 0
S_K0 = 1
KHOOK = 3800
PD = 1 if 'pd1' in OPT else 2
NC = 'nocatch' in OPT
LASTB = 16 if NC else 15
KM17 = 2500
QN = 13 if 'qn13' in OPT else 12
QS = QN - 2
QP = 15
TQ = (3, 5, 7) if 'tq3' in OPT else ()
PSLEEP = 8 if 'ps8' in OPT else 2 if 'ps2' in OPT else 4
S_KS, S_KR = 24, 31
KB0, KB1, KB2, KBG = 3000, 2300, 1100, 150
NPRE = 2 if 'pre2' in OPT else 4 if 'pre4' in OPT else 3
KSPLIT = (0.40, 0.50)
VB, VA = 250, 251
n = NAME

def touch(A, p, nbytes, idx_sreg, vdst, lbl):
    if "notouch" in OPT: return
    A(f"s_cmp_ge_u32 s{idx_sreg}, {(nbytes + 8191) // 8192}")
    A(f"s_cbranch_scc1 {lbl}")
    psrd(A, 4, p, None, nbytes)
    A(f"s_lshl_b32 s64, s{idx_sreg}, 13")
    A(f"buffer_load_dword v{vdst}, v1, s[4:7], s64 offen")
    if "touch64" in OPT:
        A(f"buffer_load_dword v{vdst+1}, v1, s[4:7], s64 offen offset:64")
    A.label(lbl)

def header(H):
    kernel_begin(H, n)
    H("s_cmp_ge_u32 s2, 256")
    H(f"s_cbranch_scc1 {n}_exit")
    H("s_load_dwordx16 s[32:47], s[0:1], 0")
    H("s_load_dwordx16 s[48:63], s[0:1], 64")
    H.stamp(0); H.stamp(1, True)
    H("v_lshrrev_b32 v1, 6, v0")
    H("s_and_b32 s3, s2, 7")
    H("s_lshr_b32 s30, s2, 3")
    H(f"v_readfirstlane_b32 s{S_WAVE}, v1")
    H("s_and_b32 s64, s3, 3")
    H("s_lshl_b32 s64, s64, 2")
    H("s_and_b32 s65, s30, 3")
    H(f"s_add_u32 s{S_FT}, s64, s65")
    H("s_lshr_b32 s64, s3, 2")
    H("s_lshr_b32 s66, s30, 2")
    if "ttblk" in OPT:
        H("s_lshl_b32 s64, s64, 3")
    else:
        H("s_lshl_b32 s66, s66, 1")
    H(f"s_add_u32 s{S_TT}, s64, s66")
    if "map3new" not in OPT:
        H("s_lshr_b32 s64, s3, 1")
        H("s_lshl_b32 s64, s64, 3")
        H("s_lshr_b32 s66, s30, 2")
        H(f"s_add_u32 s{S_T64}, s64, s66")
        H("s_and_b32 s64, s3, 1")
        H("s_lshl_b32 s64, s64, 2")
        H(f"s_add_u32 s{S_J}, s64, s65")
    else:
        H("s_lshl_b32 s64, s3, 2")
        H("s_lshr_b32 s65, s30, 3")
        H(f"s_add_u32 s{S_T64}, s64, s65")
        H(f"s_and_b32 s{S_J}, s30, 7")
    H(f"s_and_b32 s{S_W}, s{S_WAVE}, 3")
    H("v_and_b32 v0, 63, v0")
    H(f"s_cmp_ge_u32 s{S_WAVE}, 4")
    H(f"s_cbranch_scc1 {n}_L")
    H("s_getpc_b64 s[64:65]")
    H.label(f"{n}_pc")
    H(f"s_sub_u32 s4, s64, {n}_pc-{n}")
    H("s_subb_u32 s5, s65, 0")
    H(f"s_mov_b32 s6, {n}_end-{n}")
    H("s_mov_b32 s7, 0x20000")
    H("s_lshl_b32 s66, s30, 2")
    H(f"s_add_u32 s66, s66, s{S_W}")
    H("s_lshl_b32 s66, s66, 10")
    H("v_lshlrev_b32 v1, 4, v0")
    H("buffer_load_dwordx4 v[240:243], v1, s[4:7], s66 offen")
    late_ids(H)
    H("s_waitcnt lgkmcnt(0)")
    H(f"s_sub_u32 s67, s{S_CH}, 576")
    H(f"s_cmp_ge_u32 s{S_FT}, 9")
    H(f"s_cselect_b32 s67, s67, s{S_CH}")
    ssm.kgen_load(H, 67)
    H(f"s_branch {n}_C")
    H.label(f"{n}_L")

def late_ids(A):
    A(f"s_lshl_b32 s64, s{S_TT}, 4")
    A(f"s_add_u32 s{S_O1}, s64, s{S_FT}")
    A(f"s_lshl_b32 s64, s{S_T64}, 3")
    A(f"s_add_u32 s{S_O3}, s64, s{S_J}")
    A(f"s_lshl_b32 s{S_CW}, s2, 2")
    A(f"s_add_u32 s{S_CW}, s{S_CW}, s{S_W}")
    A(f"s_lshl_b32 s64, s{S_FT}, 4")
    A(f"s_add_u32 s64, s64, s{S_TT}")
    A(f"s_lshl_b32 s64, s64, 2")
    A(f"s_add_u32 s{S_CH}, s64, s{S_W}")

def gen_L(A, diag):
    A.vshift = 190
    rowperm_voff(A, 2, 1152)
    A("v_lshrrev_b32 v6, 4, v0")
    A(f"s_and_b32 s64, s{S_W}, 1")
    A("s_lshl_b32 s65, s64, 2")
    A("v_add_u32 v7, s65, v6")
    A("v_and_b32 v8, 15, v0")
    A("v_lshlrev_b32 v7, 1, v7")
    A("v_xor_b32 v8, v8, v7")
    A("s_lshl_b32 s65, s64, 3")
    A(f"s_lshr_b32 s66, s{S_W}, 1")
    A("s_lshl_b32 s66, s66, 2")
    A("s_add_u32 s65, s65, s66")
    A("v_add_u32 v6, s65, v6")
    A("v_mul_u32_u24 v6, 9216, v6")
    A("v_lshl_add_u32 v3, v8, 4, v6")
    A(f"s_lshl_b32 s65, s{S_FT}, 8")
    A("v_add_u32 v3, s65, v3")
    A("v_lshrrev_b32 v6, 1, v0")
    A("v_and_b32 v7, 3, v6")
    A("v_and_b32 v8, 4, v6")
    A("v_lshl_or_b32 v7, v8, 1, v7")
    A("v_and_b32 v8, 8, v6")
    A("v_lshrrev_b32 v8, 1, v8")
    A("v_or_b32 v7, v7, v8")
    A(f"s_lshl_b32 s65, s{S_W}, 4")
    A("v_add_u32 v7, s65, v7")
    A("v_mul_u32_u24 v7, 9216, v7")
    A("v_and_b32 v8, 1, v0")
    A("v_lshl_add_u32 v4, v8, 4, v7")
    A(f"s_lshl_b32 s64, s{S_FT}, 5")
    A("s_add_u32 s64, s64, 4096")
    A("v_add_u32 v4, s64, v4")
    A(f"s_lshl_b32 s68, s{S_W}, 10")
    A(f"s_lshl_b32 s69, s{S_W}, 9")
    A("s_add_u32 s69, s69, 16384")
    A(f"s_mul_i32 s64, s{S_TT}, {128*1152}")
    A("s_waitcnt lgkmcnt(0)")
    psrd(A, 8, P_U, "s64", 128*1152)
    psrd(A, 12, P_WIN, None, 576*9216)
    ready = {}
    A(f"s_and_b32 s74, s{S_TT}, 7" if "ttblk" in OPT else f"s_lshr_b32 s74, s{S_TT}, 1")
    A(f"s_and_b32 s64, s{S_FT}, 3")
    A("s_lshl_b32 s64, s64, 1")
    A("s_add_u32 s74, s74, s64")
    A("s_cmp_ge_u32 s74, 9")
    A("s_cselect_b32 s64, 9, 0")
    A("s_sub_u32 s74, s74, s64")
    if "norot" in OPT: A("s_mov_b32 s74, 0")
    A(f"s_sub_u32 s{S_UTQ}, s{S_FT}, s74")
    A(f"s_cmp_lt_i32 s{S_UTQ}, 0")
    A("s_cselect_b32 s64, 9, 0")
    A(f"s_add_u32 s{S_UTQ}, s{S_UTQ}, s64")
    A(f"s_cmp_ge_u32 s{S_FT}, 9")
    A(f"s_cselect_b32 s{S_UTQ}, 99, s{S_UTQ}")
    def dma_g1(q):
        base = (q % S) * STG
        A(f"s_mul_i32 s72, s74, {64*9216}")
        A("s_lshl_b32 s73, s74, 7")
        if q < 9: A("s_add_u32 s72, s72, 4608")
        for i in range(4):
            A(f"s_add_u32 m0, s68, {base + i*4096}")
            A(f"s_add_u32 s70, s72, {i*16*9216}")
            A.vm("buffer_load_dwordx4 v3, s[12:15], s70 offen lds")
            A(f"s_add_u32 m0, s68, {base + 18432 + i*4096}")
            A(f"s_add_u32 s71, s73, {i*32*1152}")
            A.vm("buffer_load_dwordx4 v2, s[8:11], s71 offen lds")
        A(f"s_add_u32 m0, s69, {base}")
        A("s_mov_b64 exec, 0xffffffff")
        ready[q] = A.vm("buffer_load_dwordx4 v4, s[12:15], s72 offen lds")
        A("s_mov_b64 exec, -1")
        A("s_add_u32 s74, s74, 1")
        A("s_cmp_eq_u32 s74, 9")
        A("s_cselect_b32 s74, 0, s74")
    def kst(cnt, dst):
        A(f"s_add_u32 s{dst}, s{cnt}, s{S_FT}")
        A(f"s_and_b32 s{dst}, s{dst}, 3")
        A(f"s_andn2_b32 s64, s{cnt}, 3")
        A(f"s_or_b32 s{dst}, s{dst}, s64")
        A(f"s_cmp_lt_u32 s{cnt}, {0 if 'noquad' in OPT else 28}")
        A(f"s_cselect_b32 s{dst}, s{dst}, s{cnt}")
        A(f"s_add_u32 s{dst}, s{dst}, s{S_K0}")
        A(f"s_and_b32 s{dst}, s{dst}, 31")
        A(f"s_add_u32 s{cnt}, s{cnt}, 1")
    def dma_g2_B(sb):
        kst(72, 66)
        A("s_lshl_b32 s66, s66, 7")
        if "bhot" in OPT: A("s_and_b32 s66, s66, 0x180")
        for i in range(4):
            if isinstance(sb, str):
                A(f"s_add_u32 m0, s68, {sb}"); A(f"s_add_u32 m0, m0, {18432 + i*4096}")
            else:
                A(f"s_add_u32 m0, s68, {sb + 18432 + i*4096}")
            A(f"s_add_u32 s70, s66, {i*131072}")
            r = A.vm(f"buffer_load_dwordx4 v{VB}, s[16:19], s70 offen lds")
        return r
    def dma_g2_A(sb):
        kst(73, 66)
        if "ahot" in OPT: A("s_and_b32 s66, s66, 3")
        A("s_mul_i32 s66, s66, 18432")
        A(f"s_add_u32 m0, s67, {sb}")
        A("s_add_u32 s70, s66, s67")
        for i in range(4):
            A.vm(f"buffer_load_dwordx4 v{VA}, s[20:23], s70 offen offset:{1024*i} sc1 lds")
        A(f"s_add_u32 m0, s69, {sb}")
        A("s_add_u32 s70, s66, s69")
        A("s_mov_b64 exec, 0xffffffff")
        r = A.vm(f"buffer_load_dwordx4 v{VA}, s[20:23], s70 offen sc1 lds")
        A("s_mov_b64 exec, -1")
        return r
    sl = lambda q: (q % S) * STG

    if "lstamp" in OPT: A.stamp(9)
    for q in range(NPRE):
        dma_g1(q)
        if "lstamp" in OPT and q == 0: A.stamp(10)
    if "lstamp" in OPT:
        A.wait_vm(ready[0]); A.stamp(11); A.used = {9, 10, 11}
    issued = NPRE
    A.stamp(2)
    late_ids(A)
    A.wait_vm(ready[0])
    A.bar("B0")
    A.stamp(3)
    if issued < 3: dma_g1(2); issued = 3
    rowperm_voff(A, VB, 4096)
    A(f"v_lshlrev_b32 v{VA}, 4, v0")
    A(f"s_lshl_b32 s64, s{S_TT}, 19")
    psrd(A, 16, P_WSP, "s64", 128*4096)
    A(f"s_mul_i32 s64, s{S_FT}, {32*18432}")
    A(f"s_add_u32 s64, s64, {WS_Z2F}")
    psrd(A, 20, P_WS, "s64", 32*18432)
    A(f"s_lshl_b32 s67, s{S_W}, 12")
    A("v_and_b32 v5, 15, v0")
    A("v_lshrrev_b32 v6, 4, v0")
    A("v_lshrrev_b32 v7, 2, v5")
    A("v_lshl_add_u32 v8, v6, 2, v7")
    A("v_lshrrev_b32 v9, 1, v8")
    A(f"s_and_b32 s64, s{S_W}, 1")
    A("s_lshl_b32 s64, s64, 2")
    A("v_xor_b32 v9, s64, v9")
    A("v_lshlrev_b32 v9, 4, v9")
    A("v_lshl_add_u32 v9, v8, 7, v9")
    A("v_and_b32 v10, 1, v0")
    A("v_lshl_add_u32 v9, v10, 3, v9")
    A("v_bfe_u32 v10, v0, 1, 1")
    A("v_lshl_add_u32 v9, v10, 12, v9")
    A(f"s_and_b32 s64, s{S_UTQ}, 3")
    A(f"s_mul_i32 s64, s64, {STG}")
    A(f"s_lshr_b32 s65, s{S_W}, 1")
    A("s_lshl_b32 s65, s65, 13")
    A("s_add_u32 s64, s64, s65")
    A("s_add_u32 s64, s64, 18432")
    A("v_add_u32 v13, s64, v9")
    A("v_and_b32 v14, 7, v0")
    A("v_lshlrev_b32 v14, 12, v14")
    A("v_lshl_add_u32 v14, v6, 4, v14")
    A("v_bfe_u32 v10, v0, 3, 1")
    A("v_lshl_add_u32 v14, v10, 6, v14")
    def ut_job(q):
        if "nout" in OPT: return
        A(f"s_cmp_lg_u32 s{S_UTQ}, {q}")
        A(f"s_cbranch_scc1 {n}_Lut{q}")
        A(f"s_getpc_b64 s[64:65]")
        A.label(f"{n}_Lpc{q}")
        A(f"s_add_u32 s64, s64, {n}_Lutf-{n}_Lpc{q}")
        A("s_addc_u32 s65, s65, 0")
        A("s_swappc_b64 s[70:71], s[64:65]")
        A.label(f"{n}_Lut{q}")
    def wsp_touch(i, nparts=4):
        if "touch" not in OPT: return
        psrd(A, 4, P_WSP, None, 2048*4096)
        A("s_lshl_b32 s64, s2, 2")
        A(f"s_add_u32 s64, s64, s{S_W}")
        A("s_lshl_b32 s64, s64, 13")
        A(f"s_add_u32 s64, s64, {i*8192//nparts}")
        A("v_lshlrev_b32 v5, 7, v0")
        if nparts > 1: A(f"s_mov_b64 exec, {hex((1 << (64//nparts)) - 1)}")
        A.vm("buffer_load_dword v57, v5, s[4:7], s64 offen")
        A("s_mov_b64 exec, -1")
    ut_job(0)
    for q in range(18):
        if q == 16 and not NC: continue
        if q + 1 < 18: A.wait_vm(ready[17 if q == LASTB else q+1])
        A.bar(f"M{q}")
        if "mstamp" in OPT and "m2" not in OPT and q < 8: A.stamp(4 + q)
        if "m2" in OPT and q == 7: A.used = {8}
        if "m2" in OPT and q >= 9 and q != 13: A.used.discard(8); A.stamp(4 + q - 9 - (q > 13))
        if q == QS: ln_stats_issue(A)
        k = 0
        while issued < 18 and issued <= q + S and k < 2:
            dma_g1(issued); issued += 1; k += 1
        if q + 1 < 9: ut_job(q + 1)
        if q == 0:
            A(f"s_cmp_lg_u32 s{S_W}, 0")
            A(f"s_cbranch_scc1 {n}_Lns0")
            A("s_and_b32 s66, s2, 15")
            A("s_lshl_b32 s66, s66, 2")
            A("s_add_u32 s66, s66, 64")
            A("s_mov_b32 s65, 1")
            A(f"s_atomic_add s65, s[{P_DBG}:{P_DBG+1}], s66")
            A.label(f"{n}_Lns0")
        if "t8" in OPT and q < 8: wsp_touch(q, 8)
        if "t16" in OPT and q < 8: wsp_touch(q, 16)
        if q == 7:
            wot_issue(A)
            if "tearly" in OPT:
                psrd(A, 4, P_DBG, None, 256)
                A("v_and_b32 v5, 15, v0")
                A("v_lshlrev_b32 v5, 2, v5")
                r_init = A.vm("buffer_load_dword v56, v5, s[4:7], 0 offen offset:64 sc1")
                wsp_touch(0, 1)
        if q == 8 and "tearly" in OPT:
            A.wait_vm(r_init)
            A("v_cmp_le_u32 vcc, 16, v56")
            ut_store(A)
            A("s_cmp_eq_u32 vcc_lo, -1")
            A(f"s_cbranch_scc1 {n}_Li_ok")
            psrd(A, 4, P_DBG, None, 256)
            init_wait(A, f"{n}_Li", 5, 4)
            wot_unit(A, 0)
        if q == 8 and "tearly" not in OPT:
            psrd(A, 4, P_DBG, None, 256)
            init_wait(A, f"{n}_Li", 5, 4)
            ut_store(A)
            wot_unit(A, 0)
            wsp_touch(0, 1)
        if q == 8:
            A.stamp(8)
        if q == QS + 1:
            A.stamp(4)
            ln_stats(A)
            A.stamp(5)
        if q == LASTB - 2:
            A("s_mov_b32 s72, -2")
            A("s_mov_b32 s73, 0")
            A(f"s_lshl_b32 s{S_K0}, s{S_TT}, 1")
            A(f"s_add_u32 s{S_K0}, s{S_K0}, 2")
            assert issued == 18
        if q == 14: dma_g2_B(sl(18))
        if q == QP:
            psrd(A, 4, P_WS, WS_MB, 4*MBSZ)
            A(f"s_cmp_lg_u32 s{S_W}, 0")
            A(f"s_cbranch_scc1 {n}_Lnz")
            mb_push(A, MB_Z2, 16, ["v_lshlrev_b32 v10, 4, v0", f"v_add_u32 v10, s{S_FT}, v10"], S_TT, 10, 4)
            A.label(f"{n}_Lnz")
            A.stamp(6)
        if q == 15:
            psrd(A, 8, P_WS, WS_MB, 4*MBSZ)
            dma_g2_B(sl(19))
            wot_unit(A, 1)
            wg_wait(A, f"{n}_Lgz", S_W, LDS_CNT + 16, 10, lambda: mb_wait(A, f"{n}_Lz2", MB_Z2, S_O1, 16, 12, 8, sleep=PSLEEP, depth=PD))
            A("s_waitcnt vmcnt(0)")
            A.stamp(7)
    dma_g2_A(sl(20)); ready[20] = dma_g2_B(sl(20))
    A("s_waitcnt lgkmcnt(0)")
    A.bar("G2S")
    A(f"s_cmp_lg_u32 s{S_W}, 0")
    A(f"s_cbranch_scc1 {n}_Lnw")
    A(f"s_sub_u32 s65, s{S_CH}, 576")
    A("s_lshr_b32 s65, s65, 2")
    A("s_cmp_ge_u32 s65, 72")
    A(f"s_cbranch_scc1 {n}_Lnw")
    A("s_mul_i32 s66, s65, 57")
    A("s_lshr_b32 s66, s66, 9")
    A("s_mul_i32 s70, s66, 9")
    A("s_sub_u32 s70, s65, s70")
    mb_push(A, MB_WF, 32, ["v_lshlrev_b32 v20, 3, v0", "v_add_u32 v20, s66, v20"], 70, 20, 8)
    A.label(f"{n}_Lnw")
    dma_g2_A(sl(21)); ready[21] = dma_g2_B(sl(21))
    A.bar("N18")
    dma_g2_B(sl(22)); ready[22] = dma_g2_A(sl(22))
    A.wait_vm(ready[20]); A.bar("N19")
    dma_g2_B(sl(23)); ready[23] = dma_g2_A(sl(23))
    A.wait_vm(ready[21]); A.bar("N20")
    dma_g2_B(sl(24)); ready[24] = dma_g2_A(sl(24))
    A(f"s_mov_b32 s74, {sl(25)}")
    def service():
        A("s_waitcnt vmcnt(18)")
        A("s_barrier")
        dma_g2_B("s74"); dma_g2_A("s74")
        A(f"s_add_u32 s74, s74, {STG}")
        A(f"s_cmp_eq_u32 s74, {S*STG}")
        A("s_cselect_b32 s74, 0, s74")
        A("s_sub_u32 s71, s71, 1")
    def loop(lbl, cnt):
        A(f"s_mov_b32 s71, {cnt}")
        A.label(lbl)
        service()
        A("s_cmp_lg_u32 s71, 0")
        A(f"s_cbranch_scc1 {lbl}")
    loop(f"{n}_Lg2", 12)
    A(f"s_lshl_b32 s64, s{S_O3}, 8")
    A(f"s_add_u32 s64, s64, {MB_WF - WS_MB}")
    A("v_min_u32 v10, 8, v0")
    A("v_lshlrev_b32 v10, 2, v10")
    A("buffer_load_dword v11, v10, s[8:11], s64 offen sc1")
    A(f"s_lshl_b32 s64, s{S_O1}, 8")
    A(f"s_add_u32 s64, s64, {MB_Z2 - WS_MB}")
    A("v_min_u32 v12, 19, v0")
    A("v_lshlrev_b32 v12, 2, v12")
    A("buffer_load_dword v13, v12, s[8:11], s64 offen sc1")
    loop(f"{n}_Lg2b", TPOS - 12)
    A("v_cmp_eq_u32 vcc, 0, v11")
    A("s_nop 0")
    A("s_cmp_eq_u64 vcc, 0")
    A(f"s_cbranch_scc1 {n}_Lw_ok")
    mb_wait(A, f"{n}_Lw", MB_WF, S_O3, 9, 10, 8)
    A(f"s_cmp_ge_u32 s{S_FT}, 9")
    A(f"s_cbranch_scc1 {n}_Lnkb")
    A("v_cmp_eq_u32 vcc, 0, v13")
    A("s_nop 0")
    A("s_cmp_eq_u64 vcc, 0")
    A(f"s_cbranch_scc1 {n}_Lkb_ok")
    mb_wait(A, f"{n}_Lkb", MB_Z2, S_O1, 20, 10, 8)
    A(f"s_mul_i32 s64, s{S_CH}, 2304")
    A(f"s_add_u32 s64, s64, {WS_KB}")
    psrd(A, 4, P_WS, "s64", 2304)
    A(f"s_mul_i32 s65, s{S_W}, {ssm.RSZ}")
    A(f"s_add_u32 m0, s65, {ssm.R0_BASE + ssm.R0_OFF}")
    A("v_lshlrev_b32 v10, 2, v0")
    for i in range(2): A(f"buffer_load_dwordx4 v{VA}, s[4:7], 0 offen offset:{1024*i} sc1 lds")
    A("s_mov_b64 exec, 0x7f")
    A("buffer_load_dword v10, s[4:7], 0 offen offset:2048 sc1 lds")
    A("s_mov_b64 exec, -1")
    A.label(f"{n}_Lnkb")
    if "touchA" in OPT:
        nsh = 4 if "map3new" in OPT else 8
        per = 2592 // (4*nsh)
        A(f"s_mul_i32 s64, s{S_J}, {72*4608}")
        A(f"s_add_u32 s64, s64, {WS_WOT}")
        psrd(A, 4, P_WS, "s64", 72*4608)
        A(f"s_and_b32 s64, s{S_T64}, {nsh-1}")
        A("s_lshl_b32 s64, s64, 2")
        A(f"s_add_u32 s64, s64, s{S_W}")
        A(f"s_mul_i32 s64, s64, {per*128}")
        A("v_lshlrev_b32 v10, 7, v0")
        done = 0
        while done < per:
            st = min(done, per - 64)
            A(f"s_add_u32 s65, s64, {st*128}")
            A("buffer_load_dword v11, v10, s[4:7], s65 offen sc1")
            done = st + 64
    loop(f"{n}_Lg2c", 25 - TPOS)
    for q in range(21, 46): A.bars.append(f"N{q}")
    A("s_waitcnt vmcnt(18)"); A.bar("N46")
    g3_main(A)
    if diag:
        A.stamp(12, True)
        stamp_dump(A, f"{n}_Ld", 1)
    A("s_endpgm")
    A.vshift = 190
    A.label(f"{n}_Lutf")
    for cb in range(4):
        A(f"v_xor_b32 v15, {16*cb}, v13")
        for a in range(2):
            A(f"ds_read_b64_tr_b16 {vr(UR+4*cb+2*a,2)}, v15 offset:{a*2048}")
    A("s_waitcnt lgkmcnt(0)")
    A("s_setpc_b64 s[70:71]")

UR = 160
def ut_store(A):
    A(f"s_cmp_ge_u32 s{S_FT}, 9")
    A(f"s_cbranch_scc1 {n}_Lus")
    A(f"s_lshl_b32 s64, s{S_FT}, 18")
    A(f"s_lshl_b32 s65, s{S_TT}, 8")
    A("s_add_u32 s64, s64, s65")
    A(f"s_lshr_b32 s65, s{S_W}, 1")
    A("s_lshl_b32 s65, s65, 7")
    A("s_add_u32 s64, s64, s65")
    A(f"s_and_b32 s65, s{S_W}, 1")
    A("s_lshl_b32 s65, s65, 17")
    A("s_add_u32 s64, s64, s65")
    A(f"s_add_u32 s64, s64, {WS_UT}")
    psrd(A, 4, P_WS, "s64", 31*4096 + 128)
    for cb in range(4):
        A(f"s_mov_b32 s64, {cb*32768}")
        A(f"buffer_store_dwordx4 {vr(UR+4*cb,4)}, v14, s[4:7], s64 offen sc1")
    A.label(f"{n}_Lus")

def ln_loads(A, T=16):
    for j in range(8):
        A(f"buffer_load_dwordx2 {vr(T+2*j,2)}, v{7 if j < 4 else 9}, s[4:7], s0 offen offset:{(j&3)*1024} sc1")

def ln_stats_issue(A):
    A(f"s_lshl_b32 s65, s{S_TT}, 14")
    A(f"s_add_u32 s65, s65, {WS_ST}")
    psrd(A, 4, P_WS, "s65", 16384)
    A("v_and_b32 v6, 31, v0")
    A("v_lshlrev_b32 v6, 3, v6")
    A("v_lshrrev_b32 v7, 5, v0")
    A("v_lshl_add_u32 v7, v7, 13, v6")
    A(f"s_lshl_b32 s0, s{S_W}, 8")
    A("v_add_u32 v9, 4096, v7")
    ln_loads(A); A.nvm += 8

def ln_stats(A):
    T = 16
    A("s_mov_b32 s65, 0")
    A("s_waitcnt vmcnt(18)")
    A(f"s_branch {n}_Lst_chk")
    A.label(f"{n}_Lst_poll")
    ln_loads(A)
    A("s_waitcnt vmcnt(0)")
    A.label(f"{n}_Lst_chk")
    A(f"v_max_u32 v8, v{T}, v{T+1}")
    for j in range(1, 8): A(f"v_max3_u32 v8, v8, v{T+2*j}, v{T+2*j+1}")
    A("v_cmp_eq_u32 vcc, -1, v8")
    A("s_add_u32 s65, s65, 1")
    A("s_cmp_eq_u64 vcc, 0")
    A(f"s_cbranch_scc1 {n}_Lst_ok")
    A("s_sleep 4")
    A("s_cmp_lt_u32 s65, 50000")
    A(f"s_cbranch_scc1 {n}_Lst_poll")
    A.label(f"{n}_Lst_ok")
    A(f"s_add_u32 s66, s0, {LDS_X}")
    A("v_add_u32 v6, s66, v6")
    for stp in (4, 2, 1):
        for j in range(stp):
            A(f"v_add_f32 v{T+2*j}, v{T+2*j}, v{T+2*(j+stp)}")
            A(f"v_add_f32 v{T+2*j+1}, v{T+2*j+1}, v{T+2*(j+stp)+1}")
    A(f"v_mov_b32 v{T+2}, v{T}")
    A(f"v_mov_b32 v{T+3}, v{T+1}")
    A("s_nop 1")
    A(f"v_permlane32_swap_b32 v{T}, v{T+2}")
    A(f"v_permlane32_swap_b32 v{T+1}, v{T+3}")
    A("s_nop 1")
    A(f"v_add_f32 v{T}, v{T}, v{T+2}")
    A(f"v_add_f32 v{T+1}, v{T+1}, v{T+3}")
    A(f"v_mul_f32 v{T}, {f32(1/2304)}, v{T}")
    A(f"v_mul_f32 v{T+1}, {f32(1/2304)}, v{T+1}")
    A(f"v_fma_f32 v{T+1}, -v{T}, v{T}, v{T+1}")
    A(f"v_max_f32 v{T+1}, 0, v{T+1}")
    bf16_round(A, T); bf16_round(A, T+1)
    A(f"v_add_f32 v{T+1}, {f32(1e-5)}, v{T+1}")
    bf16_round(A, T+1)
    A(f"v_sqrt_f32 v{T+1}, v{T+1}")
    A("s_nop 0")
    bf16_round(A, T+1)
    A(f"v_rcp_f32 v{T+2}, v{T+1}")
    A("s_nop 0")
    A(f"v_mul_f32 v{T+3}, v{T}, v{T+2}")
    A(f"v_sub_f32 v{T+3}, 0, v{T+3}")
    A(f"ds_write_b64 v6, {vr(T+2,2)}")
    A("s_waitcnt lgkmcnt(0)")

GX, GW = 64, 100
def gate_issue(A):
    A(f"s_cmp_ge_u32 s{S_FT}, 8")
    A(f"s_cbranch_scc1 {n}_gi")
    psrd(A, 4, P_U, None, 2048*1152)
    A(f"s_lshl_b32 s64, s{S_TT}, 3")
    A(f"s_add_u32 s64, s64, s{S_FT}")
    A("s_lshl_b32 s64, s64, 2")
    A(f"s_add_u32 s64, s64, s{S_W}")
    A("s_lshl_b32 s64, s64, 2")
    A("v_lshrrev_b32 v45, 4, v0")
    A("v_add_u32 v45, s64, v45")
    A("v_and_b32 v6, 15, v0")
    A("v_lshlrev_b32 v6, 3, v6")
    A("v_mul_u32_u24 v7, 1152, v45")
    A("v_add_u32 v7, v7, v6")
    A(f"s_movk_i32 s64, {4*1152}")
    for rd in range(1):
        for i in range(9): A(f"buffer_load_dwordx2 {vr(GX+18*rd+2*i,2)}, v7, s[4:7], {'s64' if rd else '0'} offen offset:{128*i}")
    psrd(A, 4, P_GATE, None, 1152)
    for i in range(9): A(f"buffer_load_dwordx2 {vr(GW+2*i,2)}, v6, s[4:7], 0 offen offset:{128*i}")
    A.label(f"{n}_gi")

def gate_job(A, rd=0):
    A(f"s_cmp_ge_u32 s{S_FT}, 8")
    A(f"s_cbranch_scc1 {n}_gj{rd}")
    A("v_mov_b32 v8, 0")
    A("s_waitcnt vmcnt(0)")
    for i in range(18):
        t = 36 + 4*(i & 1)
        A(f"v_lshlrev_b32 v{t}, 16, v{GX+18*rd+i}")
        A(f"v_and_b32 v{t+1}, 0xffff0000, v{GX+18*rd+i}")
        A(f"v_lshlrev_b32 v{t+2}, 16, v{GW+i}")
        A(f"v_and_b32 v{t+3}, 0xffff0000, v{GW+i}")
        A(f"v_mul_f32 v{t}, v{t}, v{t+2}")
        A(f"v_mul_f32 v{t+1}, v{t+1}, v{t+3}")
        A(f"v_cvt_pk_bf16_f32 v{t}, v{t}, v{t+1}")
        A(f"v_and_b32 v{t+1}, 0xffff0000, v{t}")
        A(f"v_lshlrev_b32 v{t}, 16, v{t}")
        A(f"v_add_f32 v8, v8, v{t+1}")
        A(f"v_add_f32 v8, v8, v{t}")
    for rot in (8, 4, 2, 1):
        A("s_nop 1")
        A(f"v_add_f32_dpp v8, v8, v8 row_ror:{rot} row_mask:0xf bank_mask:0xf")
    bf16_round(A, 8)
    A(f"v_mul_f32 v8, {f32(-LOG2E)}, v8")
    A("v_exp_f32 v8, v8")
    A("s_nop 0")
    A("v_add_f32 v8, 1.0, v8")
    A("v_rcp_f32 v8, v8")
    A("s_nop 0")
    bf16_round(A, 8)
    A("v_sub_f32 v9, 1.0, v8")
    bf16_round(A, 9)
    psrd(A, 4, P_WS, WS_G, 2048*8)
    A("v_lshlrev_b32 v5, 3, v45")
    set_exec(A, 0x00010001, 0x00010001)
    A(f"buffer_store_dwordx2 v[8:9], v5, s[4:7], 0 offen offset:{32*rd} sc1")
    A("s_mov_b64 exec, -1")
    A.label(f"{n}_gj{rd}")

def wot_issue(A):
    for i in range(5):
        A(f"v_add_u32 v8, {64*i}, v0")
        A("v_mul_u32_u24 v9, 7282, v8")
        A("v_lshrrev_b32 v9, 16, v9")
        A("v_mul_u32_u24 v10, 9, v9")
        A("v_sub_u32 v10, v8, v10")
        A("v_mul_u32_u24 v9, 1152, v9")
        A(f"v_lshl_add_u32 v{40+i}, v10, 4, v9")
    A(f"s_sub_u32 s65, s{S_CH}, 576")
    A("s_lshr_b32 s1, s65, 2")
    A("s_cmp_ge_u32 s1, 72")
    A(f"s_cbranch_scc1 {n}_sj1")
    A("s_mul_i32 s64, s1, 57")
    A("s_lshr_b32 s64, s64, 9")
    A("s_mul_i32 s66, s64, 9")
    A("s_sub_u32 s66, s1, s66")
    A("s_lshl_b32 s66, s66, 2")
    A(f"s_add_u32 s66, s66, s{S_W}")
    A("s_lshl_b32 s66, s66, 1")
    A("s_mul_i32 s24, s64, 72")
    A("s_add_u32 s24, s24, s66")
    A(f"s_mul_i32 s0, s66, {32*1152}")
    A("s_mul_i32 s64, s64, 144")
    A("s_add_u32 s0, s0, s64")
    A(f"s_mul_i32 s31, s{S_W}, {ssm.RSZ}")
    A(f"s_add_u32 s31, s31, {LDS_X + 1024}")
    psrd(A, 4, P_WOUT, None, 2304*1152)
    wot_dma(A)
    A.label(f"{n}_sj1")

def wot_dma(A):
    for i in range(5):
        A(f"s_add_u32 m0, s31, {1024*i}")
        A("s_mov_b64 exec, 0xffffffff" if i == 4 else "s_nop 0")
        A(f"buffer_load_dwordx4 v{40+i}, s[4:7], s0 offen lds")
    A("s_mov_b64 exec, -1")

def wot_unit(A, u):
    A(f"s_sub_u32 s65, s{S_CH}, 576")
    A("s_cmp_ge_u32 s65, 288")
    A(f"s_cbranch_scc1 {n}_sj2{u}")
    A("v_lshrrev_b32 v5, 2, v0")
    A("v_mul_u32_u24 v5, 144, v5")
    A("v_and_b32 v6, 3, v0")
    A("v_lshl_add_u32 v7, v6, 4, v5")
    A("v_add_u32 v7, s31, v7")
    A("v_lshl_add_u32 v8, v6, 3, v5")
    A("v_add_u32 v8, s31, v8")
    A("v_lshlrev_b32 v9, 4, v0")
    A("v_and_b32 v10, 7, v0")
    A("v_lshrrev_b32 v13, 4, v0")
    A("v_lshl_add_u32 v10, v13, 3, v10")
    A("v_lshlrev_b32 v10, 4, v10")
    A("v_add_u32 v10, 4096, v10")
    for q in range(5):
        for h in range(2):
            if q < 4: A(f"ds_read_b64_tr_b16 {vr(16+4*q+2*h,2)}, v7 offset:{h*16*144 + 64*(q>>1) + 8*(q&1)}")
            else:     A(f"ds_read_b64_tr_b16 {vr(16+4*q+2*h,2)}, v8 offset:{h*16*144 + 128}")
    A("s_waitcnt lgkmcnt(0)")
    if u == 0:
        psrd(A, 4, P_WOUT, None, 2304*1152)
        A(f"s_add_u32 s0, s0, {32*1152}")
        wot_dma(A)
    A("s_mul_i32 s64, s24, 4608")
    A(f"s_add_u32 s64, s64, {WS_WOT + u*4608}")
    psrd(A, 4, P_WS, "s64", 4608)
    for q in range(4):
        A(f"buffer_store_dwordx4 {vr(16+4*q,4)}, v9, s[4:7], 0 offen offset:{1024*q} sc1")
    set_exec(A, 0x00ff00ff, 0x00ff00ff)
    A(f"buffer_store_dwordx4 {vr(32,4)}, v10, s[4:7], 0 offen sc1")
    A("s_mov_b64 exec, -1")
    A.label(f"{n}_sj2{u}")

def sinit_wait(A, lbl):
    A("s_mov_b32 s64, 0")
    A.label(f"{lbl}_poll")
    A(f"s_load_dwordx4 s[4:7], s[{P_DBG}:{P_DBG+1}], 0 glc")
    A("s_waitcnt lgkmcnt(0)")
    for i in range(1, 4): A(f"s_min_u32 s4, s4, s{4+i}")
    A("s_add_u32 s64, s64, 1")
    A("s_cmp_ge_u32 s4, 64")
    A(f"s_cbranch_scc1 {lbl}_ok")
    A("s_sleep 16")
    A("s_cmp_lt_u32 s64, 20000")
    A(f"s_cbranch_scc1 {lbl}_poll")
    A.label(f"{lbl}_ok")

def call_helper(A, tag):
    A("s_getpc_b64 s[64:65]")
    A.label(f"{n}_Chp{tag}")
    A(f"s_add_u32 s64, s64, {n}_Chelp-{n}_Chp{tag}")
    A("s_addc_u32 s65, s65, 0")
    A("s_swappc_b64 s[70:71], s[64:65]")

def kb_flag(A, ch):
    A(f"s_lshr_b32 s65, s{ch}, 2")
    A("s_and_b32 s66, s65, 15")
    A("s_lshl_b32 s66, s66, 4")
    A("s_lshr_b32 s65, s65, 4")
    A("s_add_u32 s66, s66, s65")
    A(f"s_and_b32 s65, s{ch}, 3")
    A("s_add_u32 s65, s65, 16")
    mb_push(A, MB_Z2, 1, ["v_mov_b32 v6, s66"], 65, 6, 20)

def gen_C(A, diag):
    A.label(f"{n}_C")
    ACC2 = 16; Z2P = 16; ACC1 = 52
    SET = [124, 168]
    RX = 212; RW = 214; RWT = 222; VC1 = 15; SUM = 224; Z1P = 216
    if "noprio" not in OPT: A("s_setprio 2")
    psrd(A, 20, P_WS, WS_MB, 4*MBSZ)
    def clears(tag):
        A(f"s_cmp_lg_u32 s{S_W}, 0")
        A(f"s_cbranch_scc1 {n}_Cni{tag}")
        A.vshift = 184
        A("v_lshrrev_b32 v2, 4, v0")
        A("v_and_b32 v3, 15, v0")
        A("v_lshlrev_b32 v3, 4, v3")
        A("v_lshl_add_u32 v3, v2, 16, v3")
        A(f"v_mov_b32 v4, s{S_O3}")
        A(f"v_mov_b32 v5, s{S_O1}")
        A("v_cmp_eq_u32 vcc, 0, v2")
        A("s_nop 1")
        A("v_cndmask_b32 v4, v4, v5, vcc")
        A("v_lshl_add_u32 v3, v4, 8, v3")
        for i in range(4): A(f"v_mov_b32 v{4+i}, 0")
        A("buffer_store_dwordx4 v[4:7], v3, s[20:23], 0 offen sc1")
        A(f"v_mov_b32 v2, {LDS_CNT}")
        A("ds_write_b128 v2, v[4:7]")
        A("ds_write_b128 v2, v[4:7] offset:16")
        A(f"s_lshl_b32 s64, s{S_O1}, 10")
        A(f"s_add_u32 s64, s64, {WS_ST}")
        psrd(A, 4, P_WS, "s64", 1024)
        for i in range(4): A(f"v_mov_b32 v{8+i}, -1")
        A("v_lshlrev_b32 v1, 4, v0")
        A("buffer_store_dwordx4 v[8:11], v1, s[4:7], 0 offen sc1")
        A.vshift = 0
        A.label(f"{n}_Cni{tag}")
    A(f"s_mul_i32 s1, s{S_W}, {ssm.RSZ}")
    A(f"s_add_u32 s1, s1, {ssm.R0_BASE}")
    A(f"s_add_u32 s{S_R0}, s1, {ssm.R0_OFF}")
    A("s_waitcnt vmcnt(0)")
    clears("a")
    A(f"s_cmp_ge_u32 s{S_FT}, 9")
    A(f"s_cbranch_scc1 {n}_Cnp")
    ssm.kgen(A, 1, S_R0, 0, True)
    A(f"s_branch {n}_Cnk")
    A.label(f"{n}_Cnp")
    call_helper(A, "a")
    A.label(f"{n}_Cnk")
    A("v_and_b32 v5, 15, v0")
    A("v_lshrrev_b32 v6, 4, v0")
    A("v_lshrrev_b32 v7, 1, v5")
    A("v_xor_b32 v7, v7, v6")
    A("v_lshlrev_b32 v7, 4, v7")
    A("v_lshl_add_u32 v7, v5, 7, v7")
    A(f"s_lshl_b32 s64, s{S_W}, 12")
    A("s_add_u32 s64, s64, 18432")
    A(f"v_add_u32 v{RX}, s64, v7")
    A(f"v_xor_b32 v{RX+1}, 64, v{RX}")
    A(f"v_mov_b32 v14, v{RX}")
    A("v_and_b32 v2, 1, v6")
    A("v_lshrrev_b32 v3, 2, v5")
    A("v_lshl_add_u32 v2, v2, 2, v3")
    A("v_lshrrev_b32 v3, 1, v6")
    A("v_lshl_add_u32 v3, v3, 4, v2")
    A("v_and_b32 v4, 3, v5")
    A("v_lshlrev_b32 v4, 3, v4")
    A("v_lshl_add_u32 v7, v3, 8, v4")
    A("v_lshl_add_u32 v7, v2, 5, v7")
    for b in range(8): A(f"v_xor_b32 v{RW+b}, {32*b}, v7")
    A("v_lshl_add_u32 v7, v3, 5, v4")
    A(f"v_add_u32 v{RWT}, 16384, v7")
    A(f"v_mov_b32 v{VC1}, {f32(GC1)}")
    for r in range(72): A(f"v_mov_b32 v{ACC2+r}, 0")
    A("s_mov_b32 s68, 0")
    A(f"s_mov_b32 s69, {STG}")
    def g1_reads(setid, ks):
        b = SET[setid]
        X = lambda a: [f"ds_read_b128 {vr(b+4*a,4)}, v{RX+ks} offset:{a*2048}"]
        def W(t, h):
            if t < 8: return [f"ds_read_b64_tr_b16 {vr(b+8+4*t+2*h,2)}, v{RW+t} offset:{ks*8192+h*2048}"]
            return [f"ds_read_b64_tr_b16 {vr(b+8+4*t+2*h,2)}, v{RWT} offset:{ks*1024+h*256}"]
        out = [X(0), W(0,0), W(0,1), X(1)]
        for t in range(1, 9): out += [W(t,0), W(t,1)]
        return out
    def g1_mfmas(setid, half):
        b = SET[setid]
        out = []
        for t in range(9):
            for a in range(2):
                c = (ACC2 if half == 0 else ACC1) + (t*2+a)*4
                x = vr(b+4*a,4); w = vr(b+8+4*t,4)
                out.append(f"v_mfma_f32_16x16x32_bf16 {vr(c,4)}, {x}, {w}, {vr(c,4)}" if half == 0 else
                           f"v_mfma_f32_16x16x32_bf16 {vr(c,4)}, {w}, {x}, {vr(c,4)}")
        return out
    def advance(regs):
        o = [["s_add_u32 s68, s68, 1", "s_and_b32 s68, s68, 3"], [f"s_cselect_b32 s70, s69, {-3*STG}"]]
        return o + [[f"v_add_u32 v{r}, s70, v{r}"] for r in regs]
    def g1_stage(half, bar=True, last=False, drain=False):
        A("s_waitcnt lgkmcnt(0)")
        A(interleave(g1_mfmas(0, half), g1_reads(1, 1) + ([] if last else advance(range(RX, RWT+1))), per=2))
        A("s_waitcnt vmcnt(0) lgkmcnt(0)" if drain else "s_waitcnt lgkmcnt(0)")
        if bar: A("s_barrier")
        A(interleave(g1_mfmas(1, half), [] if last else g1_reads(0, 0), per=2))
    def g1_rep(half, lbl, per, cnt):
        A(f"s_mov_b32 s71, {cnt}")
        A.raw(".p2align 6")
        A.label(lbl)
        for u in range(per): g1_stage(half)
        A("s_sub_u32 s71, s71, 1")
        A("s_cmp_lg_u32 s71, 0")
        A(f"s_cbranch_scc1 {lbl}")
    def z2_norm():
        T = SET[1]; SC = T + 16
        A(f"s_lshl_b32 s65, s{S_W}, 8")
        A(f"s_add_u32 s65, s65, {LDS_X}")
        A("v_lshrrev_b32 v7, 4, v0")
        A("v_lshlrev_b32 v7, 6, v7")
        A("v_add_u32 v7, s65, v7")
        for i in range(4): A(f"ds_read_b128 {vr(SC+4*i,4)}, v7 offset:{16*i}")
        A(f"s_lshl_b32 s64, s{S_FT}, 5")
        A(f"s_lshl_b32 s66, s{S_TT}, 1")
        A("s_add_u32 s64, s64, s66")
        A("s_mul_i32 s64, s64, 18432")
        A(f"s_mul_i32 s66, s{S_W}, 9216")
        A("s_add_u32 s64, s64, s66")
        A(f"s_add_u32 s64, s64, {WS_Z2F}")
        psrd(A, 4, P_WS, "s64", 9216)
        A("v_lshlrev_b32 v6, 4, v0")
        A("s_movk_i32 s65, 4096")
        A("s_movk_i32 s66, 8192")
        A("s_waitcnt lgkmcnt(0)")
        for t in range(9):
            tb = T + 8*(t & 1)
            for j in range(4):
                A(f"v_lshlrev_b32 v{tb+2*j}, 16, v{Z2P+4*t+j}")
                A(f"v_and_b32 v{tb+2*j+1}, 0xffff0000, v{Z2P+4*t+j}")
            for i in range(8): A(f"v_fma_f32 v{tb+i}, v{tb+i}, v{SC+2*i}, v{SC+2*i+1}")
            for j in range(4): A(f"v_cvt_pk_bf16_f32 v{Z2P+4*t+j}, v{tb+2*j}, v{tb+2*j+1}")
            so = ["0", "s65", "s66"][t >> 2]
            A(f"buffer_store_dwordx4 {vr(Z2P+4*t,4)}, v6, s[4:7], {so} offen offset:{(t&3)*1024} sc1")
    def g1_loop(half):
        if half == 0:
            g1_rep(0, f"{n}_g10", 3, 3)
            for q in range(9): A.bars.append(f"M{q}")
            return
        if QN == 12: g1_rep(1, f"{n}_g11", 2, 2)
        else:        g1_rep(1, f"{n}_g11", 1, 5)
        z2_norm()
        for q in range(QN + 1, 18):
            g1_stage(1, bar=(q <= 15), last=(q == 17), drain=(q == QP))
        for q in range(9, 16): A.bars.append(f"M{q}")
        A(f"s_lshr_b32 s64, s{S_W}, 1")
        A(f"s_mul_i32 s64, s64, {STG}")
        A(f"s_and_b32 s66, s{S_W}, 1")
        A("s_mul_i32 s66, s66, 9216")
        A("s_add_u32 s64, s64, s66")
        A(f"s_add_u32 s64, s64, {(18 % S)*STG}")
        A("v_add_u32 v7, s64, v6")
        for t in range(9): A(f"ds_write_b128 v7, {vr(Z2P+4*t,4)} offset:{t*1024}")
    A("s_waitcnt vmcnt(3)")
    A(f"s_cmp_ge_u32 s{S_FT}, 9")
    A(f"s_cbranch_scc1 {n}_Cnw0")
    A("s_waitcnt vmcnt(0)")
    A.label(f"{n}_Cnw0")
    A.bar("B0")
    A.stamp(2)
    for g in g1_reads(0, 0): A(g)
    g1_loop(0)
    A.stamp(3)
    A("v_lshlrev_b32 v1, 4, v0")
    A(f"s_lshl_b32 s64, s{S_W}, 10")
    A("v_add_u32 v1, s64, v1")
    A(f"v_add_u32 v2, {XH}, v1")
    T = SET[1]
    for i in range(16): A(f"v_mov_b32 v{SUM+i}, 0")
    KC = 4
    for i, v in enumerate((GC1, GC1, GC0, GC0, 1.0, 1.0)): A(f"v_mov_b32 v{KC+i}, {f32(v)}")
    for t in range(9):
        regs = [ACC2 + 8*t + i for i in range(8)]
        A(gelu_pk(regs, T, KC))
        for i in range(4): A(f"v_pk_add_f32 {vr(SUM+2*i,2)}, {vr(SUM+2*i,2)}, {vr(regs[2*i],2)}")
        for i in range(4): A(f"v_pk_fma_f32 {vr(SUM+8+2*i,2)}, {vr(regs[2*i],2)}, {vr(regs[2*i],2)}, {vr(SUM+8+2*i,2)}")
        for j in range(4): A(f"v_cvt_pk_bf16_f32 v{Z2P+4*t+j}, v{regs[2*j]}, v{regs[2*j+1]}")
    for rot in (8, 4, 2, 1):
        for i in range(16):
            d = SUM + i if rot > 1 else T + 2*(i & 7) + (i >> 3)
            A(f"v_add_f32_dpp v{d}, v{SUM+i}, v{SUM+i} row_ror:{rot} row_mask:0xf bank_mask:0xf")
    A(f"s_lshl_b32 s64, s{S_O1}, 10")
    A(f"s_add_u32 s64, s64, {WS_ST}")
    psrd(A, 4, P_WS, "s64", 1024)
    A("v_lshrrev_b32 v6, 4, v0")
    A("v_lshlrev_b32 v6, 6, v6")
    A(f"s_lshl_b32 s65, s{S_W}, 8")
    A("v_add_u32 v6, s65, v6")
    if "st4" in OPT:
        set_exec(A, 0x00010001, 0x00010001)
        for i in range(4):
            A(f"buffer_store_dwordx4 {vr(T+4*i,4)}, v6, s[4:7], 0 offen offset:{16*i} sc1")
    else:
        A("v_and_b32 v7, 3, v0")
        A("v_lshl_add_u32 v6, v7, 4, v6")
        for i in range(1, 4):
            m = 0x00010001 << i
            set_exec(A, hex(m), hex(m))
            for k in range(4): A(f"v_mov_b32 v{T+k}, v{T+4*i+k}")
        set_exec(A, 0x000f000f, 0x000f000f)
        A(f"buffer_store_dwordx4 {vr(T,4)}, v6, s[4:7], 0 offen sc1")
    A("s_mov_b64 exec, -1")
    A("v_and_b32 v5, 15, v0")
    A("v_lshrrev_b32 v8, 2, v5")
    A("v_lshlrev_b32 v8, 3, v8")
    A("v_and_b32 v9, 3, v5")
    A("v_add_u32 v8, v8, v9")
    A(f"s_lshl_b32 s64, s{S_W}, 5")
    A("v_add_u32 v8, s64, v8")
    A("v_lshlrev_b32 v11, 1, v8")
    A(f"s_lshl_b32 s64, s{S_TT}, 8")
    psrd(A, 4, P_BSP, "s64", 256)
    A("buffer_load_ushort v12, v11, s[4:7], 0 offen")
    A("buffer_load_ushort v13, v11, s[4:7], 0 offen offset:8")
    A(f"s_lshl_b32 s65, s{S_CH}, 1")
    A("v_mov_b32 v3, s65")
    psrd(A, 4, P_D, None, 1152)
    A("buffer_load_ushort v11, v3, s[4:7], 0 offen")
    A(f"s_sub_u32 s67, s{S_CH}, {576 + 288 - 448}")
    A("s_min_u32 s67, s67, 575")
    A.vshift = 222
    ssm.kgen_load(A, 67)
    A.vshift = 0
    for r in range(72): A(f"v_mov_b32 v{ACC1+r}, 0")
    A.stamp(4)
    g1_loop(1)
    A.stamp(5)
    A("s_waitcnt lgkmcnt(0)")
    for i in range(5): A(f"v_mov_b32 v{24+i}, v{226+i}")
    for t in range(9):
        regs = [ACC1 + 8*t + i for i in range(8)]
        if "gelu1pre" in OPT: A(gelu_ops(regs, T, VC1))
        for nb in range(2):
            for j in range(2):
                dst = Z1P + ((nb*4 + (t >> 1))*4 + (t & 1)*2 + j if t < 8 else 32 + nb*2 + j)
                A(f"v_cvt_pk_bf16_f32 v{dst}, v{regs[4*nb+2*j]}, v{regs[4*nb+2*j+1]}")
    A.vshift = 120
    gate_issue(A)
    A.bar("M17")
    A.stamp(6)
    gate_job(A, 0)
    A.vshift = 0
    A("v_mov_b32 v215, v11")
    A(f"s_cmp_lt_u32 s{S_FT}, 9")
    A(f"s_cbranch_scc1 {n}_Cnk2")
    A(f"s_sub_u32 s67, s{S_CH}, 576")
    kb_flag(A, 67)
    A(f"s_sub_u32 s67, s{S_CH}, {576 + 288}")
    A("s_cmp_ge_u32 s67, 128")
    A(f"s_cbranch_scc1 {n}_Cnk2")
    A("s_add_u32 s67, s67, 448")
    for i in range(3): A(f"v_mov_b32 v{212+i}, v{12+i}")
    for i in range(5): A(f"v_mov_b32 v{4+i}, v{24+i}")
    call_helper(A, "b")
    for i in range(3): A(f"v_mov_b32 v{12+i}, v{212+i}")
    A("s_waitcnt vmcnt(0)")
    kb_flag(A, 67)
    A.label(f"{n}_Cnk2")
    A.stamp(7)
    ACC = 16; SET2 = [88, 132]; RA = 176; RB = 180
    A("v_lshlrev_b32 v10, 4, v0")
    for st in range(S):
        A(f"v_add_u32 v{RA+st}, {st*STG}, v10")
        A(f"v_add_u32 v{RB+2*st}, {st*STG}, v14")
        A(f"v_xor_b32 v{RB+2*st+1}, 64, v{RB+2*st}")
    A(f"s_lshl_b32 s64, s{S_TT}, 1")
    A(f"s_lshr_b32 s65, s{S_W}, 1")
    A("s_add_u32 s64, s64, s65")
    A(f"s_mul_i32 s64, s64, {72*4096}")
    A(f"s_and_b32 s65, s{S_W}, 1")
    A("s_lshl_b32 s65, s65, 11")
    A("s_add_u32 s64, s64, s65")
    A(f"s_add_u32 s64, s64, {WS_HF}")
    psrd(A, 16, P_WS, "s64", 72*4096)
    if "prestore" in OPT:
        A(f"s_lshl_b32 s70, s{S_FT}, 14")
        for i in range(1, 4): A(f"s_add_u32 s{70+i}, s70, {4096*i}")
        for j in range(8):
            A(f"buffer_store_dwordx4 v[200:203], v10, s[16:19], s{70+(j&3)} offen offset:{(j>>2)*1024}{'' if 'plain' in OPT else ' sc1'}")
    A("v_lshlrev_b32 v12, 16, v12")
    A("v_lshlrev_b32 v13, 16, v13")
    for a in range(9):
        for nb in range(2):
            for r in range(4): A(f"v_mov_b32 v{ACC+(a*2+nb)*4+r}, v{12+nb}")
    def g2_reads(setid, slot, ks):
        b = SET2[setid]
        out = []
        for kind, i in [("B", 0), ("A", 0), ("B", 1)] + [("A", a) for a in range(1, 9)]:
            if kind == "B": out.append([f"ds_read_b128 {vr(b+4*i,4)}, v{RB+2*slot+ks} offset:{i*2048}"])
            elif "lr6" in OPT and i >= 6 and not (slot == 2 and ks == 0 and False): out.append([])
            elif "lr4" in OPT and i >= 4: out.append([])
            else:           out.append([f"ds_read_b128 {vr(b+8+4*i,4)}, v{RA+slot} offset:{(ks*9+i)*1024}"])
        return out
    def g2_mfmas(setid):
        b = SET2[setid]
        am = (lambda a: a % 6) if "lr6" in OPT else (lambda a: a % 4) if "lr4" in OPT else (lambda a: a)
        return [f"v_mfma_f32_16x16x32_bf16 {vr(ACC+(a*2+nb)*4,4)}, {vr(b+8+4*am(a),4)}, {vr(b+4*nb,4)}, {vr(ACC+(a*2+nb)*4,4)}"
                for a in range(9) for nb in range(2)]
    GT = 188
    def gelu_fill():
        if "gelu1pre" in OPT: return []
        f = [["s_set_gpr_idx_on s70, 0x1", "s_nop 0"] + [f"v_mov_b32 v{GT+k}, v{Z1P+k}" for k in range(5)] + ["s_set_gpr_idx_off"]]
        for k in range(5):
            f.append([f"v_lshlrev_b32 v{GT+5+2*k}, 16, v{GT+k}"]); f.append([f"v_and_b32 v{GT+6+2*k}, 0xffff0000, v{GT+k}"])
        f += [[x] for x in gelu_ops([GT+5+i for i in range(10)], GT+15, VC1)]
        f.append(["s_set_gpr_idx_on s70, 0x8", "s_nop 0"] + [f"v_cvt_pk_bf16_f32 v{Z1P+k}, v{GT+5+2*k}, v{GT+6+2*k}" for k in range(5)] + ["s_set_gpr_idx_off", "s_add_u32 s70, s70, 5"])
        return f
    A(f"v_mov_b32 v{VC1}, {f32(GC1)}")
    A("s_mov_b32 s70, 0")
    for i in range(4): A(f"v_mov_b32 v{252+i}, 0")
    A("s_waitcnt lgkmcnt(0)")
    A.bar("G2S")
    A.stamp(8)
    for g in g2_reads(0, 18 % S, 0): A(g)
    A("s_mov_b32 s71, 8")
    A.raw(".p2align 6")
    A.label(f"{n}_g2")
    for rep in range(8 if "nstamp" in OPT else 1):
        if "nstamp" in OPT: A(f"s_memtime s[{80+2*rep}:{81+2*rep}]")
        fill = gelu_fill()
        for u in range(4):
            slot = (18 + u) % S
            for hf in range(2):
                A("s_waitcnt lgkmcnt(0)")
                if hf: A("s_barrier")
                rd = g2_reads(1, slot, 1) if hf == 0 else g2_reads(0, (slot+1) % S, 0)
                grp = []
                for gp in range(7):
                    g, cost = [], 0
                    while fill and cost < 2:
                        x = fill.pop(0); g += x
                        cost += sum(2 if ("v_exp" in y or "v_rcp" in y) else 1 for y in x)
                    grp.append(g)
                A(interleave(g2_mfmas(hf), rd + grp))
        assert not fill, len(fill)
    if "nstamp" in OPT:
        A("s_memtime s[96:97]"); A.diag = False
    else:
        A("s_sub_u32 s71, s71, 1")
        A("s_cmp_lg_u32 s71, 0")
        A(f"s_cbranch_scc1 {n}_g2")
    for q in range(18, 50): A.bars.append(f"N{q}")
    A.stamp(9)
    A(f"s_lshl_b32 s70, s{S_FT}, 14")
    for i in range(1, 4): A(f"s_add_u32 s{70+i}, s70, {4096*i}")
    A(f"s_lshr_b32 s64, s{S_FT}, 1")
    A("s_lshl_b32 s64, s64, 12")
    A(f"s_and_b32 s65, s{S_FT}, 1")
    A("s_lshl_b32 s65, s65, 11")
    A("s_add_u32 s64, s64, s65")
    A(f"s_and_b32 s65, s{S_W}, 1")
    A("s_lshl_b32 s65, s65, 10")
    A("s_sub_u32 s64, s64, s65")
    A(f"s_add_u32 s64, s64, {64*4096}")
    A("s_waitcnt vmcnt(0) lgkmcnt(0)")
    T2 = SET2[0]
    cnt = 0
    for j in range(9):
        for i in range(4):
            if j < 8: nb, a, rr = j >> 2, 2*(j & 3) + (i >> 1), 2*(i & 1)
            else:     nb, a, rr = i >> 1, 8, 2*(i & 1)
            c = ACC + (a*2+nb)*4 + rr
            t0 = T2 + 2*(cnt % 8); cnt += 1
            z = Z1P + 4*j + i
            A(f"v_lshlrev_b32 v{t0}, 16, v{z}")
            A(f"v_and_b32 v{t0+1}, 0xffff0000, v{z}")
            A(f"v_mul_f32 v{t0}, v{t0}, v{c}")
            A(f"v_mul_f32 v{t0+1}, v{t0+1}, v{c+1}")
            A(f"v_cvt_pk_bf16_f32 v{z}, v{t0}, v{t0+1}")
        if j < 8:
            A(f"buffer_store_dwordx4 {vr(Z1P+4*j,4)}, v10, s[16:19], s{70+(j&3)} offen offset:{(j>>2)*1024} sc1")
        else:
            A(f"buffer_store_dwordx4 {vr(Z1P+32,4)}, v10, s[16:19], s64 offen sc1")
    A.bar("EPI")
    if "estamp" in OPT: A.stamp(2)
    def pub2(tag):
        if "estamp" in OPT: A.stamp(3)
        A("s_waitcnt vmcnt(0)")
        if "estamp" in OPT: A.stamp(4)
        A(f"s_lshr_b32 s65, s{S_W}, 1")
        A("s_lshl_b32 s70, s65, 2")
        A(f"s_add_u32 s70, s70, {LDS_CNT + 8}")
        lds_arrive(A, ["v_mov_b32 v200, s70"], 200, 1, f"{n}_Cnh{tag}")
        A(f"s_lshl_b32 s71, s{S_TT}, 1")
        A("s_add_u32 s71, s71, s65")
        A("s_lshl_b32 s71, s71, 3")
        mb_push(A, MB_H, 8, ["v_add_u32 v200, s71, v0"], S_FT, 200, 20)
        A.label(f"{n}_Cnh{tag}")
    A(f"s_cmp_ge_u32 s{S_FT}, 9")
    A(f"s_cbranch_scc1 {n}_Cnc")
    A(f"s_mul_i32 s64, s{S_W}, {ssm.RSZ}")
    A(f"s_add_u32 s1, s64, {ssm.R0_BASE}")
    A(f"s_add_u32 s72, s64, {ssm.R0_BASE + ssm.R0_OFF}")
    A(f"s_add_u32 s73, s64, {R1_BASE}")
    A(f"s_mul_i32 s74, s{S_W}, {ssm.USZ}")
    A(f"s_add_u32 s74, s74, {U_BASE}")
    ssm.r1_build(A, 72, 73, 16)
    A("v_mov_b32 v6, 0"); A("v_mov_b32 v7, 0")
    A("v_lshlrev_b32 v8, 3, v0")
    A("v_add_u32 v8, s74, v8")
    set_exec(A, -1, 0x0fffffff)
    A("ds_write_b64 v8, v[6:7]")
    A("s_mov_b64 exec, -1")
    if "estamp" in OPT: A.stamp(5)
    ssm.conv(A, 72, 73, 74, S_CH, hook=lambda: pub2('a'))
    A("s_waitcnt vmcnt(0)")
    lds_arrive(A, [f"v_mov_b32 v6, {LDS_CNT}"], 6, 3, f"{n}_Cnc2")
    A(f"s_lshr_b32 s74, s{S_CH}, 2")
    A("s_mul_i32 s72, s74, 3641")
    A("s_lshr_b32 s72, s72, 16")
    A("s_mul_i32 s73, s72, 18")
    A("s_sub_u32 s73, s74, s73")
    mb_push(A, MB_A, 32, ["v_lshlrev_b32 v14, 3, v0", "v_add_u32 v14, s72, v14"], 73, 14, 20)
    A(f"s_branch {n}_Cnc2")
    A.label(f"{n}_Cnc")
    pub2("b")
    A.label(f"{n}_Cnc2")
    A.stamp(10)
    g3(A)
    if diag:
        A("s_waitcnt vmcnt(0)")
        A.diag = True
        if "tstamp" in OPT: A.stamp(5)
        A.stamp(12, True)
        stamp_dump(A, f"{n}_Cd", 0)
        if "dbgdump" in OPT:
            A("s_memtime s[64:65]")
            A("s_waitcnt lgkmcnt(0)")
            A("s_cmp_lg_u32 s2, 9")
            A(f"s_cbranch_scc1 {n}_exit")
            A(f"s_cmp_lg_u32 s{S_W}, 0")
            A(f"s_cbranch_scc1 {n}_exit")
            psrd(A, 4, P_DBG, None, 64)
            for i in range(2, 12):
                A(f"s_sub_u32 s66, s{76+2*i}, s76"); A(f"v_mov_b32 v{4+i-2}, s66")
            A("s_sub_u32 s66, s64, s76"); A("v_mov_b32 v14, s66")
            A("s_sub_u32 s66, s100, s78"); A("v_mov_b32 v15, s66")
            A("v_mov_b32 v1, 0")
            for i in range(3): A(f"buffer_store_dwordx4 v[{4+4*i}:{7+4*i}], v1, s[4:7], 0 offen offset:{16*i}")
    A.label(f"{n}_exit")
    A("s_endpgm")
    A.label(f"{n}_Chelp")
    ssm.kgen(A, 1, S_R0, 1, True, G=8)
    A("v_lshlrev_b32 v1, 4, v0")
    A(f"v_add_u32 v2, s{S_R0}, v1")
    for i in range(3): A(f"ds_read_b128 {vr(64+4*i,4)}, v2 offset:{1024*i}")
    A("s_mul_i32 s64, s67, 2304")
    A(f"s_add_u32 s64, s64, {WS_KB}")
    psrd(A, 4, P_WS, "s64", 2304)
    A("s_waitcnt lgkmcnt(0)")
    for i in range(3): A(f"buffer_store_dwordx4 {vr(64+4*i,4)}, v1, s[4:7], 0 offen offset:{1024*i} sc1")
    A("s_setpc_b64 s[70:71]")
    A.label(f"{n}_end")

NL = 4
TPOS = 21
AHINT = 10
DA, DB = (6, 3) if 'd63' in OPT else (4, 5) if 'd45' in OPT else (5, 4)
def g3_main(A):
    ACC = 4; AB = 84; BB = AB + 20*DA
    assert BB + 16*DB <= 248
    A.vshift = 0
    A("v_lshlrev_b32 v2, 4, v0")
    A("v_and_b32 v3, 7, v0")
    A("v_lshrrev_b32 v1, 4, v0")
    A("v_lshl_add_u32 v3, v1, 3, v3")
    A("v_lshlrev_b32 v3, 4, v3")
    A("v_add_u32 v3, 4096, v3")
    A(f"s_mul_i32 s64, s{S_J}, {72*4608}")
    A(f"s_add_u32 s64, s64, {WS_WOT}")
    psrd(A, 4, P_WS, "s64", 72*4608)
    A(f"s_mul_i32 s64, s{S_T64}, {72*4096}")
    A(f"s_add_u32 s64, s64, {WS_HF}")
    psrd(A, 12, P_WS, "s64", 72*4096)
    A(f"s_and_b32 s64, s{S_T64}, 3")
    A("s_lshl_b32 s64, s64, 1")
    if "rotT" not in OPT: A(f"s_add_u32 s64, s64, s{S_J}")
    A("s_and_b32 s64, s64, 7")
    A("s_mul_i32 s64, s64, 9")
    if "rotJ" in OPT: A(f"s_mul_i32 s64, s{S_J}, 9")
    elif "rot3" not in OPT: A("s_mov_b32 s64, 0")
    A(f"s_add_u32 s64, s64, s{S_W}")
    A("s_mul_i32 s70, s64, 4608")
    A("s_lshl_b32 s71, s64, 12")
    NK = 18
    ra = {}; rb = {}
    def loadA(it):
        b = AB + 20*(it % DA)
        for q in range(4): A.vm(f"buffer_load_dwordx4 {vr(b+4*q,4)}, v2, s[4:7], s70 offen offset:{1024*q} sc1")
        ra[it] = A.vm(f"buffer_load_dwordx4 {vr(b+16,4)}, v{3 if it < DA else 255}, s[4:7], s70 offen sc1")
        A(f"s_add_u32 s70, s70, {4*4608}")
        A(f"s_cmp_ge_u32 s70, {72*4608}")
        A(f"s_cselect_b32 s72, {72*4608}, 0")
        A("s_sub_u32 s70, s70, s72")
    def loadB(it):
        b = BB + 16*(it % DB)
        for q in range(4): rb[it] = A.vm(f"buffer_load_dwordx4 {vr(b+4*q,4)}, v2, s[12:15], s71 offen offset:{1024*q} sc1")
        A(f"s_add_u32 s71, s71, {4*4096}")
        A(f"s_cmp_ge_u32 s71, {72*4096}")
        A(f"s_cselect_b32 s72, {72*4096}, 0")
        A("s_sub_u32 s71, s71, s72")
    A(f"s_cmp_ge_u32 s{S_FT}, 9")
    A(f"s_cbranch_scc1 {n}_Lnu1")
    A(f"s_lshl_b32 s64, s{S_CH}, 12")
    A(f"s_add_u32 s64, s64, {WS_UT}")
    psrd(A, 16, P_WS, "s64", 4096)
    A(f"s_mul_i32 s66, s{S_W}, {ssm.USZ}")
    A(f"s_add_u32 m0, s66, {U_BASE + 480}")
    A("s_nop 0")
    for i in range(4):
        A(f"buffer_load_dwordx4 v2, s[16:19], 0 offen offset:{1024*i} sc1 lds")
    A.label(f"{n}_Lnu1")
    A("s_waitcnt vmcnt(9)")
    A.bar("N47")
    for r in range(80): A(f"v_mov_b32 v{ACC+r}, 0")
    A("s_waitcnt vmcnt(0)")
    loadA(0)
    A.bar("N48")
    loadA(1)
    A.bar("N49")
    A.bar("EPI")
    for it in range(2, DA): loadA(it)
    A(f"s_mul_i32 s73, s{S_W}, 20480")
    for u in range(NL):
        A(f"s_add_u32 m0, s73, {u*4608}")
        A("s_nop 0")
        for q in range(4): A.vm(f"buffer_load_dwordx4 v2, s[4:7], s70 offen offset:{1024*q} sc1 lds")
        A(f"s_add_u32 m0, s73, {u*4608 + 4096}")
        A("s_add_u32 s72, s70, 4096")
        A("s_mov_b64 exec, 0xffffffff")
        rl = A.vm("buffer_load_dwordx4 v2, s[4:7], s72 offen sc1 lds")
        A("s_mov_b64 exec, -1")
        A(f"s_add_u32 s70, s70, {4*4608}")
    if "astag" in OPT:
        assert NK - DA - NL >= 8
        A(f"s_and_b32 s72, s{S_T64}, 7")
        A(f"s_mul_i32 s72, s72, {4*4608}")
        A("s_add_u32 s70, s70, s72")
    A("v_add_u32 v1, s73, v2")
    A("v_add_u32 v3, s73, v3")
    A("v_subrev_u32 v255, s73, v3")
    def ldsA(it):
        b = AB + 20*(it % DA); u = it - DA
        for q in range(4): A(f"ds_read_b128 {vr(b+4*q,4)}, v1 offset:{u*4608 + 1024*q}")
        A(f"ds_read_b128 {vr(b+16,4)}, v3 offset:{u*4608}")
        ra[it] = 0
    wg_wait(A, f"{n}_Lgh", S_W, LDS_CNT + 20, 248, lambda: mb_wait(A, f"{n}_Lh", MB_H, S_O3, 16, 250, 8, sleep=PSLEEP, depth=PD))
    A.stamp(9)
    A(f"s_lshl_b32 s64, s{S_T64}, 9")
    A(f"s_add_u32 s64, s64, {WS_G}")
    psrd(A, 16, P_WS, "s64", 512)
    A(f"s_mov_b32 m0, {LDS_G}")
    A("s_mov_b64 exec, 0xffffffff")
    A.vm("buffer_load_dwordx4 v2, s[16:19], 0 offen sc1 lds")
    A("s_mov_b64 exec, -1")
    if "lprio" in OPT: A("s_setprio 3")
    for it in range(DB): loadB(it)
    for it in range(NK):
        A.wait_vm(max(ra[it], rb[it]), " lgkmcnt(0)" if DA <= it < DA + NL else "")
        if "gstamp" in OPT and it in (0, 1, 3, 6, 9, 12, 15): A.stamp(2 + (0, 1, 3, 6, 9, 12, 15).index(it))
        a = AB + 20*(it % DA); b = BB + 16*(it % DB)
        ia = it - 1 + DA
        fa = []
        if it >= 1 and ia < NK:
            ab = AB + 20*(ia % DA)
            if ia < DA + NL:
                u = ia - DA
                fa = [f"ds_read_b128 {vr(ab+4*q,4)}, v1 offset:{u*4608 + 1024*q}" for q in range(4)] + [f"ds_read_b128 {vr(ab+16,4)}, v3 offset:{u*4608}"]
                ra[ia] = 0
            else:
                fa = [f"buffer_load_dwordx4 {vr(ab+4*q,4)}, v2, s[4:7], s70 offen offset:{1024*q} sc1" for q in range(4)] + [f"buffer_load_dwordx4 {vr(ab+16,4)}, v255, s[4:7], s70 offen sc1"]
        for nt in range(4):
            for q in range(5):
                c = ACC + (nt*5+q)*4
                if it < 16:
                    A(f"v_mfma_f32_16x16x32_bf16 {vr(c,4)}, {vr(a+4*q,4)}, {vr(b+4*nt,4)}, {vr(c,4)}")
                else:
                    for par in range(2):
                        A(f"v_mfma_f32_16x16x16_bf16 {vr(c,4)}, {vr(a+4*q+2*par,2)}, {vr(b+4*(2*par+(nt>>1))+2*(nt&1),2)}, {vr(c,4)}")
                if it == NK - 1 and nt*5 + q >= 4:
                    k = nt*5 + q - 4
                    A(f"ds_write_b128 v1, {vr(ACC+k*4,4)} offset:{k*1024}")
                if fa and (q == 2 or (q == 0 and nt == 0)):
                    x = fa.pop(0)
                    if x.startswith("ds_"): A(x)
                    else: ra[ia] = A.vm(x)
            if it + DB < NK:
                rb[it+DB] = A.vm(f"buffer_load_dwordx4 {vr(b+4*nt,4)}, v2, s[12:15], s71 offen offset:{1024*nt} sc1")
        assert not fa
        NP = DA + NL; NS = NK - NP
        def step(reg, unit, nxt):
            if nxt == NP and "astag" in OPT:
                A(f"s_and_b32 s72, s{S_T64}, 7")
                A(f"s_add_u32 s72, s72, 1")
                A(f"s_mul_i32 s72, s72, {4*unit}")
                A(f"s_add_u32 s{reg}, s{reg}, s72")
            else:
                A(f"s_add_u32 s{reg}, s{reg}, {4*unit}")
            if nxt > NP:
                A(f"s_cmp_ge_u32 s{reg}, {72*unit}")
                A(f"s_cselect_b32 s72, {4*NS*unit}, 0")
                A(f"s_sub_u32 s{reg}, s{reg}, s72")
        if it + DB < NK: step(71, 4096, it + DB + 1)
        if it >= 1 and NP <= ia < NK: step(70, 4608, ia + 1)
        if it == AHINT:
            A(f"v_mov_b32 v248, {LDS_CNT + 24}")
            A("ds_write_b32 v248, v248")
    A.stamp(10)
    for k in range(16, 20):
        if k == 17: A("s_nop 5")
        A(f"ds_write_b128 v1, {vr(ACC+k*4,4)} offset:{k*1024}")
    A("s_waitcnt lgkmcnt(0)")
    A.bar("RED")

def g3(A):
    A("v_lshlrev_b32 v2, 4, v0")
    A("v_lshrrev_b32 v4, 4, v0")
    A("v_and_b32 v5, 15, v0")
    A("v_lshrrev_b32 v6, 2, v5")
    A("v_lshlrev_b32 v6, 3, v6")
    A("v_and_b32 v7, 3, v5")
    A("v_add_u32 v6, v6, v7")
    A(f"s_lshr_b32 s70, s{S_W}, 1")
    A("s_lshl_b32 s70, s70, 5")
    A(f"s_and_b32 s66, s{S_W}, 1")
    A("s_lshl_b32 s66, s66, 2")
    A("s_add_u32 s70, s70, s66")
    A("v_add_u32 v6, s70, v6")
    A("v_lshlrev_b32 v15, 3, v6")
    A(f"v_add_u32 v15, {LDS_G}, v15")
    A(f"s_lshl_b32 s66, s{S_T64}, 6")
    A("v_add_u32 v6, s66, v6")
    A("v_mul_u32_u24 v6, 1152, v6")
    A(f"s_mul_i32 s66, s{S_J}, 144")
    A("v_add_u32 v6, s66, v6")
    A("v_lshl_add_u32 v10, v4, 4, v6")
    A("v_lshl_add_u32 v11, v4, 3, v6")
    psrd(A, 16, P_OUT, None, 2048*1152)
    A("v_lshrrev_b32 v12, 2, v5")
    A("v_lshl_add_u32 v13, v4, 3, v12")
    A("v_lshlrev_b32 v13, 7, v13")
    A("v_and_b32 v14, 3, v5")
    A("v_lshl_add_u32 v13, v14, 4, v13")
    A("s_lshl_b32 s70, s70, 1")
    A(f"s_add_u32 s70, s70, {LDS_AT}")
    A("v_add_u32 v13, s70, v13")
    A("v_lshl_add_u32 v12, v4, 2, v12")
    A("v_lshlrev_b32 v12, 7, v12")
    A("v_lshl_add_u32 v12, v14, 4, v12")
    A("v_add_u32 v12, s70, v12")
    A(f"s_cmp_lg_u32 s{S_W}, 0")
    A(f"s_cbranch_scc1 {n}_Cna")
    A(f"v_mov_b32 v16, {LDS_CNT + 24}")
    A("s_mov_b32 s65, 0")
    A.label(f"{n}_Cah")
    A("ds_read_b32 v17, v16")
    A("s_waitcnt lgkmcnt(0)")
    A("v_readfirstlane_b32 s66, v17")
    A("s_add_u32 s65, s65, 1")
    A("s_cmp_lg_u32 s66, 0")
    A(f"s_cbranch_scc1 {n}_Cah2")
    A("s_sleep 2")
    A("s_cmp_lt_u32 s65, 1000000")
    A(f"s_cbranch_scc1 {n}_Cah")
    A.label(f"{n}_Cah2")
    mb_wait(A, f"{n}_Ca", MB_A, S_O3, 18, 16, 20, sleep=8)
    A.stamp(11)
    A(f"s_mul_i32 s64, s{S_J}, {72*4096}")
    A(f"s_lshl_b32 s65, s{S_T64}, 7")
    A("s_add_u32 s64, s64, s65")
    A(f"s_add_u32 s64, s64, {WS_AT}")
    psrd(A, 12, P_WS, "s64", 71*4096+128)
    A("v_lshrrev_b32 v5, 3, v0")
    A("v_and_b32 v6, 7, v0")
    A("v_lshlrev_b32 v5, 12, v5")
    A("v_lshl_add_u32 v5, v6, 4, v5")
    for i in range(9):
        A(f"s_mov_b32 m0, {LDS_AT + 1024*i}")
        A(f"s_mov_b32 s70, {i*8*4096}")
        A("buffer_load_dwordx4 v5, s[12:15], s70 offen sc1 lds")
    A(f"v_mov_b32 v16, {LDS_CNT + 28}")
    A("s_waitcnt vmcnt(0)")
    A("ds_write_b32 v16, v16")
    A(f"s_branch {n}_Cna2")
    A.label(f"{n}_Cna")
    A(f"v_mov_b32 v16, {LDS_CNT + 28}")
    A("s_mov_b32 s65, 0")
    A.label(f"{n}_Cas")
    A("ds_read_b32 v17, v16")
    A("s_waitcnt lgkmcnt(0)")
    A("v_readfirstlane_b32 s66, v17")
    A("s_add_u32 s65, s65, 1")
    A("s_cmp_lg_u32 s66, 0")
    A(f"s_cbranch_scc1 {n}_Cna2")
    A("s_sleep 2")
    A("s_cmp_lt_u32 s65, 2000000")
    A(f"s_cbranch_scc1 {n}_Cas")
    A.label(f"{n}_Cna2")
    R = 96; AR = 16; T = 32
    for q in range(4):
        A(f"ds_read_b64_tr_b16 {vr(AR+2*q,2)}, v13 offset:{(32*(q>>1)+4*(q&1))*128}")
    A(f"ds_read_b64_tr_b16 {vr(AR+8,2)}, v12 offset:{64*128}")
    A("ds_read_b64 v[8:9], v15")
    A(f"s_mul_i32 s65, s{S_W}, 5120")
    A("v_add_u32 v14, s65, v2")
    A("v_add_u32 v3, 40960, v14")
    A("s_waitcnt lgkmcnt(0)")
    for i in range(10):
        A(f"v_lshlrev_b32 v{T+2*i}, 16, v{AR+i}")
        A(f"v_and_b32 v{T+2*i+1}, 0xffff0000, v{AR+i}")
    for i in range(20): A(f"v_mul_f32 v{T+i}, v8, v{T+i}")
    A("v_mov_b32 v8, v9")
    if "tstamp" in OPT: A.stamp(2)
    A.bar("RED")
    if "tstamp" in OPT: A.stamp(3); A("s_waitcnt lgkmcnt(0)")
    for q in range(5):
        for src in range(4):
            A(f"ds_read_b128 {vr(R+(src*5+q)*4,4)}, v{14 if src < 2 else 3} offset:{(src&1)*20480+q*1024}")
    O = 56
    for q in range(5):
        A(f"s_waitcnt lgkmcnt({min(15, 16 - 4*q)})")
        for h in range(2):
            r = R + 4*q + 2*h
            A(f"v_pk_add_f32 {vr(r,2)}, {vr(r,2)}, {vr(r+20,2)}")
            A(f"v_pk_add_f32 {vr(r+40,2)}, {vr(r+40,2)}, {vr(r+60,2)}")
        for h in range(2):
            r = R + 4*q + 2*h
            A(f"v_pk_add_f32 {vr(r,2)}, {vr(r,2)}, {vr(r+40,2)}")
        for h in range(2):
            r = R + 4*q + 2*h
            A(f"v_pk_fma_f32 {vr(T+4*q+2*h,2)}, {vr(r,2)}, v[8:9], {vr(T+4*q+2*h,2)}")
        for h in range(2):
            A(f"v_cvt_pk_bf16_f32 v{O+2*q+h}, v{T+4*q+2*h}, v{T+4*q+2*h+1}")
        if q == 1: A(f"buffer_store_dwordx4 {vr(O,4)}, v10, s[16:19], 0 offen")
        if q == 3: A(f"buffer_store_dwordx4 {vr(O+4,4)}, v10, s[16:19], 0 offen offset:64")
    if "tstamp" in OPT: A.stamp(4)
    A("s_mov_b64 exec, 0xffffffff")
    A(f"buffer_store_dwordx2 {vr(O+8,2)}, v11, s[16:19], 0 offen offset:128")
    A("s_mov_b64 exec, -1")

if __name__ == "__main__":
    diag = "--diag" in sys.argv
    out = [a for a in sys.argv[1:] if not a.startswith("--")][0]
    H = Stream(diag); C = Stream(diag); L = Stream(diag)
    header(H); gen_L(L, diag); gen_C(C, diag)
    assert C.bars == L.bars, [(a, b) for a, b in zip(C.bars, L.bars) if a != b][:5]
    launch = f"; @launch grid=(256,1,1) block=(512,1,1) lds={LDS_TOTAL}\n"
    if "--list" in sys.argv:
        launch = f"; @launch kernel={NAME} grid=(256,1,1) block=(512,1,1) lds={LDS_TOTAL}\n"
    if "nosc1" in OPT:
        L.lines = [l.replace(" sc1", "") if ("buffer_load_dwordx4" in l or "v201, v200, s[4:7]" in l) else l for l in L.lines]
    for flag in ("sc1", "nt", "sc0 sc1"):
        if "out" + flag.replace(" ", "") in OPT:
            C.lines = [l + " " + flag if ("buffer_store" in l and "s[16:19], 0 offen" in l) else l for l in C.lines]
    open(out, "w").write(HEADER + launch + '.amdgcn_target "amdgcn-amd-amdhsa--gfx950"\n.text\n' + H.text() + L.text() + C.text() + '.section .rodata,"a"\n' + kernel_desc(NAME, 256))
```

```python
from fz_common import *
R0_BASE = LDS_X + 1024
RSZ = 4800
R0_OFF = 640
R1SZ = 4160
USZ = 4608
import sys
HOOKR = 1 if "--hook1" in sys.argv else 0

def kgen_load(A, ch_sreg):
    A(f"s_lshl_b32 s64, s{ch_sreg}, 8")
    A("v_lshlrev_b32 v2, 2, v0")
    A(f"s_lshl_b32 s65, s{ch_sreg}, 1")
    A("v_mov_b32 v3, s65")
    for i, p in enumerate((P_LOGA, P_AIM, P_CR, P_CI)):
        psrd(A, 4, p, None, 576*256)
        A(f"buffer_load_dword v{4+i}, v2, s[4:7], s64 offen")
    psrd(A, 4, P_LOGDT, None, 1152)
    A("buffer_load_ushort v8, v3, s[4:7], 0 offen")

def kgen(A, st, r0_sreg, part, packed, G=None):
    ARE, AIM, CC = 12, 14, 16
    DT, KSC = 20, 22
    WP = {1: 28, 8: 32, 128: 36, 2: 40, 4: 44, 1024: 28}
    kgen_setup(A, ARE, AIM, CC, DT, KSC, WP, (1024, 8, 128) if part == 1 else (1, 8, 128))
    kgen_body(A, st, r0_sreg, part, packed, CC, KSC, WP, G)

KSTATE = [16, 20, 28, 36] + [64 + 4*i for i in range(8)]
def kstate_io(A, ch_sreg, store):
    A(f"s_mul_i32 s64, s{ch_sreg}, 12288")
    A(f"s_add_u32 s64, s64, {WS_KS}")
    psrd(A, 4, P_WS, "s64", 12288)
    A("v_lshlrev_b32 v1, 4, v0")
    A("s_movk_i32 s65, 4096"); A("s_movk_i32 s66, 8192")
    for i, r in enumerate(KSTATE):
        A(f"buffer_{'store' if store else 'load'}_dwordx4 {vr(r,4)}, v1, s[4:7], {['0','s65','s66'][i>>2]} offen offset:{(i&3)*1024} sc1")

def kgen_setup(A, ARE, AIM, CC, DT, KSC, WP, powers):
    A(f"v_lshlrev_b32 v{DT}, 16, v8")
    A(f"v_lshlrev_b32 v{ARE}, 16, v4");  A(f"v_and_b32 v{ARE+1}, 0xffff0000, v4")
    A(f"v_lshlrev_b32 v{AIM}, 16, v5");  A(f"v_and_b32 v{AIM+1}, 0xffff0000, v5")
    A(f"v_lshlrev_b32 v{CC}, 16, v6");   A(f"v_and_b32 v{CC+2}, 0xffff0000, v6")
    A(f"v_lshlrev_b32 v{CC+1}, 16, v7"); A(f"v_and_b32 v{CC+3}, 0xffff0000, v7")
    A(f"v_mov_b32 v23, {f32(L2E_HI)}")
    A(f"v_mov_b32 v24, {f32(L2E_LO)}")
    ops = []
    for k, r in enumerate((DT, ARE, ARE+1)):
        t = 48 + 3*k
        ops.append([f"v_mul_f32 v{t}, v{r}, v23", f"v_fma_f32 v{t+1}, v{r}, v23, -v{t}", f"v_fmac_f32 v{t+1}, v{r}, v24",
                    f"v_rndne_f32 v{t+2}, v{t}", f"v_sub_f32 v{t}, v{t}, v{t+2}", f"v_add_f32 v{t}, v{t}, v{t+1}",
                    f"v_exp_f32 v{t}, v{t}", f"v_cvt_i32_f32 v{t+2}, v{t+2}", f"v_ldexp_f32 v{r}, v{t}, v{t+2}",
                    f"v_cvt_pk_bf16_f32 v{r}, v{r}, v{r}", f"v_and_b32 v{r}, 0xffff0000, v{r}"])
    red = [f"v_max_f32 v25, abs(v{CC}), abs(v{CC+1})", f"v_max3_f32 v25, v25, abs(v{CC+2}), abs(v{CC+3})"]
    red += [f"v_max_f32_dpp v25, v25, v25 row_ror:{rot} row_mask:0xf bank_mask:0xf" for rot in (8, 4, 2, 1)]
    red += ["v_mov_b32 v26, v25", "v_permlane16_swap_b32 v25, v26", "v_max_f32 v25, v25, v26",
            "v_mov_b32 v26, v25", "v_permlane32_swap_b32 v25, v26"]
    for k, grp in enumerate(zip(*ops)):
        A(red[k]); A(list(grp))
    A("v_max_f32 v25, v25, v26")
    for mu in range(2):
        A(f"v_mul_f32 v{ARE+mu}, v{ARE+mu}, v{DT}")
        A(f"v_mul_f32 v{AIM+mu}, v{AIM+mu}, v{DT}")
        A(f"v_mul_f32 v{ARE+mu}, {f32(-LOG2E)}, v{ARE+mu}")
    A("v_and_b32 v25, 0x7f800000, v25")
    A("v_max_u32 v25, 0x00800000, v25")
    A("v_min_u32 v25, 0x7e800000, v25")
    A("v_sub_u32 v26, 0x7f000000, v25")
    for i in range(4): A(f"v_mul_f32 v{CC+i}, v{CC+i}, v26")
    A(f"v_mul_f32 v{KSC}, v25, v{DT}")
    A(f"v_add_f32 v{KSC}, v{KSC}, v{KSC}")
    A(f"v_mov_b32 v23, {f32(C_HI)}")
    A(f"v_mov_b32 v24, {f32(C_LO)}")
    for p in powers:
        b = WP[p]
        ops = [[], []]
        for mu in range(2):
            t = 48 + 4*mu
            o = ops[mu]
            o.append(f"v_mul_f32 v{t}, {f32(float(p))}, v{ARE+mu}")
            o.append(f"v_mul_f32 v{t+1}, {f32(float(-p if p == 8 else p))}, v{AIM+mu}")
            o.append(f"v_exp_f32 v{t}, v{t}")
            o.append(f"v_mul_f32 v{t+2}, v{t+1}, v23")
            o.append(f"v_fma_f32 v{t+3}, v{t+1}, v23, -v{t+2}")
            o.append(f"v_fmac_f32 v{t+3}, v{t+1}, v24")
            o.append(f"v_fract_f32 v{t+2}, v{t+2}")
            o.append(f"v_add_f32 v{t+2}, v{t+2}, v{t+3}")
            o.append(f"v_cos_f32 v{t+1}, v{t+2}")
            o.append(f"v_sin_f32 v{t+3}, v{t+2}")
            o.append(f"v_mul_f32 v{b+2*mu}, v{t}, v{t+1}")
            o.append(f"v_mul_f32 v{b+2*mu+1}, v{t}, v{t+3}")
        for x, y in zip(*ops): A(x); A(y)

def kgen_body(A, st, r0_sreg, part, packed, CC, KSC, WP, G):
    if G is None: G = 4 if part == 1 else 8
    A("v_lshlrev_b32 v2, 3, v0")
    A(f"v_add_u32 v2, s{st}, v2")
    A("v_and_b32 v4, 15, v0")
    A("v_lshrrev_b32 v5, 4, v0")
    A(f"v_and_b32 v3, {G-1}, v0")
    A("v_mul_u32_u24 v3, 528, v3")
    A("v_lshl_add_u32 v3, v5, 4, v3")
    A(f"v_add_u32 v3, s{st}, v3")
    Z = 48; TT = 52; PK = 56; SS = CC
    OF = 64; BT = [96, 128, 96]; KA = 160
    def cmul(dst, z, w):
        o = []
        for mu in range(2):
            o.append(f"v_pk_mul_f32 {vr(TT+2*mu,2)}, {vr(z+2*mu,2)}, {vr(w+2*mu,2)} op_sel:[0,0] op_sel_hi:[0,1]")
        for mu in range(2):
            o.append(f"v_pk_fma_f32 {vr(dst+2*mu,2)}, {vr(z+2*mu,2)}, {vr(w+2*mu,2)}, {vr(TT+2*mu,2)} op_sel:[1,1,0] op_sel_hi:[1,0,1] neg_lo:[0,1,0]")
        return o
    if part != 1:
        A(cmul(WP[2], WP[1], WP[1])); A(cmul(WP[4], WP[2], WP[2]))
    else:
        A(cmul(SS, SS, WP[1024]))
    for i in range(12): A(f"v_mov_b32 v{KA+i}, 0")
    state = {"row": 0}
    def emit(src, nxt, dst, last=False):
        j = state["row"]
        pk = PK + 2*(j & 1)
        A(f"v_cvt_pk_f16_f32 v{pk}, v{src}, v{src+1}")
        A(f"v_cvt_pk_f16_f32 v{pk+1}, v{src+2}, v{src+3}")
        A(nxt)
        A(f"ds_write_b64 v2, {vr(pk,2)} offset:{528*(j % G)}")
        if j % G == G - 1 or last:
            m = ((1 << G) - 1) << (j - j % G)
            m = m | (m << 16)
            if G < 16: set_exec(A, hex(m), hex(m))
            for ks in range(8): A(f"ds_read_b128 {vr(dst+4*ks,4)}, v3 offset:{64*ks}")
            if G < 16: A("s_mov_b64 exec, -1")
        state["row"] = (j + 1) & 15
    def kmm(T):
        for ks in range(8):
            A(f"v_mfma_f32_16x16x32_f16 {vr(KA+4*T,4)}, {vr(BT[T]+4*ks,4)}, {vr(OF+4*ks,4)}, {vr(KA+4*T,4)}")
    A(f"v_mov_b32 v{Z}, 1.0"); A(f"v_mov_b32 v{Z+1}, 0"); A(f"v_mov_b32 v{Z+2}, 1.0"); A(f"v_mov_b32 v{Z+3}, 0")
    for j in range(16): emit(Z, cmul(Z, Z, WP[8]) if j < 15 else [], OF)
    rowno = 32 if part == 1 else 0
    ilast = 7 if part == 0 else 16
    for i in (range(8) if part == 0 else range(8, 17) if part == 1 else range(17)):
        sub, w = (8, 1) if i < 2 else (4, 2) if i < 4 else (2, 4) if i < 8 else (1, None)
        for e in range(sub):
            src = SS if e == 0 else Z
            if e < sub - 1: nxt = cmul(Z, src, WP[w])
            elif i < ilast: nxt = cmul(SS, SS, WP[128])
            else:           nxt = []
            emit(src, nxt, BT[rowno >> 4], last=(i == 16))
            rowno += 1
            if rowno == 24:
                A(f"s_waitcnt lgkmcnt({8 if G == 16 else 15})"); kmm(0)
    if part == 0:
        A("s_waitcnt lgkmcnt(0)"); kmm(1)
    elif part == 1:
        A("s_waitcnt lgkmcnt(0)"); kmm(2)
    else:
        A("s_waitcnt lgkmcnt(15)"); kmm(1)
        A("s_waitcnt lgkmcnt(0)"); kmm(2)
    A("v_lshlrev_b32 v8, 4, v4")
    A(f"v_sub_u32 v8, s{r0_sreg}, v8")
    A("v_lshlrev_b32 v9, 10, v5")
    A("v_sub_u32 v9, v8, v9")
    A("v_lshlrev_b32 v10, 9, v5")
    A("v_sub_u32 v10, v8, v10")
    A("v_lshlrev_b32 v11, 8, v5")
    A("v_sub_u32 v11, v8, v11")
    A("v_lshrrev_b32 v6, 1, v5")
    A("v_lshlrev_b32 v6, 8, v6")
    A("v_and_b32 v7, 1, v5")
    A("v_lshl_add_u32 v6, v7, 3, v6")
    A("v_sub_u32 v8, v8, v6")
    for i in (range(8) if part == 0 else range(8, 12) if part == 1 else range(12)):
        A(f"v_mul_f32 v{KA+i}, v{KA+i}, v{KSC}")
    if part != 0:
        Q = 64
        for r in range(4):
            A(f"v_cvt_pk_bf16_f32 v{Q+2*r}, v{KA+8+r}, v{KA+8+r}")
            A(f"v_mov_b32 v{Q+2*r+1}, v{Q+2*r}")
        for r in range(4):
            off = 2*(2056 - 1024 - 128*r)
            set_exec(A, -1, 1 if r == 0 else 0)
            A(f"ds_write_b64 v9, {vr(Q+2*r,2)} offset:{off}")
            A(f"ds_write_b32 v9, v{Q+2*r} offset:{off+8}")
            if r == 0: A("s_mov_b32 exec_lo, 0xfffffffe")
            A(f"ds_write_b16 v9, v{Q+2*r} offset:{off+12}")
            A(f"s_mov_b32 exec_lo, {'0x55555554' if r == 0 else '0x55555555'}")
            A(f"ds_write_b16 v9, v{Q+2*r} offset:{off+14}")
            if r == 0: A("s_mov_b32 exec_lo, 0x55555555")
            A(f"ds_write_b16 v9, v{Q+2*r} offset:{off-2}")
        A("s_mov_b64 exec, -1")
    if part == 1: return
    A("v_mov_b32 v6, 0")
    A("v_lshlrev_b32 v7, 2, v0")
    A(f"v_add_u32 v7, s{r0_sreg}, v7")
    A("s_mov_b64 exec, 0x3ff")
    A(f"ds_write_b32 v7, v6 offset:4120")
    A("s_mov_b64 exec, -1")
    Q = 72
    for u in range(2):
        k0, k1 = KA+4+2*u, KA+4+2*u+1
        A(f"v_cvt_pk_bf16_f32 v{Q+4*u+3}, v{k1}, v{k1}")
        A(f"v_cvt_pk_bf16_f32 v{Q+4*u}, v{k1}, v{k0}")
        A(f"v_cvt_pk_bf16_f32 v{Q+4*u+1}, v{k0}, v{k0}")
    set_exec(A, 0, -1)
    for u in range(2):
        off = 2*(2054 - 128*u)
        A(f"ds_write_b32 v10, v{Q+4*u+3} offset:{off}")
        A(f"ds_write_b64 v10, {vr(Q+4*u,2)} offset:{off+4}")
        A(f"ds_write_b32 v10, v{Q+4*u+1} offset:{off+12}")
    A("s_mov_b64 exec, -1")
    Q = 80
    k = [KA+4+r for r in range(4)]
    A(f"v_cvt_pk_bf16_f32 v{Q}, v{k[3]}, v{k[3]}")
    A(f"v_cvt_pk_bf16_f32 v{Q+1}, v{k[2]}, v{k[2]}")
    A(f"v_cvt_pk_bf16_f32 v{Q+2}, v{k[2]}, v{k[1]}")
    A(f"v_cvt_pk_bf16_f32 v{Q+3}, v{k[0]}, v{k[0]}")
    A(f"v_cvt_pk_bf16_f32 v{Q+4}, v{KA+3}, v{KA+2}")
    A(f"v_cvt_pk_bf16_f32 v{Q+5}, v{KA+1}, v{KA}")
    A("s_mov_b64 exec, 0xffffffff")
    off = 2*(2053 - 256)
    A(f"ds_write_b16 v11, v{Q} offset:{off}")
    A(f"ds_write_b32 v11, v{Q+1} offset:{off+2}")
    A(f"ds_write_b64 v11, {vr(Q+2,2)} offset:{off+6}")
    A(f"ds_write_b16 v11, v{Q+3} offset:{off+14}")
    A("s_mov_b64 exec, -1")
    A(f"ds_write_b64 v8, {vr(Q+4,2)} offset:{2*2056}")

def r1_build(A, r0_sreg, r1_sreg, T):
    A("v_lshlrev_b32 v9, 4, v0")
    A(f"v_add_u32 v8, s{r0_sreg}, v9")
    A(f"v_add_u32 v9, s{r1_sreg}, v9")
    for it in range(5):
        if it == 4: A("s_mov_b64 exec, 0xf")
        A(f"ds_read_b128 {vr(T+8*it,4)}, v8 offset:{1024*it}")
        A(f"ds_read_b32 v{T+8*it+4}, v8 offset:{1024*it + 16}")
    A("s_mov_b64 exec, -1")
    A("s_waitcnt lgkmcnt(0)")
    for it in range(5):
        for i in range(4):
            A(f"v_alignbit_b32 v{T+8*it+i}, v{T+8*it+i+1}, v{T+8*it+i}, 16")
        if it == 4: A("s_mov_b64 exec, 0xf")
        A(f"ds_write_b128 v9, {vr(T+8*it,4)} offset:{1024*it}")
    A("s_mov_b64 exec, -1")

def conv(A, r0_sreg, r1_sreg, u_sreg, ch_sreg, hook=None):
    A("v_and_b32 v4, 15, v0")
    A("v_lshrrev_b32 v5, 4, v0")
    A("v_lshlrev_b32 v8, 3, v5")
    A("v_sub_u32 v8, v8, v4")
    A("v_add_u32 v8, 2043, v8")
    A("v_and_b32 v9, 1, v8")
    A("v_sub_u32 v8, v8, v9")
    A("v_lshlrev_b32 v8, 1, v8")
    A(f"s_sub_u32 s64, s{r1_sreg}, s{r0_sreg}")
    A("v_mul_lo_u32 v9, v9, s64")
    A("v_add_u32 v8, v8, v9")
    A(f"v_add_u32 v8, s{r0_sreg}, v8")
    RA = 24
    for a in range(4): A(f"v_subrev_u32 v{RA+a}, {960 + 1024*a}, v8")
    A("v_lshlrev_b32 v28, 5, v4")
    A("v_lshl_add_u32 v29, v5, 3, v28")
    A("v_lshl_add_u32 v28, v5, 4, v28")
    A(f"v_add_u32 v28, s{u_sreg}, v28")
    A(f"v_add_u32 v30, s{u_sreg}, v29")
    YA = 32
    FS = [64, 128]
    def creads(rho):
        b = FS[rho & 1]
        o = []
        for a in range(8):
            off = 128*(1 - (a & 1)) + 16*(7 - rho)
            o.append([f"ds_read2_b32 {vr(b+4*a,2)}, v{RA+(a>>1)} offset0:{off} offset1:{off+1}",
                      f"ds_read2_b32 {vr(b+4*a+2,2)}, v{RA+(a>>1)} offset0:{off+2} offset1:{off+3}"])
            o.append([f"ds_read_b128 {vr(b+32+4*a,4)}, v28 offset:{448 - 64*rho + 512*a}"])
        return o
    for g in creads(0): A(g)
    for i in range(32): A(f"v_mov_b32 v{YA+i}, 0")
    for rho in range(8):
        b = FS[rho & 1]
        m = []
        for a in range(8):
            for be in range(8 - a):
                n = a + be
                m.append(f"v_mfma_f32_16x16x32_bf16 {vr(YA+4*n,4)}, {vr(b+4*a,4)}, {vr(b+32+4*be,4)}, {vr(YA+4*n,4)}")
        A("s_waitcnt lgkmcnt(0)")
        A(interleave(m, creads(rho+1) if rho < 7 else [[f"ds_read_b64 {vr(FS[0]+2*n,2)}, v30 offset:{480 + 512*n}"] for n in range(8)]))
        if rho == HOOKR and hook: hook()
    A(f"s_lshl_b32 s64, s{ch_sreg}, 12")
    A(f"s_add_u32 s64, s64, {WS_AT}")
    psrd(A, 4, P_WS, "s64", 4096)
    A("s_waitcnt lgkmcnt(0)")
    A("v_lshlrev_b32 v21, 16, v215")
    A("s_nop 3")
    T = FS[1]; DSK = 21
    for n in range(8):
        for j in range(2):
            u = FS[0] + 2*n + j; y = YA + 4*n + 2*j; t = T + 8*((2*n+j) & 3)
            A(f"v_cvt_pk_bf16_f32 v{t}, v{y}, v{y+1}")
            A(f"v_lshlrev_b32 v{t+2}, 16, v{u}")
            A(f"v_and_b32 v{t+3}, 0xffff0000, v{u}")
            A(f"v_mul_f32 v{t+2}, v{t+2}, v{DSK}")
            A(f"v_mul_f32 v{t+3}, v{t+3}, v{DSK}")
            A(f"v_and_b32 v{t+1}, 0xffff0000, v{t}")
            A(f"v_cvt_pk_bf16_f32 v{t+2}, v{t+2}, v{t+3}")
            A(f"v_lshlrev_b32 v{t}, 16, v{t}")
            A(f"v_and_b32 v{t+3}, 0xffff0000, v{t+2}")
            A(f"v_lshlrev_b32 v{t+2}, 16, v{t+2}")
            A(f"v_add_f32 v{t+1}, v{t+1}, v{t+3}")
            A(f"v_add_f32 v{t}, v{t}, v{t+2}")
            A(f"v_cvt_pk_bf16_f32 v{u}, v{t}, v{t+1}")
        A.vm(f"buffer_store_dwordx2 {vr(FS[0]+2*n,2)}, v29, s[4:7], 0 offen offset:{512*n} sc1")
```

```python
import sys
from fz_common import *
import fz_ssm as ssm
NAME = "gated_mix__ssm_conv_s4d__mixer_gmlp__prompt_kernel"
NSSM = 144
OPT = set(a[2:] for a in sys.argv if a.startswith("--"))
U_BASE = 81920
R1_BASE = 3*STG + 64
LDS_AT = 3*STG + 19456
LDS_G = LDS_AT + 10240
XH = LDS_X + 1024 + 4*ssm.RSZ
LDS_CNT = XH + 4096
ZL = 64
S_O1, S_O3, S_CW, S_CH = 3, 75, 31, 30
S_R0 = 0
S_UTQ = 0
S_K0 = 1
KHOOK = 3800
TP = 2 if 'th' in OPT else 4 if 'tq' in OPT else 1
PD = 1 if 'pd1' in OPT else 2
NC = 'nocatch' in OPT
LASTB = 16 if NC else 15
KM17 = 2500
QN = 13 if 'qn13' in OPT else 12
QS = QN - 2
QP = 14 if 'qp14' in OPT else 15
TQ = (3, 5, 7) if 'tq3' in OPT else ()
PSLEEP = 8 if 'ps8' in OPT else 2 if 'ps2' in OPT else 4
S_KS, S_KR = 24, 31
KB0, KB1, KB2, KBG = 3000, 2300, 1100, 150
NPRE = 2 if 'pre2' in OPT else 4 if 'pre4' in OPT else 3
KSPLIT = (0.40, 0.50)
VB, VA = 250, 251
n = NAME

def touch(A, p, nbytes, idx_sreg, vdst, lbl):
    if "notouch" in OPT: return
    A(f"s_cmp_ge_u32 s{idx_sreg}, {(nbytes + 8191) // 8192}")
    A(f"s_cbranch_scc1 {lbl}")
    psrd(A, 4, p, None, nbytes)
    A(f"s_lshl_b32 s64, s{idx_sreg}, 13")
    A(f"buffer_load_dword v{vdst}, v1, s[4:7], s64 offen")
    if "touch64" in OPT:
        A(f"buffer_load_dword v{vdst+1}, v1, s[4:7], s64 offen offset:64")
    A.label(lbl)

def header(H):
    kernel_begin(H, n)
    H("s_cmp_ge_u32 s2, 256")
    H(f"s_cbranch_scc1 {n}_exit")
    H("s_load_dwordx16 s[32:47], s[0:1], 0")
    H("s_load_dwordx16 s[48:63], s[0:1], 64")
    H.stamp(0); H.stamp(1, True)
    H("v_lshrrev_b32 v1, 6, v0")
    H("s_and_b32 s3, s2, 7")
    H("s_lshr_b32 s30, s2, 3")
    H(f"v_readfirstlane_b32 s{S_WAVE}, v1")
    H("s_and_b32 s64, s3, 3")
    H("s_lshl_b32 s64, s64, 2")
    H("s_and_b32 s65, s30, 3")
    H(f"s_add_u32 s{S_FT}, s64, s65")
    H("s_lshr_b32 s64, s3, 2")
    H("s_lshr_b32 s66, s30, 2")
    if "ttblk" in OPT:
        H("s_lshl_b32 s64, s64, 3")
    else:
        H("s_lshl_b32 s66, s66, 1")
    H(f"s_add_u32 s{S_TT}, s64, s66")
    if "map3new" not in OPT:
        H("s_lshr_b32 s64, s3, 1")
        H("s_lshl_b32 s64, s64, 3")
        H("s_lshr_b32 s66, s30, 2")
        H(f"s_add_u32 s{S_T64}, s64, s66")
        H("s_and_b32 s64, s3, 1")
        H("s_lshl_b32 s64, s64, 2")
        H(f"s_add_u32 s{S_J}, s64, s65")
    else:
        H("s_lshl_b32 s64, s3, 2")
        H("s_lshr_b32 s65, s30, 3")
        H(f"s_add_u32 s{S_T64}, s64, s65")
        H(f"s_and_b32 s{S_J}, s30, 7")
    H(f"s_and_b32 s{S_W}, s{S_WAVE}, 3")
    H("v_and_b32 v0, 63, v0")
    H(f"s_cmp_ge_u32 s{S_WAVE}, 4")
    H(f"s_cbranch_scc1 {n}_L")
    H("s_getpc_b64 s[64:65]")
    H.label(f"{n}_pc")
    H(f"s_sub_u32 s4, s64, {n}_pc-{n}")
    H("s_subb_u32 s5, s65, 0")
    H(f"s_mov_b32 s6, {n}_end-{n}")
    H("s_mov_b32 s7, 0x20000")
    H("s_lshl_b32 s66, s30, 2")
    H(f"s_add_u32 s66, s66, s{S_W}")
    H("s_lshl_b32 s66, s66, 10")
    H("v_lshlrev_b32 v1, 4, v0")
    H("buffer_load_dwordx4 v[240:243], v1, s[4:7], s66 offen")
    late_ids(H)
    H("s_waitcnt lgkmcnt(0)")
    H(f"s_sub_u32 s67, s{S_CH}, 576")
    H(f"s_cmp_ge_u32 s{S_FT}, 9")
    H(f"s_cselect_b32 s67, s67, s{S_CH}")
    ssm.kgen_load(H, 67)
    H(f"s_branch {n}_C")
    H.label(f"{n}_L")

def late_ids(A):
    A(f"s_lshl_b32 s64, s{S_TT}, 4")
    A(f"s_add_u32 s{S_O1}, s64, s{S_FT}")
    A(f"s_lshl_b32 s64, s{S_T64}, 3")
    A(f"s_add_u32 s{S_O3}, s64, s{S_J}")
    A(f"s_lshl_b32 s{S_CW}, s2, 2")
    A(f"s_add_u32 s{S_CW}, s{S_CW}, s{S_W}")
    A(f"s_lshl_b32 s64, s{S_FT}, 4")
    A(f"s_add_u32 s64, s64, s{S_TT}")
    A(f"s_lshl_b32 s64, s64, 2")
    A(f"s_add_u32 s{S_CH}, s64, s{S_W}")

def gen_L(A, diag):
    A.vshift = 190
    rowperm_voff(A, 2, 1152)
    A("v_lshrrev_b32 v6, 4, v0")
    A(f"s_and_b32 s64, s{S_W}, 1")
    A("s_lshl_b32 s65, s64, 2")
    A("v_add_u32 v7, s65, v6")
    A("v_and_b32 v8, 15, v0")
    A("v_lshlrev_b32 v7, 1, v7")
    A("v_xor_b32 v8, v8, v7")
    A("s_lshl_b32 s65, s64, 3")
    A(f"s_lshr_b32 s66, s{S_W}, 1")
    A("s_lshl_b32 s66, s66, 2")
    A("s_add_u32 s65, s65, s66")
    A("v_add_u32 v6, s65, v6")
    A("v_mul_u32_u24 v6, 9216, v6")
    A("v_lshl_add_u32 v3, v8, 4, v6")
    A(f"s_lshl_b32 s65, s{S_FT}, 8")
    A("v_add_u32 v3, s65, v3")
    A("v_lshrrev_b32 v6, 1, v0")
    A("v_and_b32 v7, 3, v6")
    A("v_and_b32 v8, 4, v6")
    A("v_lshl_or_b32 v7, v8, 1, v7")
    A("v_and_b32 v8, 8, v6")
    A("v_lshrrev_b32 v8, 1, v8")
    A("v_or_b32 v7, v7, v8")
    A(f"s_lshl_b32 s65, s{S_W}, 4")
    A("v_add_u32 v7, s65, v7")
    A("v_mul_u32_u24 v7, 9216, v7")
    A("v_and_b32 v8, 1, v0")
    A("v_lshl_add_u32 v4, v8, 4, v7")
    A(f"s_lshl_b32 s64, s{S_FT}, 5")
    A("s_add_u32 s64, s64, 4096")
    A("v_add_u32 v4, s64, v4")
    A(f"s_lshl_b32 s68, s{S_W}, 10")
    A(f"s_lshl_b32 s69, s{S_W}, 9")
    A("s_add_u32 s69, s69, 16384")
    A(f"s_mul_i32 s64, s{S_TT}, {128*1152}")
    A("s_waitcnt lgkmcnt(0)")
    psrd(A, 8, P_U, "s64", 128*1152)
    psrd(A, 12, P_WIN, None, 576*9216)
    ready = {}
    A(f"s_and_b32 s74, s{S_TT}, 7" if "ttblk" in OPT else f"s_lshr_b32 s74, s{S_TT}, 1")
    A(f"s_and_b32 s64, s{S_FT}, 3")
    A("s_lshl_b32 s64, s64, 1")
    A("s_add_u32 s74, s74, s64")
    A("s_cmp_ge_u32 s74, 9")
    A("s_cselect_b32 s64, 9, 0")
    A("s_sub_u32 s74, s74, s64")
    if "norot" in OPT: A("s_mov_b32 s74, 0")
    A(f"s_sub_u32 s{S_UTQ}, s{S_FT}, s74")
    A(f"s_cmp_lt_i32 s{S_UTQ}, 0")
    A("s_cselect_b32 s64, 9, 0")
    A(f"s_add_u32 s{S_UTQ}, s{S_UTQ}, s64")
    A(f"s_cmp_ge_u32 s{S_FT}, 9")
    A(f"s_cselect_b32 s{S_UTQ}, 99, s{S_UTQ}")
    def dma_g1(q):
        base = (q % S) * STG
        A(f"s_mul_i32 s72, s74, {64*9216}")
        A("s_lshl_b32 s73, s74, 7")
        if q < 9: A("s_add_u32 s72, s72, 4608")
        for i in range(4):
            A(f"s_add_u32 m0, s68, {base + i*4096}")
            A(f"s_add_u32 s70, s72, {i*16*9216}")
            A.vm("buffer_load_dwordx4 v3, s[12:15], s70 offen lds")
            A(f"s_add_u32 m0, s68, {base + 18432 + i*4096}")
            A(f"s_add_u32 s71, s73, {i*32*1152}")
            A.vm("buffer_load_dwordx4 v2, s[8:11], s71 offen lds")
        A(f"s_add_u32 m0, s69, {base}")
        A("s_mov_b64 exec, 0xffffffff")
        ready[q] = A.vm("buffer_load_dwordx4 v4, s[12:15], s72 offen lds")
        A("s_mov_b64 exec, -1")
        A("s_add_u32 s74, s74, 1")
        A("s_cmp_eq_u32 s74, 9")
        A("s_cselect_b32 s74, 0, s74")
    def kst(cnt, dst):
        A(f"s_add_u32 s{dst}, s{cnt}, s{S_FT}")
        A(f"s_and_b32 s{dst}, s{dst}, 3")
        A(f"s_andn2_b32 s64, s{cnt}, 3")
        A(f"s_or_b32 s{dst}, s{dst}, s64")
        if "noxrot" not in OPT:
            A(f"s_andn2_b32 s64, s{S_FT}, 3")
            A(f"s_lshl_b32 s64, s64, 1")
            A(f"s_add_u32 s{dst}, s{dst}, s64")
            A(f"s_cmp_ge_u32 s{dst}, 28")
            A("s_cselect_b32 s64, 28, 0")
            A(f"s_sub_u32 s{dst}, s{dst}, s64")
        A(f"s_cmp_lt_u32 s{cnt}, {0 if 'noquad' in OPT else 28}")
        A(f"s_cselect_b32 s{dst}, s{dst}, s{cnt}")
        A(f"s_add_u32 s{dst}, s{dst}, s{S_K0}")
        A(f"s_and_b32 s{dst}, s{dst}, 31")
        A(f"s_add_u32 s{cnt}, s{cnt}, 1")
    def dma_g2_B(sb):
        kst(72, 66)
        A("s_lshl_b32 s66, s66, 7")
        if "bhot" in OPT: A("s_and_b32 s66, s66, 0x180")
        for i in range(4):
            if isinstance(sb, str):
                A(f"s_add_u32 m0, s68, {sb}"); A(f"s_add_u32 m0, m0, {18432 + i*4096}")
            else:
                A(f"s_add_u32 m0, s68, {sb + 18432 + i*4096}")
            A(f"s_add_u32 s70, s66, {i*131072}")
            r = A.vm(f"buffer_load_dwordx4 v{VB}, s[16:19], s70 offen lds")
        return r
    def dma_g2_A(sb):
        kst(73, 66)
        if "ahot" in OPT: A("s_and_b32 s66, s66, 3")
        A("s_mul_i32 s66, s66, 18432")
        A(f"s_add_u32 m0, s67, {sb}")
        A("s_add_u32 s70, s66, s67")
        for i in range(4):
            A.vm(f"buffer_load_dwordx4 v{VA}, s[20:23], s70 offen offset:{1024*i} sc1 lds")
        A(f"s_add_u32 m0, s69, {sb}")
        A("s_add_u32 s70, s66, s69")
        A("s_mov_b64 exec, 0xffffffff")
        r = A.vm(f"buffer_load_dwordx4 v{VA}, s[20:23], s70 offen sc1 lds")
        A("s_mov_b64 exec, -1")
        return r
    sl = lambda q: (q % S) * STG

    if "lstamp" in OPT: A.stamp(9)
    for q in range(NPRE):
        dma_g1(q)
        if "lstamp" in OPT and q == 0: A.stamp(10)
    if "lstamp" in OPT:
        A.wait_vm(ready[0]); A.stamp(11); A.used = {9, 10, 11}
    issued = NPRE
    A.stamp(2)
    late_ids(A)
    A.wait_vm(ready[0])
    A.bar("B0")
    A.stamp(3)
    if issued < 3: dma_g1(2); issued = 3
    rowperm_voff(A, VB, 4096)
    A(f"v_lshlrev_b32 v{VA}, 4, v0")
    A(f"s_lshl_b32 s64, s{S_TT}, 19")
    psrd(A, 16, P_WSP, "s64", 128*4096)
    A(f"s_mul_i32 s64, s{S_FT}, {32*18432}")
    A(f"s_add_u32 s64, s64, {WS_Z2F}")
    psrd(A, 20, P_WS, "s64", 32*18432)
    A(f"s_lshl_b32 s67, s{S_W}, 12")
    A("v_and_b32 v5, 15, v0")
    A("v_lshrrev_b32 v6, 4, v0")
    A("v_lshrrev_b32 v7, 2, v5")
    A("v_lshl_add_u32 v8, v6, 2, v7")
    A("v_lshrrev_b32 v9, 1, v8")
    A(f"s_and_b32 s64, s{S_W}, 1")
    A("s_lshl_b32 s64, s64, 2")
    A("v_xor_b32 v9, s64, v9")
    A("v_lshlrev_b32 v9, 4, v9")
    A("v_lshl_add_u32 v9, v8, 7, v9")
    A("v_and_b32 v10, 1, v0")
    A("v_lshl_add_u32 v9, v10, 3, v9")
    A("v_bfe_u32 v10, v0, 1, 1")
    A("v_lshl_add_u32 v9, v10, 12, v9")
    A(f"s_and_b32 s64, s{S_UTQ}, 3")
    A(f"s_mul_i32 s64, s64, {STG}")
    A(f"s_lshr_b32 s65, s{S_W}, 1")
    A("s_lshl_b32 s65, s65, 13")
    A("s_add_u32 s64, s64, s65")
    A("s_add_u32 s64, s64, 18432")
    A("v_add_u32 v13, s64, v9")
    A("v_and_b32 v14, 7, v0")
    A("v_lshlrev_b32 v14, 12, v14")
    A("v_lshl_add_u32 v14, v6, 4, v14")
    A("v_bfe_u32 v10, v0, 3, 1")
    A("v_lshl_add_u32 v14, v10, 6, v14")
    def ut_job(q):
        if "nout" in OPT: return
        A(f"s_cmp_lg_u32 s{S_UTQ}, {q}")
        A(f"s_cbranch_scc1 {n}_Lut{q}")
        A(f"s_getpc_b64 s[64:65]")
        A.label(f"{n}_Lpc{q}")
        A(f"s_add_u32 s64, s64, {n}_Lutf-{n}_Lpc{q}")
        A("s_addc_u32 s65, s65, 0")
        A("s_swappc_b64 s[70:71], s[64:65]")
        A.label(f"{n}_Lut{q}")
    def wsp_touch(i, nparts=4):
        if "touch" not in OPT: return
        psrd(A, 4, P_WSP, None, 2048*4096)
        A("s_lshl_b32 s64, s2, 2")
        A(f"s_add_u32 s64, s64, s{S_W}")
        A("s_lshl_b32 s64, s64, 13")
        A(f"s_add_u32 s64, s64, {i*8192//nparts}")
        A("v_lshlrev_b32 v5, 7, v0")
        if nparts > 1: A(f"s_mov_b64 exec, {hex((1 << (64//nparts)) - 1)}")
        A.vm("buffer_load_dword v57, v5, s[4:7], s64 offen")
        A("s_mov_b64 exec, -1")
    ut_job(0)
    for q in range(18):
        if q >= 16: continue
        if q + 1 < 18: A.wait_vm(ready[17 if q == LASTB else q+1])
        A.bar(f"M{q}")
        if "mstamp" in OPT and "m2" not in OPT and q < 8: A.stamp(4 + q)
        if "m2" in OPT and q == 7: A.used = {8}
        if "m2" in OPT and q >= 9 and q != 13: A.used.discard(8); A.stamp(4 + q - 9 - (q > 13))
        if q == QS: ln_stats_issue(A)
        k = 0
        while issued < 18 and issued <= q + S and k < 2:
            dma_g1(issued); issued += 1; k += 1
        if q + 1 < 9: ut_job(q + 1)
        if q == 0:
            A(f"s_cmp_lg_u32 s{S_W}, 0")
            A(f"s_cbranch_scc1 {n}_Lns0")
            A("s_and_b32 s66, s2, 15")
            A("s_lshl_b32 s66, s66, 2")
            A("s_add_u32 s66, s66, 64")
            A("s_mov_b32 s65, 1")
            A(f"s_atomic_add s65, s[{P_DBG}:{P_DBG+1}], s66")
            A.label(f"{n}_Lns0")
        if "t8" in OPT and q < 8: wsp_touch(q, 8)
        if "t16" in OPT and q < 8: wsp_touch(q, 16)
        if q == 7:
            wot_issue(A)
            if "tearly" in OPT:
                psrd(A, 4, P_DBG, None, 256)
                A("v_and_b32 v5, 15, v0")
                A("v_lshlrev_b32 v5, 2, v5")
                r_init = A.vm("buffer_load_dword v56, v5, s[4:7], 0 offen offset:64 sc1")
                wsp_touch(0, TP)
        if q == 8 and "tearly" in OPT:
            A.wait_vm(r_init)
            A("v_cmp_le_u32 vcc, 16, v56")
            ut_store(A)
            A("s_cmp_eq_u32 vcc_lo, -1")
            A(f"s_cbranch_scc1 {n}_Li_ok")
            psrd(A, 4, P_DBG, None, 256)
            init_wait(A, f"{n}_Li", 5, 4)
            wot_unit(A, 0)
        if q == 8 and "tearly" not in OPT:
            psrd(A, 4, P_DBG, None, 256)
            init_wait(A, f"{n}_Li", 5, 4)
            ut_store(A)
            wot_unit(A, 0)
            wsp_touch(0, TP)
        if q == 8:
            A.stamp(8)
        if q == QS + 1:
            A.stamp(4)
            ln_stats(A)
            A.stamp(5)
        if q == LASTB - 2:
            A("s_mov_b32 s72, -2")
            A("s_mov_b32 s73, 0")
            A(f"s_lshl_b32 s{S_K0}, s{S_TT}, 1")
            A(f"s_add_u32 s{S_K0}, s{S_K0}, 2")
            assert issued == 18
        if q == 14: dma_g2_B(sl(18))
        if q == QP:
            psrd(A, 4, P_WS, WS_MB, 4*MBSZ)
            A(f"s_cmp_lg_u32 s{S_W}, 0")
            A(f"s_cbranch_scc1 {n}_Lnz")
            mb_push(A, MB_Z2, 16, ["v_lshlrev_b32 v10, 4, v0", f"v_add_u32 v10, s{S_FT}, v10"], S_TT, 10, 4)
            A.label(f"{n}_Lnz")
            A.stamp(6)
        if q == 15:
            psrd(A, 8, P_WS, WS_MB, 4*MBSZ)
            dma_g2_B(sl(19))
            wot_unit(A, 1)
            wg_wait(A, f"{n}_Lgz", S_W, LDS_CNT + 16, 10, lambda: mb_wait(A, f"{n}_Lz2", MB_Z2, S_O1, 16, 12, 8, sleep=PSLEEP, depth=PD))
            A("s_waitcnt vmcnt(0)")
            A.stamp(7)
    A(f"v_mov_b32 v10, {LDS_CNT + 4}")
    A("s_mov_b32 s65, 0")
    A.label(f"{n}_Lrf")
    A("ds_read_b32 v11, v10")
    A("s_waitcnt lgkmcnt(0)")
    A("v_readfirstlane_b32 s66, v11")
    A("s_add_u32 s65, s65, 1")
    A("s_cmp_ge_u32 s66, 4")
    A(f"s_cbranch_scc1 {n}_Lrf2")
    A("s_sleep 1")
    A("s_cmp_lt_u32 s65, 2000000")
    A(f"s_cbranch_scc1 {n}_Lrf")
    A.label(f"{n}_Lrf2")
    if "g0" not in OPT: dma_g2_A(sl(20)); ready[20] = dma_g2_B(sl(20))
    if "g2" in OPT: dma_g2_A(sl(21)); ready[21] = dma_g2_B(sl(21))
    A.bar("G2S")
    A(f"s_cmp_lg_u32 s{S_W}, 0")
    A(f"s_cbranch_scc1 {n}_Lnw")
    A(f"s_sub_u32 s65, s{S_CH}, 576")
    A("s_lshr_b32 s65, s65, 2")
    A("s_cmp_ge_u32 s65, 72")
    A(f"s_cbranch_scc1 {n}_Lnw")
    A("s_mul_i32 s66, s65, 57")
    A("s_lshr_b32 s66, s66, 9")
    A("s_mul_i32 s70, s66, 9")
    A("s_sub_u32 s70, s65, s70")
    mb_push(A, MB_WF, 32, ["v_lshlrev_b32 v20, 3, v0", "v_add_u32 v20, s66, v20"], 70, 20, 8)
    A.label(f"{n}_Lnw")
    if "g0" in OPT: dma_g2_A(sl(20)); ready[20] = dma_g2_B(sl(20))
    A.bar("N18")
    if "g2" not in OPT: dma_g2_A(sl(21)); ready[21] = dma_g2_B(sl(21))
    dma_g2_B(sl(22)); ready[22] = dma_g2_A(sl(22))
    A.wait_vm(ready[20]); A.bar("N19")
    dma_g2_B(sl(23)); ready[23] = dma_g2_A(sl(23))
    A.wait_vm(ready[21]); A.bar("N20")
    dma_g2_B(sl(24)); ready[24] = dma_g2_A(sl(24))
    A(f"s_mov_b32 s74, {sl(25)}")
    def service():
        A("s_waitcnt vmcnt(18)")
        A("s_barrier")
        dma_g2_B("s74"); dma_g2_A("s74")
        A(f"s_add_u32 s74, s74, {STG}")
        A(f"s_cmp_eq_u32 s74, {S*STG}")
        A("s_cselect_b32 s74, 0, s74")
        A("s_sub_u32 s71, s71, 1")
    def loop(lbl, cnt):
        A(f"s_mov_b32 s71, {cnt}")
        A.label(lbl)
        service()
        A("s_cmp_lg_u32 s71, 0")
        A(f"s_cbranch_scc1 {lbl}")
    loop(f"{n}_Lg2", 12)
    A(f"s_lshl_b32 s64, s{S_O3}, 8")
    A(f"s_add_u32 s64, s64, {MB_WF - WS_MB}")
    A("v_min_u32 v10, 8, v0")
    A("v_lshlrev_b32 v10, 2, v10")
    A("buffer_load_dword v11, v10, s[8:11], s64 offen sc1")
    A(f"s_lshl_b32 s64, s{S_O1}, 8")
    A(f"s_add_u32 s64, s64, {MB_Z2 - WS_MB}")
    A("v_min_u32 v12, 19, v0")
    A("v_lshlrev_b32 v12, 2, v12")
    A("buffer_load_dword v13, v12, s[8:11], s64 offen sc1")
    loop(f"{n}_Lg2b", TPOS - 12)
    A("v_cmp_eq_u32 vcc, 0, v11")
    A("s_nop 0")
    A("s_cmp_eq_u64 vcc, 0")
    A(f"s_cbranch_scc1 {n}_Lw_ok")
    mb_wait(A, f"{n}_Lw", MB_WF, S_O3, 9, 10, 8)
    A(f"s_cmp_ge_u32 s{S_FT}, 9")
    A(f"s_cbranch_scc1 {n}_Lnkb")
    A("v_cmp_eq_u32 vcc, 0, v13")
    A("s_nop 0")
    A("s_cmp_eq_u64 vcc, 0")
    A(f"s_cbranch_scc1 {n}_Lkb_ok")
    mb_wait(A, f"{n}_Lkb", MB_Z2, S_O1, 20, 10, 8)
    A(f"s_mul_i32 s64, s{S_CH}, 2304")
    A(f"s_add_u32 s64, s64, {WS_KB}")
    psrd(A, 4, P_WS, "s64", 2304)
    A(f"s_mul_i32 s65, s{S_W}, {ssm.RSZ}")
    A(f"s_add_u32 m0, s65, {ssm.R0_BASE + ssm.R0_OFF}")
    A("v_lshlrev_b32 v10, 2, v0")
    for i in range(2): A(f"buffer_load_dwordx4 v{VA}, s[4:7], 0 offen offset:{1024*i} sc1 lds")
    A("s_mov_b64 exec, 0x7f")
    A("buffer_load_dword v10, s[4:7], 0 offen offset:2048 sc1 lds")
    A("s_mov_b64 exec, -1")
    A.label(f"{n}_Lnkb")
    if "touchA" in OPT:
        nsh = 4 if "map3new" in OPT else 8
        per = 2592 // (4*nsh)
        A(f"s_mul_i32 s64, s{S_J}, {72*4608}")
        A(f"s_add_u32 s64, s64, {WS_WOT}")
        psrd(A, 4, P_WS, "s64", 72*4608)
        A(f"s_and_b32 s64, s{S_T64}, {nsh-1}")
        A("s_lshl_b32 s64, s64, 2")
        A(f"s_add_u32 s64, s64, s{S_W}")
        A(f"s_mul_i32 s64, s64, {per*128}")
        A("v_lshlrev_b32 v10, 7, v0")
        done = 0
        while done < per:
            st = min(done, per - 64)
            A(f"s_add_u32 s65, s64, {st*128}")
            A("buffer_load_dword v11, v10, s[4:7], s65 offen sc1")
            done = st + 64
    G = g3_setup(A)
    A.vshift = 190
    q0 = 21 + TPOS
    base = A.nvm; A.nvm += 27
    for k in range(3): ready[q0+1+k] = base + 9*k + 8
    npre = 0
    for q in range(q0, 47):
        A.wait_vm(ready[q+1]); A("s_barrier")
        if q + 4 <= 49:
            dma_g2_B(sl(q+4)); ready[q+4] = dma_g2_A(sl(q+4))
        if q >= AEARLY and npre < DA:
            A.vshift = 0; G["loadA"](npre); npre += 1; A.vshift = 190
    for q in range(21, 47): A.bars.append(f"N{q}")
    G["r48"] = ready[48]
    g3_main(A, G, npre)
    if diag:
        A.stamp(12, True)
        stamp_dump(A, f"{n}_Ld", 1)
    A("s_endpgm")
    A.vshift = 190
    A.label(f"{n}_Lutf")
    for cb in range(4):
        A(f"v_xor_b32 v15, {16*cb}, v13")
        for a in range(2):
            A(f"ds_read_b64_tr_b16 {vr(UR+4*cb+2*a,2)}, v15 offset:{a*2048}")
    A("s_waitcnt lgkmcnt(0)")
    A("s_setpc_b64 s[70:71]")

UR = 160
def ut_store(A):
    A(f"s_cmp_ge_u32 s{S_FT}, 9")
    A(f"s_cbranch_scc1 {n}_Lus")
    A(f"s_lshl_b32 s64, s{S_FT}, 18")
    A(f"s_lshl_b32 s65, s{S_TT}, 8")
    A("s_add_u32 s64, s64, s65")
    A(f"s_lshr_b32 s65, s{S_W}, 1")
    A("s_lshl_b32 s65, s65, 7")
    A("s_add_u32 s64, s64, s65")
    A(f"s_and_b32 s65, s{S_W}, 1")
    A("s_lshl_b32 s65, s65, 17")
    A("s_add_u32 s64, s64, s65")
    A(f"s_add_u32 s64, s64, {WS_UT}")
    psrd(A, 4, P_WS, "s64", 31*4096 + 128)
    for cb in range(4):
        A(f"s_mov_b32 s64, {cb*32768}")
        A(f"buffer_store_dwordx4 {vr(UR+4*cb,4)}, v14, s[4:7], s64 offen sc1")
    A.label(f"{n}_Lus")

def ln_loads(A, T=16):
    for j in range(8):
        A(f"buffer_load_dwordx2 {vr(T+2*j,2)}, v{7 if j < 4 else 9}, s[4:7], s0 offen offset:{(j&3)*1024} sc1")

def ln_stats_issue(A):
    A(f"s_lshl_b32 s65, s{S_TT}, 14")
    A(f"s_add_u32 s65, s65, {WS_ST}")
    psrd(A, 4, P_WS, "s65", 16384)
    A("v_and_b32 v6, 31, v0")
    A("v_lshlrev_b32 v6, 3, v6")
    A("v_lshrrev_b32 v7, 5, v0")
    A("v_lshl_add_u32 v7, v7, 13, v6")
    A(f"s_lshl_b32 s0, s{S_W}, 8")
    A("v_add_u32 v9, 4096, v7")
    ln_loads(A); A.nvm += 8

def ln_stats(A):
    T = 16
    A("s_mov_b32 s65, 0")
    A("s_waitcnt vmcnt(18)")
    A(f"s_branch {n}_Lst_chk")
    A.label(f"{n}_Lst_poll")
    ln_loads(A)
    A("s_waitcnt vmcnt(0)")
    A.label(f"{n}_Lst_chk")
    A(f"v_max_u32 v8, v{T}, v{T+1}")
    for j in range(1, 8): A(f"v_max3_u32 v8, v8, v{T+2*j}, v{T+2*j+1}")
    A("v_cmp_eq_u32 vcc, -1, v8")
    A("s_add_u32 s65, s65, 1")
    A("s_cmp_eq_u64 vcc, 0")
    A(f"s_cbranch_scc1 {n}_Lst_ok")
    A("s_sleep 4")
    A("s_cmp_lt_u32 s65, 50000")
    A(f"s_cbranch_scc1 {n}_Lst_poll")
    A.label(f"{n}_Lst_ok")
    A(f"s_add_u32 s66, s0, {LDS_X}")
    A("v_add_u32 v6, s66, v6")
    for stp in (4, 2, 1):
        for j in range(stp):
            A(f"v_add_f32 v{T+2*j}, v{T+2*j}, v{T+2*(j+stp)}")
            A(f"v_add_f32 v{T+2*j+1}, v{T+2*j+1}, v{T+2*(j+stp)+1}")
    A(f"v_mov_b32 v{T+2}, v{T}")
    A(f"v_mov_b32 v{T+3}, v{T+1}")
    A("s_nop 1")
    A(f"v_permlane32_swap_b32 v{T}, v{T+2}")
    A(f"v_permlane32_swap_b32 v{T+1}, v{T+3}")
    A("s_nop 1")
    A(f"v_add_f32 v{T}, v{T}, v{T+2}")
    A(f"v_add_f32 v{T+1}, v{T+1}, v{T+3}")
    A(f"v_mul_f32 v{T}, {f32(1/2304)}, v{T}")
    A(f"v_mul_f32 v{T+1}, {f32(1/2304)}, v{T+1}")
    A(f"v_fma_f32 v{T+1}, -v{T}, v{T}, v{T+1}")
    A(f"v_max_f32 v{T+1}, 0, v{T+1}")
    bf16_round(A, T); bf16_round(A, T+1)
    A(f"v_add_f32 v{T+1}, {f32(1e-5)}, v{T+1}")
    bf16_round(A, T+1)
    A(f"v_sqrt_f32 v{T+1}, v{T+1}")
    A("s_nop 0")
    bf16_round(A, T+1)
    A(f"v_rcp_f32 v{T+2}, v{T+1}")
    A("s_nop 0")
    A(f"v_mul_f32 v{T+3}, v{T}, v{T+2}")
    A(f"v_sub_f32 v{T+3}, 0, v{T+3}")
    A(f"ds_write_b64 v6, {vr(T+2,2)}")
    A("s_waitcnt lgkmcnt(0)")

GX, GW = 64, 100
def gate_issue(A):
    A(f"s_cmp_ge_u32 s{S_FT}, 8")
    A(f"s_cbranch_scc1 {n}_gi")
    psrd(A, 4, P_U, None, 2048*1152)
    A(f"s_lshl_b32 s64, s{S_TT}, 3")
    A(f"s_add_u32 s64, s64, s{S_FT}")
    A("s_lshl_b32 s64, s64, 2")
    A(f"s_add_u32 s64, s64, s{S_W}")
    A("s_lshl_b32 s64, s64, 2")
    A("v_lshrrev_b32 v45, 4, v0")
    A("v_add_u32 v45, s64, v45")
    A("v_and_b32 v6, 15, v0")
    A("v_lshlrev_b32 v6, 3, v6")
    A("v_mul_u32_u24 v7, 1152, v45")
    A("v_add_u32 v7, v7, v6")
    A(f"s_movk_i32 s64, {4*1152}")
    for rd in range(1):
        for i in range(9): A(f"buffer_load_dwordx2 {vr(GX+18*rd+2*i,2)}, v7, s[4:7], {'s64' if rd else '0'} offen offset:{128*i}")
    psrd(A, 4, P_GATE, None, 1152)
    for i in range(9): A(f"buffer_load_dwordx2 {vr(GW+2*i,2)}, v6, s[4:7], 0 offen offset:{128*i}")
    A.label(f"{n}_gi")

def gate_job(A, rd=0):
    A(f"s_cmp_ge_u32 s{S_FT}, 8")
    A(f"s_cbranch_scc1 {n}_gj{rd}")
    A("v_mov_b32 v8, 0")
    A("s_waitcnt vmcnt(0)")
    for i in range(18):
        t = 36 + 4*(i & 1)
        A(f"v_lshlrev_b32 v{t}, 16, v{GX+18*rd+i}")
        A(f"v_and_b32 v{t+1}, 0xffff0000, v{GX+18*rd+i}")
        A(f"v_lshlrev_b32 v{t+2}, 16, v{GW+i}")
        A(f"v_and_b32 v{t+3}, 0xffff0000, v{GW+i}")
        A(f"v_mul_f32 v{t}, v{t}, v{t+2}")
        A(f"v_mul_f32 v{t+1}, v{t+1}, v{t+3}")
        A(f"v_cvt_pk_bf16_f32 v{t}, v{t}, v{t+1}")
        A(f"v_and_b32 v{t+1}, 0xffff0000, v{t}")
        A(f"v_lshlrev_b32 v{t}, 16, v{t}")
        A(f"v_add_f32 v8, v8, v{t+1}")
        A(f"v_add_f32 v8, v8, v{t}")
    for rot in (8, 4, 2, 1):
        A("s_nop 1")
        A(f"v_add_f32_dpp v8, v8, v8 row_ror:{rot} row_mask:0xf bank_mask:0xf")
    bf16_round(A, 8)
    A(f"v_mul_f32 v8, {f32(-LOG2E)}, v8")
    A("v_exp_f32 v8, v8")
    A("s_nop 0")
    A("v_add_f32 v8, 1.0, v8")
    A("v_rcp_f32 v8, v8")
    A("s_nop 0")
    bf16_round(A, 8)
    A("v_sub_f32 v9, 1.0, v8")
    bf16_round(A, 9)
    psrd(A, 4, P_WS, WS_G, 2048*8)
    A("v_lshlrev_b32 v5, 3, v45")
    set_exec(A, 0x00010001, 0x00010001)
    A(f"buffer_store_dwordx2 v[8:9], v5, s[4:7], 0 offen offset:{32*rd} sc1")
    A("s_mov_b64 exec, -1")
    A.label(f"{n}_gj{rd}")

def wot_issue(A):
    for i in range(5):
        A(f"v_add_u32 v8, {64*i}, v0")
        A("v_mul_u32_u24 v9, 7282, v8")
        A("v_lshrrev_b32 v9, 16, v9")
        A("v_mul_u32_u24 v10, 9, v9")
        A("v_sub_u32 v10, v8, v10")
        A("v_mul_u32_u24 v9, 1152, v9")
        A(f"v_lshl_add_u32 v{40+i}, v10, 4, v9")
    A(f"s_sub_u32 s65, s{S_CH}, 576")
    A("s_lshr_b32 s1, s65, 2")
    A("s_cmp_ge_u32 s1, 72")
    A(f"s_cbranch_scc1 {n}_sj1")
    A("s_mul_i32 s64, s1, 57")
    A("s_lshr_b32 s64, s64, 9")
    A("s_mul_i32 s66, s64, 9")
    A("s_sub_u32 s66, s1, s66")
    A("s_lshl_b32 s66, s66, 2")
    A(f"s_add_u32 s66, s66, s{S_W}")
    A("s_lshl_b32 s66, s66, 1")
    A("s_mul_i32 s24, s64, 72")
    A("s_add_u32 s24, s24, s66")
    A(f"s_mul_i32 s0, s66, {32*1152}")
    A("s_mul_i32 s64, s64, 144")
    A("s_add_u32 s0, s0, s64")
    A(f"s_mul_i32 s31, s{S_W}, {ssm.RSZ}")
    A(f"s_add_u32 s31, s31, {LDS_X + 1024}")
    psrd(A, 4, P_WOUT, None, 2304*1152)
    wot_dma(A)
    A.label(f"{n}_sj1")

def wot_dma(A):
    for i in range(5):
        A(f"s_add_u32 m0, s31, {1024*i}")
        A("s_mov_b64 exec, 0xffffffff" if i == 4 else "s_nop 0")
        A(f"buffer_load_dwordx4 v{40+i}, s[4:7], s0 offen lds")
    A("s_mov_b64 exec, -1")

def wot_unit(A, u):
    A(f"s_sub_u32 s65, s{S_CH}, 576")
    A("s_cmp_ge_u32 s65, 288")
    A(f"s_cbranch_scc1 {n}_sj2{u}")
    A("v_lshrrev_b32 v5, 2, v0")
    A("v_mul_u32_u24 v5, 144, v5")
    A("v_and_b32 v6, 3, v0")
    A("v_lshl_add_u32 v7, v6, 4, v5")
    A("v_add_u32 v7, s31, v7")
    A("v_lshl_add_u32 v8, v6, 3, v5")
    A("v_add_u32 v8, s31, v8")
    A("v_lshlrev_b32 v9, 4, v0")
    A("v_and_b32 v10, 7, v0")
    A("v_lshrrev_b32 v13, 4, v0")
    A("v_lshl_add_u32 v10, v13, 3, v10")
    A("v_lshlrev_b32 v10, 4, v10")
    A("v_add_u32 v10, 4096, v10")
    for q in range(5):
        for h in range(2):
            if q < 4: A(f"ds_read_b64_tr_b16 {vr(16+4*q+2*h,2)}, v7 offset:{h*16*144 + 64*(q>>1) + 8*(q&1)}")
            else:     A(f"ds_read_b64_tr_b16 {vr(16+4*q+2*h,2)}, v8 offset:{h*16*144 + 128}")
    A("s_waitcnt lgkmcnt(0)")
    if u == 0:
        psrd(A, 4, P_WOUT, None, 2304*1152)
        A(f"s_add_u32 s0, s0, {32*1152}")
        wot_dma(A)
    A("s_mul_i32 s64, s24, 4608")
    A(f"s_add_u32 s64, s64, {WS_WOT + u*4608}")
    psrd(A, 4, P_WS, "s64", 4608)
    for q in range(4):
        A(f"buffer_store_dwordx4 {vr(16+4*q,4)}, v9, s[4:7], 0 offen offset:{1024*q} sc1")
    set_exec(A, 0x00ff00ff, 0x00ff00ff)
    A(f"buffer_store_dwordx4 {vr(32,4)}, v10, s[4:7], 0 offen sc1")
    A("s_mov_b64 exec, -1")
    A.label(f"{n}_sj2{u}")

def sinit_wait(A, lbl):
    A("s_mov_b32 s64, 0")
    A.label(f"{lbl}_poll")
    A(f"s_load_dwordx4 s[4:7], s[{P_DBG}:{P_DBG+1}], 0 glc")
    A("s_waitcnt lgkmcnt(0)")
    for i in range(1, 4): A(f"s_min_u32 s4, s4, s{4+i}")
    A("s_add_u32 s64, s64, 1")
    A("s_cmp_ge_u32 s4, 64")
    A(f"s_cbranch_scc1 {lbl}_ok")
    A("s_sleep 16")
    A("s_cmp_lt_u32 s64, 20000")
    A(f"s_cbranch_scc1 {lbl}_poll")
    A.label(f"{lbl}_ok")

def call_helper(A, tag):
    A("s_getpc_b64 s[64:65]")
    A.label(f"{n}_Chp{tag}")
    A(f"s_add_u32 s64, s64, {n}_Chelp-{n}_Chp{tag}")
    A("s_addc_u32 s65, s65, 0")
    A("s_swappc_b64 s[70:71], s[64:65]")

def kb_flag(A, ch):
    A(f"s_lshr_b32 s65, s{ch}, 2")
    A("s_and_b32 s66, s65, 15")
    A("s_lshl_b32 s66, s66, 4")
    A("s_lshr_b32 s65, s65, 4")
    A("s_add_u32 s66, s66, s65")
    A(f"s_and_b32 s65, s{ch}, 3")
    A("s_add_u32 s65, s65, 16")
    mb_push(A, MB_Z2, 1, ["v_mov_b32 v6, s66"], 65, 6, 20)

def gen_C(A, diag):
    A.label(f"{n}_C")
    ACC2 = 16; Z2P = 16; ACC1 = 52
    SET = [124, 168]
    RX = 212; RW = 214; RWT = 222; VC1 = 15; SUM = 224; Z1P = 216
    if "noprio" not in OPT: A("s_setprio 2")
    psrd(A, 20, P_WS, WS_MB, 4*MBSZ)
    def clears(tag):
        A(f"s_cmp_lg_u32 s{S_W}, 0")
        A(f"s_cbranch_scc1 {n}_Cni{tag}")
        A.vshift = 184
        A("v_lshrrev_b32 v2, 4, v0")
        A("v_and_b32 v3, 15, v0")
        A("v_lshlrev_b32 v3, 4, v3")
        A("v_lshl_add_u32 v3, v2, 16, v3")
        A(f"v_mov_b32 v4, s{S_O3}")
        A(f"v_mov_b32 v5, s{S_O1}")
        A("v_cmp_eq_u32 vcc, 0, v2")
        A("s_nop 1")
        A("v_cndmask_b32 v4, v4, v5, vcc")
        A("v_lshl_add_u32 v3, v4, 8, v3")
        for i in range(4): A(f"v_mov_b32 v{4+i}, 0")
        A("buffer_store_dwordx4 v[4:7], v3, s[20:23], 0 offen sc1")
        A(f"v_mov_b32 v2, {LDS_CNT}")
        A("ds_write_b128 v2, v[4:7]")
        A("ds_write_b128 v2, v[4:7] offset:16")
        A(f"s_lshl_b32 s64, s{S_O1}, 10")
        A(f"s_add_u32 s64, s64, {WS_ST}")
        psrd(A, 4, P_WS, "s64", 1024)
        for i in range(4): A(f"v_mov_b32 v{8+i}, -1")
        A("v_lshlrev_b32 v1, 4, v0")
        A("buffer_store_dwordx4 v[8:11], v1, s[4:7], 0 offen sc1")
        A.vshift = 0
        A.label(f"{n}_Cni{tag}")
    A(f"s_mul_i32 s1, s{S_W}, {ssm.RSZ}")
    A(f"s_add_u32 s1, s1, {ssm.R0_BASE}")
    A(f"s_add_u32 s{S_R0}, s1, {ssm.R0_OFF}")
    A("s_waitcnt vmcnt(0)")
    clears("a")
    A(f"s_cmp_ge_u32 s{S_FT}, 9")
    A(f"s_cbranch_scc1 {n}_Cnp")
    if NPRE <= 3 and "g8" not in OPT:
        A(f"s_mul_i32 s1, s{S_W}, 8448")
        A(f"s_add_u32 s1, s1, {3*STG}")
        ssm.kgen(A, 1, S_R0, 0, True, G=16)
    else:
        ssm.kgen(A, 1, S_R0, 0, True)
    A(f"s_branch {n}_Cnk")
    A.label(f"{n}_Cnp")
    call_helper(A, "a")
    A.label(f"{n}_Cnk")
    A("v_and_b32 v5, 15, v0")
    A("v_lshrrev_b32 v6, 4, v0")
    A("v_lshrrev_b32 v7, 1, v5")
    A("v_xor_b32 v7, v7, v6")
    A("v_lshlrev_b32 v7, 4, v7")
    A("v_lshl_add_u32 v7, v5, 7, v7")
    A(f"s_lshl_b32 s64, s{S_W}, 12")
    A("s_add_u32 s64, s64, 18432")
    A(f"v_add_u32 v{RX}, s64, v7")
    A(f"v_xor_b32 v{RX+1}, 64, v{RX}")
    A(f"v_mov_b32 v14, v{RX}")
    A("v_and_b32 v2, 1, v6")
    A("v_lshrrev_b32 v3, 2, v5")
    A("v_lshl_add_u32 v2, v2, 2, v3")
    A("v_lshrrev_b32 v3, 1, v6")
    A("v_lshl_add_u32 v3, v3, 4, v2")
    A("v_and_b32 v4, 3, v5")
    A("v_lshlrev_b32 v4, 3, v4")
    A("v_lshl_add_u32 v7, v3, 8, v4")
    A("v_lshl_add_u32 v7, v2, 5, v7")
    for b in range(8): A(f"v_xor_b32 v{RW+b}, {32*b}, v7")
    A("v_lshl_add_u32 v7, v3, 5, v4")
    A(f"v_add_u32 v{RWT}, 16384, v7")
    A(f"v_mov_b32 v{VC1}, {f32(GC1)}")
    for r in range(72): A(f"v_mov_b32 v{ACC2+r}, 0")
    A("s_mov_b32 s68, 0")
    A(f"s_mov_b32 s69, {STG}")
    def g1_reads(setid, ks):
        b = SET[setid]
        X = lambda a: [f"ds_read_b128 {vr(b+4*a,4)}, v{RX+ks} offset:{a*2048}"]
        def W(t, h):
            if t < 8: return [f"ds_read_b64_tr_b16 {vr(b+8+4*t+2*h,2)}, v{RW+t} offset:{ks*8192+h*2048}"]
            return [f"ds_read_b64_tr_b16 {vr(b+8+4*t+2*h,2)}, v{RWT} offset:{ks*1024+h*256}"]
        out = [X(0), W(0,0), W(0,1), X(1)]
        for t in range(1, 9): out += [W(t,0), W(t,1)]
        return out
    def g1_mfmas(setid, half):
        b = SET[setid]
        out = []
        for t in range(9):
            for a in range(2):
                c = (ACC2 if half == 0 else ACC1) + (t*2+a)*4
                x = vr(b+4*a,4); w = vr(b+8+4*t,4)
                out.append(f"v_mfma_f32_16x16x32_bf16 {vr(c,4)}, {x}, {w}, {vr(c,4)}" if half == 0 else
                           f"v_mfma_f32_16x16x32_bf16 {vr(c,4)}, {w}, {x}, {vr(c,4)}")
        return out
    def advance(regs):
        o = [["s_add_u32 s68, s68, 1", "s_and_b32 s68, s68, 3"], [f"s_cselect_b32 s70, s69, {-3*STG}"]]
        return o + [[f"v_add_u32 v{r}, s70, v{r}"] for r in regs]
    def g1_stage(half, bar=True, last=False, drain=False):
        A("s_waitcnt lgkmcnt(0)")
        A(interleave(g1_mfmas(0, half), g1_reads(1, 1) + ([] if last else advance(range(RX, RWT+1))), per=2))
        A("s_waitcnt vmcnt(0) lgkmcnt(0)" if drain else "s_waitcnt lgkmcnt(0)")
        if bar: A("s_barrier")
        if last:
            A(f"v_mov_b32 v8, {LDS_CNT + 4}")
            A("v_mov_b32 v9, 1")
            A("s_mov_b64 exec, 1")
            A("ds_add_u32 v8, v9")
            A("s_mov_b64 exec, -1")
            A("s_nop 3")
        A(interleave(g1_mfmas(1, half), [] if last else g1_reads(0, 0), per=2))
    def g1_rep(half, lbl, per, cnt):
        A(f"s_mov_b32 s71, {cnt}")
        A.raw(".p2align 6")
        A.label(lbl)
        for u in range(per): g1_stage(half)
        A("s_sub_u32 s71, s71, 1")
        A("s_cmp_lg_u32 s71, 0")
        A(f"s_cbranch_scc1 {lbl}")
    def z2_norm():
        T = SET[1]; SC = T + 16
        A(f"s_lshl_b32 s65, s{S_W}, 8")
        A(f"s_add_u32 s65, s65, {LDS_X}")
        A("v_lshrrev_b32 v7, 4, v0")
        A("v_lshlrev_b32 v7, 6, v7")
        A("v_add_u32 v7, s65, v7")
        for i in range(4): A(f"ds_read_b128 {vr(SC+4*i,4)}, v7 offset:{16*i}")
        A(f"s_lshl_b32 s64, s{S_FT}, 5")
        A(f"s_lshl_b32 s66, s{S_TT}, 1")
        A("s_add_u32 s64, s64, s66")
        A("s_mul_i32 s64, s64, 18432")
        A(f"s_mul_i32 s66, s{S_W}, 9216")
        A("s_add_u32 s64, s64, s66")
        A(f"s_add_u32 s64, s64, {WS_Z2F}")
        psrd(A, 4, P_WS, "s64", 9216)
        A("v_lshlrev_b32 v6, 4, v0")
        A("s_movk_i32 s65, 4096")
        A("s_movk_i32 s66, 8192")
        A("s_waitcnt lgkmcnt(0)")
        for t in range(9):
            tb = T + 8*(t & 1)
            for j in range(4):
                A(f"v_lshlrev_b32 v{tb+2*j}, 16, v{Z2P+4*t+j}")
                A(f"v_and_b32 v{tb+2*j+1}, 0xffff0000, v{Z2P+4*t+j}")
            for i in range(8): A(f"v_fma_f32 v{tb+i}, v{tb+i}, v{SC+2*i}, v{SC+2*i+1}")
            for j in range(4): A(f"v_cvt_pk_bf16_f32 v{Z2P+4*t+j}, v{tb+2*j}, v{tb+2*j+1}")
            so = ["0", "s65", "s66"][t >> 2]
            A(f"buffer_store_dwordx4 {vr(Z2P+4*t,4)}, v6, s[4:7], {so} offen offset:{(t&3)*1024} sc1")
    def g1_loop(half):
        if half == 0:
            g1_rep(0, f"{n}_g10", 3, 3)
            for q in range(9): A.bars.append(f"M{q}")
            return
        if QN == 12: g1_rep(1, f"{n}_g11", 2, 2)
        else:        g1_rep(1, f"{n}_g11", 1, 5)
        z2_norm()
        for q in range(QN + 1, 18):
            g1_stage(1, bar=(q <= 15), last=(q == 17), drain=(q == QP))
        for q in range(9, 16): A.bars.append(f"M{q}")
        A(f"s_lshr_b32 s64, s{S_W}, 1")
        A(f"s_mul_i32 s64, s64, {STG}")
        A(f"s_and_b32 s66, s{S_W}, 1")
        A("s_mul_i32 s66, s66, 9216")
        A("s_add_u32 s64, s64, s66")
        A(f"s_add_u32 s64, s64, {(18 % S)*STG}")
        A("v_add_u32 v7, s64, v6")
        for t in range(9): A(f"ds_write_b128 v7, {vr(Z2P+4*t,4)} offset:{t*1024}")
    A("s_waitcnt vmcnt(3)")
    A(f"s_cmp_ge_u32 s{S_FT}, 9")
    A(f"s_cbranch_scc1 {n}_Cnw0")
    A("s_waitcnt vmcnt(0)")
    A.label(f"{n}_Cnw0")
    A.bar("B0")
    A.stamp(2)
    for g in g1_reads(0, 0): A(g)
    g1_loop(0)
    A.stamp(3)
    A("v_lshlrev_b32 v1, 4, v0")
    A(f"s_lshl_b32 s64, s{S_W}, 10")
    A("v_add_u32 v1, s64, v1")
    A(f"v_add_u32 v2, {XH}, v1")
    T = SET[1]
    for i in range(16): A(f"v_mov_b32 v{SUM+i}, 0")
    KC = 4
    for i, v in enumerate((GC1, GC1, GC0, GC0, 1.0, 1.0)): A(f"v_mov_b32 v{KC+i}, {f32(v)}")
    for t in range(9):
        regs = [ACC2 + 8*t + i for i in range(8)]
        A(gelu_pk(regs, T, KC))
        for i in range(4): A(f"v_pk_add_f32 {vr(SUM+2*i,2)}, {vr(SUM+2*i,2)}, {vr(regs[2*i],2)}")
        for i in range(4): A(f"v_pk_fma_f32 {vr(SUM+8+2*i,2)}, {vr(regs[2*i],2)}, {vr(regs[2*i],2)}, {vr(SUM+8+2*i,2)}")
        for j in range(4): A(f"v_cvt_pk_bf16_f32 v{Z2P+4*t+j}, v{regs[2*j]}, v{regs[2*j+1]}")
    for rot in (8, 4, 2, 1):
        for i in range(16):
            d = SUM + i if rot > 1 else T + 2*(i & 7) + (i >> 3)
            A(f"v_add_f32_dpp v{d}, v{SUM+i}, v{SUM+i} row_ror:{rot} row_mask:0xf bank_mask:0xf")
    A(f"s_lshl_b32 s64, s{S_O1}, 10")
    A(f"s_add_u32 s64, s64, {WS_ST}")
    psrd(A, 4, P_WS, "s64", 1024)
    A("v_lshrrev_b32 v6, 4, v0")
    A("v_lshlrev_b32 v6, 6, v6")
    A(f"s_lshl_b32 s65, s{S_W}, 8")
    A("v_add_u32 v6, s65, v6")
    if "st4" in OPT:
        set_exec(A, 0x00010001, 0x00010001)
        for i in range(4):
            A(f"buffer_store_dwordx4 {vr(T+4*i,4)}, v6, s[4:7], 0 offen offset:{16*i} sc1")
    else:
        A("v_and_b32 v7, 3, v0")
        A("v_lshl_add_u32 v6, v7, 4, v6")
        for i in range(1, 4):
            m = 0x00010001 << i
            set_exec(A, hex(m), hex(m))
            for k in range(4): A(f"v_mov_b32 v{T+k}, v{T+4*i+k}")
        set_exec(A, 0x000f000f, 0x000f000f)
        A(f"buffer_store_dwordx4 {vr(T,4)}, v6, s[4:7], 0 offen sc1")
    A("s_mov_b64 exec, -1")
    A("v_and_b32 v5, 15, v0")
    A("v_lshrrev_b32 v8, 2, v5")
    A("v_lshlrev_b32 v8, 3, v8")
    A("v_and_b32 v9, 3, v5")
    A("v_add_u32 v8, v8, v9")
    A(f"s_lshl_b32 s64, s{S_W}, 5")
    A("v_add_u32 v8, s64, v8")
    A("v_lshlrev_b32 v11, 1, v8")
    A(f"s_lshl_b32 s64, s{S_TT}, 8")
    psrd(A, 4, P_BSP, "s64", 256)
    A("buffer_load_ushort v12, v11, s[4:7], 0 offen")
    A("buffer_load_ushort v13, v11, s[4:7], 0 offen offset:8")
    A(f"s_lshl_b32 s65, s{S_CH}, 1")
    A("v_mov_b32 v3, s65")
    psrd(A, 4, P_D, None, 1152)
    A("buffer_load_ushort v11, v3, s[4:7], 0 offen")
    A(f"s_sub_u32 s67, s{S_CH}, {576 + 288 - 448}")
    A("s_min_u32 s67, s67, 575")
    A.vshift = 222
    ssm.kgen_load(A, 67)
    A.vshift = 0
    for r in range(72): A(f"v_mov_b32 v{ACC1+r}, 0")
    A.stamp(4)
    g1_loop(1)
    A.stamp(5)
    A("s_waitcnt lgkmcnt(0)")
    for i in range(5): A(f"v_mov_b32 v{24+i}, v{226+i}")
    for t in range(9):
        regs = [ACC1 + 8*t + i for i in range(8)]
        if "gelu1pre" in OPT: A(gelu_ops(regs, T, VC1))
        for nb in range(2):
            for j in range(2):
                dst = Z1P + ((nb*4 + (t >> 1))*4 + (t & 1)*2 + j if t < 8 else 32 + nb*2 + j)
                A(f"v_cvt_pk_bf16_f32 v{dst}, v{regs[4*nb+2*j]}, v{regs[4*nb+2*j+1]}")
    A.vshift = 120
    gate_issue(A)
    A.stamp(6)
    gate_job(A, 0)
    A.vshift = 0
    A("v_mov_b32 v215, v11")
    A(f"s_cmp_lt_u32 s{S_FT}, 9")
    A(f"s_cbranch_scc1 {n}_Cnk2")
    A(f"s_sub_u32 s67, s{S_CH}, 576")
    kb_flag(A, 67)
    A(f"s_sub_u32 s67, s{S_CH}, {576 + 288}")
    A("s_cmp_ge_u32 s67, 128")
    A(f"s_cbranch_scc1 {n}_Cnk2")
    A("s_add_u32 s67, s67, 448")
    for i in range(3): A(f"v_mov_b32 v{212+i}, v{12+i}")
    for i in range(5): A(f"v_mov_b32 v{4+i}, v{24+i}")
    call_helper(A, "b")
    for i in range(3): A(f"v_mov_b32 v{12+i}, v{212+i}")
    A("s_waitcnt vmcnt(0)")
    kb_flag(A, 67)
    A.label(f"{n}_Cnk2")
    A.stamp(7)
    ACC = 16; SET2 = [88, 132]; RA = 176; RB = 180
    A("v_lshlrev_b32 v10, 4, v0")
    for st in range(S):
        A(f"v_add_u32 v{RA+st}, {st*STG}, v10")
        A(f"v_add_u32 v{RB+2*st}, {st*STG}, v14")
        A(f"v_xor_b32 v{RB+2*st+1}, 64, v{RB+2*st}")
    A(f"s_lshl_b32 s64, s{S_TT}, 1")
    A(f"s_lshr_b32 s65, s{S_W}, 1")
    A("s_add_u32 s64, s64, s65")
    A(f"s_mul_i32 s64, s64, {72*4096}")
    A(f"s_and_b32 s65, s{S_W}, 1")
    A("s_lshl_b32 s65, s65, 11")
    A("s_add_u32 s64, s64, s65")
    A(f"s_add_u32 s64, s64, {WS_HF}")
    psrd(A, 16, P_WS, "s64", 72*4096)
    if "prestore" in OPT:
        A(f"s_lshl_b32 s70, s{S_FT}, 14")
        for i in range(1, 4): A(f"s_add_u32 s{70+i}, s70, {4096*i}")
        for j in range(8):
            A(f"buffer_store_dwordx4 v[200:203], v10, s[16:19], s{70+(j&3)} offen offset:{(j>>2)*1024}{'' if 'plain' in OPT else ' sc1'}")
    A("v_lshlrev_b32 v12, 16, v12")
    A("v_lshlrev_b32 v13, 16, v13")
    for a in range(9):
        for nb in range(2):
            for r in range(4): A(f"v_mov_b32 v{ACC+(a*2+nb)*4+r}, v{12+nb}")
    def g2_reads(setid, slot, ks):
        b = SET2[setid]
        out = []
        for kind, i in [("B", 0), ("A", 0), ("B", 1)] + [("A", a) for a in range(1, 9)]:
            if kind == "B": out.append([f"ds_read_b128 {vr(b+4*i,4)}, v{RB+2*slot+ks} offset:{i*2048}"])
            elif "lr6" in OPT and i >= 6 and not (slot == 2 and ks == 0 and False): out.append([])
            elif "lr4" in OPT and i >= 4: out.append([])
            else:           out.append([f"ds_read_b128 {vr(b+8+4*i,4)}, v{RA+slot} offset:{(ks*9+i)*1024}"])
        return out
    def g2_mfmas(setid):
        b = SET2[setid]
        am = (lambda a: a % 6) if "lr6" in OPT else (lambda a: a % 4) if "lr4" in OPT else (lambda a: a)
        return [f"v_mfma_f32_16x16x32_bf16 {vr(ACC+(a*2+nb)*4,4)}, {vr(b+8+4*am(a),4)}, {vr(b+4*nb,4)}, {vr(ACC+(a*2+nb)*4,4)}"
                for a in range(9) for nb in range(2)]
    GT = 188
    def gelu_fill():
        if "gelu1pre" in OPT: return []
        f = [["s_set_gpr_idx_on s70, 0x1", "s_nop 0"] + [f"v_mov_b32 v{GT+k}, v{Z1P+k}" for k in range(5)] + ["s_set_gpr_idx_off"]]
        for k in range(5):
            f.append([f"v_lshlrev_b32 v{GT+5+2*k}, 16, v{GT+k}"]); f.append([f"v_and_b32 v{GT+6+2*k}, 0xffff0000, v{GT+k}"])
        f += [[x] for x in gelu_ops([GT+5+i for i in range(10)], GT+15, VC1)]
        f.append(["s_set_gpr_idx_on s70, 0x8", "s_nop 0"] + [f"v_cvt_pk_bf16_f32 v{Z1P+k}, v{GT+5+2*k}, v{GT+6+2*k}" for k in range(5)] + ["s_set_gpr_idx_off", "s_add_u32 s70, s70, 5"])
        return f
    A(f"v_mov_b32 v{VC1}, {f32(GC1)}")
    A("s_mov_b32 s70, 0")
    for i in range(4): A(f"v_mov_b32 v{252+i}, 0")
    A("s_waitcnt lgkmcnt(0)")
    A.bar("G2S")
    A.stamp(8)
    for g in g2_reads(0, 18 % S, 0): A(g)
    A("s_mov_b32 s71, 8")
    A.raw(".p2align 6")
    A.label(f"{n}_g2")
    for rep in range(8 if "nstamp" in OPT else 1):
        if "nstamp" in OPT: A(f"s_memtime s[{80+2*rep}:{81+2*rep}]")
        fill = gelu_fill()
        for u in range(4):
            slot = (18 + u) % S
            for hf in range(2):
                A("s_waitcnt lgkmcnt(0)")
                if hf: A("s_barrier")
                rd = g2_reads(1, slot, 1) if hf == 0 else g2_reads(0, (slot+1) % S, 0)
                grp = []
                for gp in range(7):
                    g, cost = [], 0
                    while fill and cost < 2:
                        x = fill.pop(0); g += x
                        cost += sum(2 if ("v_exp" in y or "v_rcp" in y) else 1 for y in x)
                    grp.append(g)
                A(interleave(g2_mfmas(hf), rd + grp))
        assert not fill, len(fill)
    if "nstamp" in OPT:
        A("s_memtime s[96:97]"); A.diag = False
    else:
        A("s_sub_u32 s71, s71, 1")
        A("s_cmp_lg_u32 s71, 0")
        A(f"s_cbranch_scc1 {n}_g2")
    for q in range(18, 50): A.bars.append(f"N{q}")
    A.stamp(9)
    A(f"s_lshl_b32 s70, s{S_FT}, 14")
    for i in range(1, 4): A(f"s_add_u32 s{70+i}, s70, {4096*i}")
    A(f"s_lshr_b32 s64, s{S_FT}, 1")
    A("s_lshl_b32 s64, s64, 12")
    A(f"s_and_b32 s65, s{S_FT}, 1")
    A("s_lshl_b32 s65, s65, 11")
    A("s_add_u32 s64, s64, s65")
    A(f"s_and_b32 s65, s{S_W}, 1")
    A("s_lshl_b32 s65, s65, 10")
    A("s_sub_u32 s64, s64, s65")
    A(f"s_add_u32 s64, s64, {64*4096}")
    A("s_waitcnt vmcnt(0) lgkmcnt(0)")
    T2 = SET2[0]
    cnt = 0
    for j in range(9):
        for i in range(4):
            if j < 8: nb, a, rr = j >> 2, 2*(j & 3) + (i >> 1), 2*(i & 1)
            else:     nb, a, rr = i >> 1, 8, 2*(i & 1)
            c = ACC + (a*2+nb)*4 + rr
            t0 = T2 + 2*(cnt % 8); cnt += 1
            z = Z1P + 4*j + i
            A(f"v_lshlrev_b32 v{t0}, 16, v{z}")
            A(f"v_and_b32 v{t0+1}, 0xffff0000, v{z}")
            A(f"v_mul_f32 v{t0}, v{t0}, v{c}")
            A(f"v_mul_f32 v{t0+1}, v{t0+1}, v{c+1}")
            A(f"v_cvt_pk_bf16_f32 v{z}, v{t0}, v{t0+1}")
        if j < 8:
            A(f"buffer_store_dwordx4 {vr(Z1P+4*j,4)}, v10, s[16:19], s{70+(j&3)} offen offset:{(j>>2)*1024} sc1")
        else:
            A(f"buffer_store_dwordx4 {vr(Z1P+32,4)}, v10, s[16:19], s64 offen sc1")
    A.bar("EPI")
    if "estamp" in OPT: A.stamp(2)
    def pub2(tag):
        if "estamp" in OPT: A.stamp(3)
        A("s_waitcnt vmcnt(0)")
        if "estamp" in OPT: A.stamp(4)
        A(f"s_lshr_b32 s65, s{S_W}, 1")
        A("s_lshl_b32 s70, s65, 2")
        A(f"s_add_u32 s70, s70, {LDS_CNT + 8}")
        lds_arrive(A, ["v_mov_b32 v200, s70"], 200, 1, f"{n}_Cnh{tag}")
        A(f"s_lshl_b32 s71, s{S_TT}, 1")
        A("s_add_u32 s71, s71, s65")
        A("s_lshl_b32 s71, s71, 3")
        mb_push(A, MB_H, 8, ["v_add_u32 v200, s71, v0"], S_FT, 200, 20)
        A.label(f"{n}_Cnh{tag}")
    A(f"s_cmp_ge_u32 s{S_FT}, 9")
    A(f"s_cbranch_scc1 {n}_Cnc")
    A(f"s_mul_i32 s64, s{S_W}, {ssm.RSZ}")
    A(f"s_add_u32 s1, s64, {ssm.R0_BASE}")
    A(f"s_add_u32 s72, s64, {ssm.R0_BASE + ssm.R0_OFF}")
    A(f"s_add_u32 s73, s64, {R1_BASE}")
    A(f"s_mul_i32 s74, s{S_W}, {ssm.USZ}")
    A(f"s_add_u32 s74, s74, {U_BASE}")
    ssm.r1_build(A, 72, 73, 16)
    A("v_mov_b32 v6, 0"); A("v_mov_b32 v7, 0")
    A("v_lshlrev_b32 v8, 3, v0")
    A("v_add_u32 v8, s74, v8")
    set_exec(A, -1, 0x0fffffff)
    A("ds_write_b64 v8, v[6:7]")
    A("s_mov_b64 exec, -1")
    if "estamp" in OPT: A.stamp(5)
    ssm.conv(A, 72, 73, 74, S_CH, hook=lambda: pub2('a'))
    A("s_waitcnt vmcnt(0)")
    lds_arrive(A, [f"v_mov_b32 v6, {LDS_CNT}"], 6, 3, f"{n}_Cnc2")
    A(f"s_lshr_b32 s74, s{S_CH}, 2")
    A("s_mul_i32 s72, s74, 3641")
    A("s_lshr_b32 s72, s72, 16")
    A("s_mul_i32 s73, s72, 18")
    A("s_sub_u32 s73, s74, s73")
    mb_push(A, MB_A, 32, ["v_lshlrev_b32 v14, 3, v0", "v_add_u32 v14, s72, v14"], 73, 14, 20)
    A(f"s_branch {n}_Cnc2")
    A.label(f"{n}_Cnc")
    pub2("b")
    A.label(f"{n}_Cnc2")
    A.stamp(10)
    g3(A)
    if diag:
        A("s_waitcnt vmcnt(0)")
        A.diag = True
        if "tstamp" in OPT: A.stamp(5)
        A.stamp(12, True)
        stamp_dump(A, f"{n}_Cd", 0)
        if "dbgdump" in OPT:
            A("s_memtime s[64:65]")
            A("s_waitcnt lgkmcnt(0)")
            A("s_cmp_lg_u32 s2, 9")
            A(f"s_cbranch_scc1 {n}_exit")
            A(f"s_cmp_lg_u32 s{S_W}, 0")
            A(f"s_cbranch_scc1 {n}_exit")
            psrd(A, 4, P_DBG, None, 64)
            for i in range(2, 12):
                A(f"s_sub_u32 s66, s{76+2*i}, s76"); A(f"v_mov_b32 v{4+i-2}, s66")
            A("s_sub_u32 s66, s64, s76"); A("v_mov_b32 v14, s66")
            A("s_sub_u32 s66, s100, s78"); A("v_mov_b32 v15, s66")
            A("v_mov_b32 v1, 0")
            for i in range(3): A(f"buffer_store_dwordx4 v[{4+4*i}:{7+4*i}], v1, s[4:7], 0 offen offset:{16*i}")
    A.label(f"{n}_exit")
    A("s_endpgm")
    A.label(f"{n}_Chelp")
    ssm.kgen(A, 1, S_R0, 1, True, G=8)
    A("v_lshlrev_b32 v1, 4, v0")
    A(f"v_add_u32 v2, s{S_R0}, v1")
    for i in range(3): A(f"ds_read_b128 {vr(64+4*i,4)}, v2 offset:{1024*i}")
    A("s_mul_i32 s64, s67, 2304")
    A(f"s_add_u32 s64, s64, {WS_KB}")
    psrd(A, 4, P_WS, "s64", 2304)
    A("s_waitcnt lgkmcnt(0)")
    for i in range(3): A(f"buffer_store_dwordx4 {vr(64+4*i,4)}, v1, s[4:7], 0 offen offset:{1024*i} sc1")
    A("s_setpc_b64 s[70:71]")
    A.label(f"{n}_end")

NL = 4
TPOS = 19
AEARLY = 42 if 'a42' in OPT else 99
AHINT = int([a for a in OPT if a.startswith('ah')][0][2:]) if any(a.startswith('ah') and a[2:].isdigit() for a in OPT) else 10
DA, DB = (6, 3) if 'd63' in OPT else (4, 5) if 'd45' in OPT else (5, 4)
def g3_setup(A):
    ACC = 4; AB = 84; BB = AB + 20*DA
    assert BB + 16*DB <= 248
    A.vshift = 0
    A("v_lshlrev_b32 v2, 4, v0")
    A("v_and_b32 v3, 7, v0")
    A("v_lshrrev_b32 v1, 4, v0")
    A("v_lshl_add_u32 v3, v1, 3, v3")
    A("v_lshlrev_b32 v3, 4, v3")
    A("v_add_u32 v3, 4096, v3")
    A(f"s_mul_i32 s64, s{S_J}, {72*4608}")
    A(f"s_add_u32 s64, s64, {WS_WOT}")
    psrd(A, 4, P_WS, "s64", 72*4608)
    A(f"s_mul_i32 s64, s{S_T64}, {72*4096}")
    A(f"s_add_u32 s64, s64, {WS_HF}")
    psrd(A, 12, P_WS, "s64", 72*4096)
    A(f"s_and_b32 s64, s{S_T64}, 3")
    A("s_lshl_b32 s64, s64, 1")
    if "rotT" not in OPT: A(f"s_add_u32 s64, s64, s{S_J}")
    A("s_and_b32 s64, s64, 7")
    A("s_mul_i32 s64, s64, 9")
    if "rotJ" in OPT: A(f"s_mul_i32 s64, s{S_J}, 9")
    elif "rot3" not in OPT: A("s_mov_b32 s64, 0")
    A(f"s_add_u32 s64, s64, s{S_W}")
    A("s_mul_i32 s0, s64, 4608")
    A("s_lshl_b32 s31, s64, 12")
    NK = 18
    ra = {}; rb = {}
    def loadA(it):
        b = AB + 20*(it % DA)
        for q in range(4): A.vm(f"buffer_load_dwordx4 {vr(b+4*q,4)}, v2, s[4:7], s0 offen offset:{1024*q} sc1")
        ra[it] = A.vm(f"buffer_load_dwordx4 {vr(b+16,4)}, v{3 if it < DA else 255}, s[4:7], s0 offen sc1")
        A(f"s_add_u32 s0, s0, {4*4608}")
        A(f"s_cmp_ge_u32 s0, {72*4608}")
        A(f"s_cselect_b32 s24, {72*4608}, 0")
        A("s_sub_u32 s0, s0, s24")
    def loadB(it):
        b = BB + 16*(it % DB)
        for q in range(4): rb[it] = A.vm(f"buffer_load_dwordx4 {vr(b+4*q,4)}, v2, s[12:15], s31 offen offset:{1024*q} sc1")
        A(f"s_add_u32 s31, s31, {4*4096}")
        A(f"s_cmp_ge_u32 s31, {72*4096}")
        A(f"s_cselect_b32 s24, {72*4096}, 0")
        A("s_sub_u32 s31, s31, s24")
    return dict(ACC=ACC, AB=AB, BB=BB, NK=NK, ra=ra, rb=rb, loadA=loadA, loadB=loadB)

def g3_main(A, G, npre):
    ACC, AB, BB, NK, ra, rb, loadA, loadB = (G[k] for k in ('ACC','AB','BB','NK','ra','rb','loadA','loadB'))
    A.vshift = 0
    A(f"s_cmp_ge_u32 s{S_FT}, 9")
    A(f"s_cbranch_scc1 {n}_Lnu1")
    A(f"s_lshl_b32 s64, s{S_CH}, 12")
    A(f"s_add_u32 s64, s64, {WS_UT}")
    psrd(A, 16, P_WS, "s64", 4096)
    A(f"s_mul_i32 s66, s{S_W}, {ssm.USZ}")
    A(f"s_add_u32 m0, s66, {U_BASE + 480}")
    A("s_nop 0")
    for i in range(4):
        A(f"buffer_load_dwordx4 v2, s[16:19], 0 offen offset:{1024*i} sc1 lds")
    A.label(f"{n}_Lnu1")
    A.wait_vm(G["r48"])
    A.bar("N47")
    for r in range(80): A(f"v_mov_b32 v{ACC+r}, 0")
    A("s_waitcnt vmcnt(0)")
    if npre < DA: loadA(npre); npre += 1
    A.bar("N48")
    if npre < DA: loadA(npre); npre += 1
    A.bar("N49")
    A.bar("EPI")
    for it in range(npre, DA): loadA(it)
    A(f"s_mul_i32 s73, s{S_W}, 20480")
    for u in range(NL):
        A(f"s_add_u32 m0, s73, {u*4608}")
        A("s_nop 0")
        for q in range(4): A.vm(f"buffer_load_dwordx4 v2, s[4:7], s0 offen offset:{1024*q} sc1 lds")
        A(f"s_add_u32 m0, s73, {u*4608 + 4096}")
        A("s_add_u32 s24, s0, 4096")
        A("s_mov_b64 exec, 0xffffffff")
        rl = A.vm("buffer_load_dwordx4 v2, s[4:7], s24 offen sc1 lds")
        A("s_mov_b64 exec, -1")
        A(f"s_add_u32 s0, s0, {4*4608}")
    if "astag" in OPT:
        assert NK - DA - NL >= 8
        A(f"s_and_b32 s24, s{S_T64}, 7")
        A(f"s_mul_i32 s24, s24, {4*4608}")
        A("s_add_u32 s0, s0, s24")
    A("v_add_u32 v1, s73, v2")
    A("v_add_u32 v3, s73, v3")
    A("v_subrev_u32 v255, s73, v3")
    def ldsA(it):
        b = AB + 20*(it % DA); u = it - DA
        for q in range(4): A(f"ds_read_b128 {vr(b+4*q,4)}, v1 offset:{u*4608 + 1024*q}")
        A(f"ds_read_b128 {vr(b+16,4)}, v3 offset:{u*4608}")
        ra[it] = 0
    wg_wait(A, f"{n}_Lgh", S_W, LDS_CNT + 20, 248, lambda: mb_wait(A, f"{n}_Lh", MB_H, S_O3, 16, 250, 8, sleep=PSLEEP, depth=PD))
    A.stamp(9)
    A(f"s_lshl_b32 s64, s{S_T64}, 9")
    A(f"s_add_u32 s64, s64, {WS_G}")
    psrd(A, 16, P_WS, "s64", 512)
    A(f"s_mov_b32 m0, {LDS_G}")
    A("s_mov_b64 exec, 0xffffffff")
    A.vm("buffer_load_dwordx4 v2, s[16:19], 0 offen sc1 lds")
    A("s_mov_b64 exec, -1")
    if "lprio" in OPT: A("s_setprio 3")
    for it in range(DB): loadB(it)
    for it in range(NK):
        A.wait_vm(max(ra[it], rb[it]), " lgkmcnt(0)" if DA <= it < DA + NL else "")
        if "gstamp" in OPT and it in (0, 1, 3, 6, 9, 12, 15): A.stamp(2 + (0, 1, 3, 6, 9, 12, 15).index(it))
        a = AB + 20*(it % DA); b = BB + 16*(it % DB)
        ia = it - 1 + DA
        fa = []
        if it >= 1 and ia < NK:
            ab = AB + 20*(ia % DA)
            if ia < DA + NL:
                u = ia - DA
                fa = [f"ds_read_b128 {vr(ab+4*q,4)}, v1 offset:{u*4608 + 1024*q}" for q in range(4)] + [f"ds_read_b128 {vr(ab+16,4)}, v3 offset:{u*4608}"]
                ra[ia] = 0
            else:
                fa = [f"buffer_load_dwordx4 {vr(ab+4*q,4)}, v2, s[4:7], s0 offen offset:{1024*q} sc1" for q in range(4)] + [f"buffer_load_dwordx4 {vr(ab+16,4)}, v255, s[4:7], s0 offen sc1"]
        for nt in range(4):
            for q in range(5):
                c = ACC + (nt*5+q)*4
                if it < 16:
                    A(f"v_mfma_f32_16x16x32_bf16 {vr(c,4)}, {vr(a+4*q,4)}, {vr(b+4*nt,4)}, {vr(c,4)}")
                else:
                    for par in range(2):
                        A(f"v_mfma_f32_16x16x16_bf16 {vr(c,4)}, {vr(a+4*q+2*par,2)}, {vr(b+4*(2*par+(nt>>1))+2*(nt&1),2)}, {vr(c,4)}")
                if it == NK - 1 and nt*5 + q >= 4:
                    k = nt*5 + q - 4
                    A(f"ds_write_b128 v1, {vr(ACC+k*4,4)} offset:{k*1024}")
                if fa and (q == 2 or (q == 0 and nt == 0)):
                    x = fa.pop(0)
                    if x.startswith("ds_"): A(x)
                    else: ra[ia] = A.vm(x)
            if it + DB < NK:
                rb[it+DB] = A.vm(f"buffer_load_dwordx4 {vr(b+4*nt,4)}, v2, s[12:15], s31 offen offset:{1024*nt} sc1")
        assert not fa
        NP = DA + NL; NS = NK - NP
        def step(reg, unit, nxt):
            if nxt == NP and "astag" in OPT:
                A(f"s_and_b32 s24, s{S_T64}, 7")
                A(f"s_add_u32 s24, s24, 1")
                A(f"s_mul_i32 s24, s24, {4*unit}")
                A(f"s_add_u32 s{reg}, s{reg}, s24")
            else:
                A(f"s_add_u32 s{reg}, s{reg}, {4*unit}")
            if nxt > NP:
                A(f"s_cmp_ge_u32 s{reg}, {72*unit}")
                A(f"s_cselect_b32 s24, {4*NS*unit}, 0")
                A(f"s_sub_u32 s{reg}, s{reg}, s24")
        if it + DB < NK: step(31, 4096, it + DB + 1)
        if it >= 1 and NP <= ia < NK: step(0, 4608, ia + 1)
        if it == AHINT:
            A(f"v_mov_b32 v248, {LDS_CNT + 24}")
            A("ds_write_b32 v248, v248")
    A.stamp(10)
    for k in range(16, 20):
        if k == 17: A("s_nop 5")
        A(f"ds_write_b128 v1, {vr(ACC+k*4,4)} offset:{k*1024}")
    A("s_waitcnt lgkmcnt(0)")
    A.bar("RED")

def g3(A):
    A("v_lshlrev_b32 v2, 4, v0")
    A("v_lshrrev_b32 v4, 4, v0")
    A("v_and_b32 v5, 15, v0")
    A("v_lshrrev_b32 v6, 2, v5")
    A("v_lshlrev_b32 v6, 3, v6")
    A("v_and_b32 v7, 3, v5")
    A("v_add_u32 v6, v6, v7")
    A(f"s_lshr_b32 s70, s{S_W}, 1")
    A("s_lshl_b32 s70, s70, 5")
    A(f"s_and_b32 s66, s{S_W}, 1")
    A("s_lshl_b32 s66, s66, 2")
    A("s_add_u32 s70, s70, s66")
    A("v_add_u32 v6, s70, v6")
    A("v_lshlrev_b32 v15, 3, v6")
    A(f"v_add_u32 v15, {LDS_G}, v15")
    A(f"s_lshl_b32 s66, s{S_T64}, 6")
    A("v_add_u32 v6, s66, v6")
    A("v_mul_u32_u24 v6, 1152, v6")
    A(f"s_mul_i32 s66, s{S_J}, 144")
    A("v_add_u32 v6, s66, v6")
    A("v_lshl_add_u32 v10, v4, 4, v6")
    A("v_lshl_add_u32 v11, v4, 3, v6")
    psrd(A, 16, P_OUT, None, 2048*1152)
    A("v_lshrrev_b32 v12, 2, v5")
    A("v_lshl_add_u32 v13, v4, 3, v12")
    A("v_lshlrev_b32 v13, 7, v13")
    A("v_and_b32 v14, 3, v5")
    A("v_lshl_add_u32 v13, v14, 4, v13")
    A("s_lshl_b32 s70, s70, 1")
    A(f"s_add_u32 s70, s70, {LDS_AT}")
    A("v_add_u32 v13, s70, v13")
    A("v_lshl_add_u32 v12, v4, 2, v12")
    A("v_lshlrev_b32 v12, 7, v12")
    A("v_lshl_add_u32 v12, v14, 4, v12")
    A("v_add_u32 v12, s70, v12")
    A(f"s_cmp_lg_u32 s{S_W}, 0")
    A(f"s_cbranch_scc1 {n}_Cna")
    A(f"v_mov_b32 v16, {LDS_CNT + 24}")
    A("s_mov_b32 s65, 0")
    A.label(f"{n}_Cah")
    A("ds_read_b32 v17, v16")
    A("s_waitcnt lgkmcnt(0)")
    A("v_readfirstlane_b32 s66, v17")
    A("s_add_u32 s65, s65, 1")
    A("s_cmp_lg_u32 s66, 0")
    A(f"s_cbranch_scc1 {n}_Cah2")
    A("s_sleep 2")
    A("s_cmp_lt_u32 s65, 1000000")
    A(f"s_cbranch_scc1 {n}_Cah")
    A.label(f"{n}_Cah2")
    mb_wait(A, f"{n}_Ca", MB_A, S_O3, 18, 16, 20, sleep=8)
    A.stamp(11)
    A(f"s_mul_i32 s64, s{S_J}, {72*4096}")
    A(f"s_lshl_b32 s65, s{S_T64}, 7")
    A("s_add_u32 s64, s64, s65")
    A(f"s_add_u32 s64, s64, {WS_AT}")
    psrd(A, 12, P_WS, "s64", 71*4096+128)
    A("v_lshrrev_b32 v5, 3, v0")
    A("v_and_b32 v6, 7, v0")
    A("v_lshlrev_b32 v5, 12, v5")
    A("v_lshl_add_u32 v5, v6, 4, v5")
    for i in range(9):
        A(f"s_mov_b32 m0, {LDS_AT + 1024*i}")
        A(f"s_mov_b32 s70, {i*8*4096}")
        A("buffer_load_dwordx4 v5, s[12:15], s70 offen sc1 lds")
    A(f"v_mov_b32 v16, {LDS_CNT + 28}")
    A("s_waitcnt vmcnt(0)")
    A("ds_write_b32 v16, v16")
    A(f"s_branch {n}_Cna2")
    A.label(f"{n}_Cna")
    A(f"v_mov_b32 v16, {LDS_CNT + 28}")
    A("s_mov_b32 s65, 0")
    A.label(f"{n}_Cas")
    A("ds_read_b32 v17, v16")
    A("s_waitcnt lgkmcnt(0)")
    A("v_readfirstlane_b32 s66, v17")
    A("s_add_u32 s65, s65, 1")
    A("s_cmp_lg_u32 s66, 0")
    A(f"s_cbranch_scc1 {n}_Cna2")
    A("s_sleep 2")
    A("s_cmp_lt_u32 s65, 2000000")
    A(f"s_cbranch_scc1 {n}_Cas")
    A.label(f"{n}_Cna2")
    R = 96; AR = 16; T = 32
    for q in range(4):
        A(f"ds_read_b64_tr_b16 {vr(AR+2*q,2)}, v13 offset:{(32*(q>>1)+4*(q&1))*128}")
    A(f"ds_read_b64_tr_b16 {vr(AR+8,2)}, v12 offset:{64*128}")
    A("ds_read_b64 v[8:9], v15")
    A(f"s_mul_i32 s65, s{S_W}, 5120")
    A("v_add_u32 v14, s65, v2")
    A("v_add_u32 v3, 40960, v14")
    A("s_waitcnt lgkmcnt(0)")
    for i in range(10):
        A(f"v_lshlrev_b32 v{T+2*i}, 16, v{AR+i}")
        A(f"v_and_b32 v{T+2*i+1}, 0xffff0000, v{AR+i}")
    for i in range(20): A(f"v_mul_f32 v{T+i}, v8, v{T+i}")
    A("v_mov_b32 v8, v9")
    if "tstamp" in OPT: A.stamp(2)
    A.bar("RED")
    if "tstamp" in OPT: A.stamp(3); A("s_waitcnt lgkmcnt(0)")
    for q in range(5):
        for src in range(4):
            A(f"ds_read_b128 {vr(R+(src*5+q)*4,4)}, v{14 if src < 2 else 3} offset:{(src&1)*20480+q*1024}")
    O = 56
    for q in range(5):
        A(f"s_waitcnt lgkmcnt({min(15, 16 - 4*q)})")
        for h in range(2):
            r = R + 4*q + 2*h
            A(f"v_pk_add_f32 {vr(r,2)}, {vr(r,2)}, {vr(r+20,2)}")
            A(f"v_pk_add_f32 {vr(r+40,2)}, {vr(r+40,2)}, {vr(r+60,2)}")
        for h in range(2):
            r = R + 4*q + 2*h
            A(f"v_pk_add_f32 {vr(r,2)}, {vr(r,2)}, {vr(r+40,2)}")
        for h in range(2):
            r = R + 4*q + 2*h
            A(f"v_pk_fma_f32 {vr(T+4*q+2*h,2)}, {vr(r,2)}, v[8:9], {vr(T+4*q+2*h,2)}")
        for h in range(2):
            A(f"v_cvt_pk_bf16_f32 v{O+2*q+h}, v{T+4*q+2*h}, v{T+4*q+2*h+1}")
        if q == 1: A(f"buffer_store_dwordx4 {vr(O,4)}, v10, s[16:19], 0 offen")
        if q == 3: A(f"buffer_store_dwordx4 {vr(O+4,4)}, v10, s[16:19], 0 offen offset:64")
    if "tstamp" in OPT: A.stamp(4)
    A("s_mov_b64 exec, 0xffffffff")
    A(f"buffer_store_dwordx2 {vr(O+8,2)}, v11, s[16:19], 0 offen offset:128")
    A("s_mov_b64 exec, -1")

if __name__ == "__main__":
    diag = "--diag" in sys.argv
    out = [a for a in sys.argv[1:] if not a.startswith("--")][0]
    H = Stream(diag); C = Stream(diag); L = Stream(diag)
    header(H); gen_L(L, diag); gen_C(C, diag)
    assert C.bars == L.bars, [(a, b) for a, b in zip(C.bars, L.bars) if a != b][:5]
    launch = f"; @launch grid=(256,1,1) block=(512,1,1) lds={LDS_TOTAL}\n"
    if "--list" in sys.argv:
        launch = f"; @launch kernel={NAME} grid=(256,1,1) block=(512,1,1) lds={LDS_TOTAL}\n"
    if "nosc1" in OPT:
        L.lines = [l.replace(" sc1", "") if ("buffer_load_dwordx4" in l or "v201, v200, s[4:7]" in l) else l for l in L.lines]
    for flag in ("sc1", "nt", "sc0 sc1"):
        if "out" + flag.replace(" ", "") in OPT:
            C.lines = [l + " " + flag if ("buffer_store" in l and "s[16:19], 0 offen" in l) else l for l in C.lines]
    open(out, "w").write(HEADER + launch + '.amdgcn_target "amdgcn-amd-amdhsa--gfx950"\n.text\n' + H.text() + L.text() + C.text() + '.section .rodata,"a"\n' + kernel_desc(NAME, 256))
```

```python
from fz_common import *
R0_BASE = LDS_X + 1024
RSZ = 4800
R0_OFF = 640
R1SZ = 4160
USZ = 4608
import sys
HOOKR = 1 if "--hook1" in sys.argv else 0

def kgen_load(A, ch_sreg):
    A(f"s_lshl_b32 s64, s{ch_sreg}, 8")
    A("v_lshlrev_b32 v2, 2, v0")
    A(f"s_lshl_b32 s65, s{ch_sreg}, 1")
    A("v_mov_b32 v3, s65")
    for i, p in enumerate((P_LOGA, P_AIM, P_CR, P_CI)):
        psrd(A, 4, p, None, 576*256)
        A(f"buffer_load_dword v{4+i}, v2, s[4:7], s64 offen")
    psrd(A, 4, P_LOGDT, None, 1152)
    A("buffer_load_ushort v8, v3, s[4:7], 0 offen")

def kgen(A, st, r0_sreg, part, packed):
    ARE, AIM, CC = 12, 14, 16
    DT, KSC = 20, 22
    WP = {1: 28, 8: 32, 128: 36, 2: 40, 4: 44, 1024: 28}
    kgen_setup(A, ARE, AIM, CC, DT, KSC, WP, (1024, 8, 128) if part == 1 else (1, 8, 128))
    kgen_body(A, st, r0_sreg, part, packed, CC, KSC, WP)

KSTATE = [16, 20, 28, 36] + [64 + 4*i for i in range(8)]
def kstate_io(A, ch_sreg, store):
    A(f"s_mul_i32 s64, s{ch_sreg}, 12288")
    A(f"s_add_u32 s64, s64, {WS_KS}")
    psrd(A, 4, P_WS, "s64", 12288)
    A("v_lshlrev_b32 v1, 4, v0")
    A("s_movk_i32 s65, 4096"); A("s_movk_i32 s66, 8192")
    for i, r in enumerate(KSTATE):
        A(f"buffer_{'store' if store else 'load'}_dwordx4 {vr(r,4)}, v1, s[4:7], {['0','s65','s66'][i>>2]} offen offset:{(i&3)*1024} sc1")

def kgen_setup(A, ARE, AIM, CC, DT, KSC, WP, powers):
    A(f"v_lshlrev_b32 v{DT}, 16, v8")
    A(f"v_lshlrev_b32 v{ARE}, 16, v4");  A(f"v_and_b32 v{ARE+1}, 0xffff0000, v4")
    A(f"v_lshlrev_b32 v{AIM}, 16, v5");  A(f"v_and_b32 v{AIM+1}, 0xffff0000, v5")
    A(f"v_lshlrev_b32 v{CC}, 16, v6");   A(f"v_and_b32 v{CC+2}, 0xffff0000, v6")
    A(f"v_lshlrev_b32 v{CC+1}, 16, v7"); A(f"v_and_b32 v{CC+3}, 0xffff0000, v7")
    A(f"v_mov_b32 v23, {f32(L2E_HI)}")
    A(f"v_mov_b32 v24, {f32(L2E_LO)}")
    ops = []
    for k, r in enumerate((DT, ARE, ARE+1)):
        t = 48 + 3*k
        ops.append([f"v_mul_f32 v{t}, v{r}, v23", f"v_fma_f32 v{t+1}, v{r}, v23, -v{t}", f"v_fmac_f32 v{t+1}, v{r}, v24",
                    f"v_rndne_f32 v{t+2}, v{t}", f"v_sub_f32 v{t}, v{t}, v{t+2}", f"v_add_f32 v{t}, v{t}, v{t+1}",
                    f"v_exp_f32 v{t}, v{t}", f"v_cvt_i32_f32 v{t+2}, v{t+2}", f"v_ldexp_f32 v{r}, v{t}, v{t+2}",
                    f"v_cvt_pk_bf16_f32 v{r}, v{r}, v{r}", f"v_and_b32 v{r}, 0xffff0000, v{r}"])
    red = [f"v_max_f32 v25, abs(v{CC}), abs(v{CC+1})", f"v_max3_f32 v25, v25, abs(v{CC+2}), abs(v{CC+3})"]
    red += [f"v_max_f32_dpp v25, v25, v25 row_ror:{rot} row_mask:0xf bank_mask:0xf" for rot in (8, 4, 2, 1)]
    red += ["v_mov_b32 v26, v25", "v_permlane16_swap_b32 v25, v26", "v_max_f32 v25, v25, v26",
            "v_mov_b32 v26, v25", "v_permlane32_swap_b32 v25, v26"]
    for k, grp in enumerate(zip(*ops)):
        A(red[k]); A(list(grp))
    A("v_max_f32 v25, v25, v26")
    for mu in range(2):
        A(f"v_mul_f32 v{ARE+mu}, v{ARE+mu}, v{DT}")
        A(f"v_mul_f32 v{AIM+mu}, v{AIM+mu}, v{DT}")
        A(f"v_mul_f32 v{ARE+mu}, {f32(-LOG2E)}, v{ARE+mu}")
    A("v_and_b32 v25, 0x7f800000, v25")
    A("v_max_u32 v25, 0x00800000, v25")
    A("v_min_u32 v25, 0x7e800000, v25")
    A("v_sub_u32 v26, 0x7f000000, v25")
    for i in range(4): A(f"v_mul_f32 v{CC+i}, v{CC+i}, v26")
    A(f"v_mul_f32 v{KSC}, v25, v{DT}")
    A(f"v_add_f32 v{KSC}, v{KSC}, v{KSC}")
    A(f"v_mov_b32 v23, {f32(C_HI)}")
    A(f"v_mov_b32 v24, {f32(C_LO)}")
    for p in powers:
        b = WP[p]
        ops = [[], []]
        for mu in range(2):
            t = 48 + 4*mu
            o = ops[mu]
            o.append(f"v_mul_f32 v{t}, {f32(float(p))}, v{ARE+mu}")
            o.append(f"v_mul_f32 v{t+1}, {f32(float(-p if p == 8 else p))}, v{AIM+mu}")
            o.append(f"v_exp_f32 v{t}, v{t}")
            o.append(f"v_mul_f32 v{t+2}, v{t+1}, v23")
            o.append(f"v_fma_f32 v{t+3}, v{t+1}, v23, -v{t+2}")
            o.append(f"v_fmac_f32 v{t+3}, v{t+1}, v24")
            o.append(f"v_fract_f32 v{t+2}, v{t+2}")
            o.append(f"v_add_f32 v{t+2}, v{t+2}, v{t+3}")
            o.append(f"v_cos_f32 v{t+1}, v{t+2}")
            o.append(f"v_sin_f32 v{t+3}, v{t+2}")
            o.append(f"v_mul_f32 v{b+2*mu}, v{t}, v{t+1}")
            o.append(f"v_mul_f32 v{b+2*mu+1}, v{t}, v{t+3}")
        for x, y in zip(*ops): A(x); A(y)

def kgen_body(A, st, r0_sreg, part, packed, CC, KSC, WP):
    G = 4 if part == 1 else 8
    A("v_lshlrev_b32 v2, 3, v0")
    A(f"v_add_u32 v2, s{st}, v2")
    A("v_and_b32 v4, 15, v0")
    A("v_lshrrev_b32 v5, 4, v0")
    A(f"v_and_b32 v3, {G-1}, v0")
    A("v_mul_u32_u24 v3, 528, v3")
    A("v_lshl_add_u32 v3, v5, 4, v3")
    A(f"v_add_u32 v3, s{st}, v3")
    Z = 48; TT = 52; PK = 56; SS = CC
    OF = 64; BT = [96, 128, 96]; KA = 160
    def cmul(dst, z, w):
        o = []
        for mu in range(2):
            o.append(f"v_pk_mul_f32 {vr(TT+2*mu,2)}, {vr(z+2*mu,2)}, {vr(w+2*mu,2)} op_sel:[0,0] op_sel_hi:[0,1]")
        for mu in range(2):
            o.append(f"v_pk_fma_f32 {vr(dst+2*mu,2)}, {vr(z+2*mu,2)}, {vr(w+2*mu,2)}, {vr(TT+2*mu,2)} op_sel:[1,1,0] op_sel_hi:[1,0,1] neg_lo:[0,1,0]")
        return o
    if part != 1:
        A(cmul(WP[2], WP[1], WP[1])); A(cmul(WP[4], WP[2], WP[2]))
    else:
        A(cmul(SS, SS, WP[1024]))
    for i in range(12): A(f"v_mov_b32 v{KA+i}, 0")
    state = {"row": 0}
    def emit(src, nxt, dst, last=False):
        j = state["row"]
        pk = PK + 2*(j & 1)
        A(f"v_cvt_pk_f16_f32 v{pk}, v{src}, v{src+1}")
        A(f"v_cvt_pk_f16_f32 v{pk+1}, v{src+2}, v{src+3}")
        A(nxt)
        A(f"ds_write_b64 v2, {vr(pk,2)} offset:{528*(j % G)}")
        if j % G == G - 1 or last:
            m = ((1 << G) - 1) << (j - j % G)
            m = m | (m << 16)
            set_exec(A, hex(m), hex(m))
            for ks in range(8): A(f"ds_read_b128 {vr(dst+4*ks,4)}, v3 offset:{64*ks}")
            A("s_mov_b64 exec, -1")
        state["row"] = (j + 1) & 15
    def kmm(T):
        for ks in range(8):
            A(f"v_mfma_f32_16x16x32_f16 {vr(KA+4*T,4)}, {vr(BT[T]+4*ks,4)}, {vr(OF+4*ks,4)}, {vr(KA+4*T,4)}")
    A(f"v_mov_b32 v{Z}, 1.0"); A(f"v_mov_b32 v{Z+1}, 0"); A(f"v_mov_b32 v{Z+2}, 1.0"); A(f"v_mov_b32 v{Z+3}, 0")
    for j in range(16): emit(Z, cmul(Z, Z, WP[8]) if j < 15 else [], OF)
    rowno = 32 if part == 1 else 0
    ilast = 7 if part == 0 else 16
    for i in (range(8) if part == 0 else range(8, 17) if part == 1 else range(17)):
        sub, w = (8, 1) if i < 2 else (4, 2) if i < 4 else (2, 4) if i < 8 else (1, None)
        for e in range(sub):
            src = SS if e == 0 else Z
            if e < sub - 1: nxt = cmul(Z, src, WP[w])
            elif i < ilast: nxt = cmul(SS, SS, WP[128])
            else:           nxt = []
            emit(src, nxt, BT[rowno >> 4], last=(i == 16))
            rowno += 1
            if rowno == 24:
                A("s_waitcnt lgkmcnt(15)"); kmm(0)
    if part == 0:
        A("s_waitcnt lgkmcnt(0)"); kmm(1)
    elif part == 1:
        A("s_waitcnt lgkmcnt(0)"); kmm(2)
    else:
        A("s_waitcnt lgkmcnt(15)"); kmm(1)
        A("s_waitcnt lgkmcnt(0)"); kmm(2)
    A("v_lshlrev_b32 v8, 4, v4")
    A(f"v_sub_u32 v8, s{r0_sreg}, v8")
    A("v_lshlrev_b32 v9, 10, v5")
    A("v_sub_u32 v9, v8, v9")
    A("v_lshlrev_b32 v10, 9, v5")
    A("v_sub_u32 v10, v8, v10")
    A("v_lshlrev_b32 v11, 8, v5")
    A("v_sub_u32 v11, v8, v11")
    A("v_lshrrev_b32 v6, 1, v5")
    A("v_lshlrev_b32 v6, 8, v6")
    A("v_and_b32 v7, 1, v5")
    A("v_lshl_add_u32 v6, v7, 3, v6")
    A("v_sub_u32 v8, v8, v6")
    for i in (range(8) if part == 0 else range(8, 12) if part == 1 else range(12)):
        A(f"v_mul_f32 v{KA+i}, v{KA+i}, v{KSC}")
    if part != 0:
        Q = 64
        for r in range(4):
            A(f"v_cvt_pk_bf16_f32 v{Q+2*r}, v{KA+8+r}, v{KA+8+r}")
            A(f"v_mov_b32 v{Q+2*r+1}, v{Q+2*r}")
        for r in range(4):
            off = 2*(2056 - 1024 - 128*r)
            set_exec(A, -1, 1 if r == 0 else 0)
            A(f"ds_write_b64 v9, {vr(Q+2*r,2)} offset:{off}")
            A(f"ds_write_b32 v9, v{Q+2*r} offset:{off+8}")
            if r == 0: A("s_mov_b32 exec_lo, 0xfffffffe")
            A(f"ds_write_b16 v9, v{Q+2*r} offset:{off+12}")
            A(f"s_mov_b32 exec_lo, {'0x55555554' if r == 0 else '0x55555555'}")
            A(f"ds_write_b16 v9, v{Q+2*r} offset:{off+14}")
            if r == 0: A("s_mov_b32 exec_lo, 0x55555555")
            A(f"ds_write_b16 v9, v{Q+2*r} offset:{off-2}")
        A("s_mov_b64 exec, -1")
    if part == 1: return
    A("v_mov_b32 v6, 0")
    A("v_lshlrev_b32 v7, 2, v0")
    A(f"v_add_u32 v7, s{r0_sreg}, v7")
    A("s_mov_b64 exec, 0x3ff")
    A(f"ds_write_b32 v7, v6 offset:4120")
    A("s_mov_b64 exec, -1")
    Q = 72
    for u in range(2):
        k0, k1 = KA+4+2*u, KA+4+2*u+1
        A(f"v_cvt_pk_bf16_f32 v{Q+4*u+3}, v{k1}, v{k1}")
        A(f"v_cvt_pk_bf16_f32 v{Q+4*u}, v{k1}, v{k0}")
        A(f"v_cvt_pk_bf16_f32 v{Q+4*u+1}, v{k0}, v{k0}")
    set_exec(A, 0, -1)
    for u in range(2):
        off = 2*(2054 - 128*u)
        A(f"ds_write_b32 v10, v{Q+4*u+3} offset:{off}")
        A(f"ds_write_b64 v10, {vr(Q+4*u,2)} offset:{off+4}")
        A(f"ds_write_b32 v10, v{Q+4*u+1} offset:{off+12}")
    A("s_mov_b64 exec, -1")
    Q = 80
    k = [KA+4+r for r in range(4)]
    A(f"v_cvt_pk_bf16_f32 v{Q}, v{k[3]}, v{k[3]}")
    A(f"v_cvt_pk_bf16_f32 v{Q+1}, v{k[2]}, v{k[2]}")
    A(f"v_cvt_pk_bf16_f32 v{Q+2}, v{k[2]}, v{k[1]}")
    A(f"v_cvt_pk_bf16_f32 v{Q+3}, v{k[0]}, v{k[0]}")
    A(f"v_cvt_pk_bf16_f32 v{Q+4}, v{KA+3}, v{KA+2}")
    A(f"v_cvt_pk_bf16_f32 v{Q+5}, v{KA+1}, v{KA}")
    A("s_mov_b64 exec, 0xffffffff")
    off = 2*(2053 - 256)
    A(f"ds_write_b16 v11, v{Q} offset:{off}")
    A(f"ds_write_b32 v11, v{Q+1} offset:{off+2}")
    A(f"ds_write_b64 v11, {vr(Q+2,2)} offset:{off+6}")
    A(f"ds_write_b16 v11, v{Q+3} offset:{off+14}")
    A("s_mov_b64 exec, -1")
    A(f"ds_write_b64 v8, {vr(Q+4,2)} offset:{2*2056}")

def r1_build(A, r0_sreg, r1_sreg, T):
    A("v_lshlrev_b32 v9, 4, v0")
    A(f"v_add_u32 v8, s{r0_sreg}, v9")
    A(f"v_add_u32 v9, s{r1_sreg}, v9")
    for it in range(5):
        if it == 4: A("s_mov_b64 exec, 0xf")
        A(f"ds_read_b128 {vr(T+8*it,4)}, v8 offset:{1024*it}")
        A(f"ds_read_b32 v{T+8*it+4}, v8 offset:{1024*it + 16}")
    A("s_mov_b64 exec, -1")
    A("s_waitcnt lgkmcnt(0)")
    for it in range(5):
        for i in range(4):
            A(f"v_alignbit_b32 v{T+8*it+i}, v{T+8*it+i+1}, v{T+8*it+i}, 16")
        if it == 4: A("s_mov_b64 exec, 0xf")
        A(f"ds_write_b128 v9, {vr(T+8*it,4)} offset:{1024*it}")
    A("s_mov_b64 exec, -1")

def conv(A, r0_sreg, r1_sreg, u_sreg, ch_sreg, hook=None):
    A("v_and_b32 v4, 15, v0")
    A("v_lshrrev_b32 v5, 4, v0")
    A("v_lshlrev_b32 v8, 3, v5")
    A("v_sub_u32 v8, v8, v4")
    A("v_add_u32 v8, 2043, v8")
    A("v_and_b32 v9, 1, v8")
    A("v_sub_u32 v8, v8, v9")
    A("v_lshlrev_b32 v8, 1, v8")
    A(f"s_sub_u32 s64, s{r1_sreg}, s{r0_sreg}")
    A("v_mul_lo_u32 v9, v9, s64")
    A("v_add_u32 v8, v8, v9")
    A(f"v_add_u32 v8, s{r0_sreg}, v8")
    RA = 24
    for a in range(4): A(f"v_subrev_u32 v{RA+a}, {960 + 1024*a}, v8")
    A("v_lshlrev_b32 v28, 5, v4")
    A("v_lshl_add_u32 v29, v5, 3, v28")
    A("v_lshl_add_u32 v28, v5, 4, v28")
    A(f"v_add_u32 v28, s{u_sreg}, v28")
    A(f"v_add_u32 v30, s{u_sreg}, v29")
    YA = 32
    FS = [64, 128]
    def creads(rho):
        b = FS[rho & 1]
        o = []
        for a in range(8):
            off = 128*(1 - (a & 1)) + 16*(7 - rho)
            o.append([f"ds_read2_b32 {vr(b+4*a,2)}, v{RA+(a>>1)} offset0:{off} offset1:{off+1}",
                      f"ds_read2_b32 {vr(b+4*a+2,2)}, v{RA+(a>>1)} offset0:{off+2} offset1:{off+3}"])
            o.append([f"ds_read_b128 {vr(b+32+4*a,4)}, v28 offset:{448 - 64*rho + 512*a}"])
        return o
    for g in creads(0): A(g)
    for i in range(32): A(f"v_mov_b32 v{YA+i}, 0")
    for rho in range(8):
        b = FS[rho & 1]
        m = []
        for a in range(8):
            for be in range(8 - a):
                n = a + be
                m.append(f"v_mfma_f32_16x16x32_bf16 {vr(YA+4*n,4)}, {vr(b+4*a,4)}, {vr(b+32+4*be,4)}, {vr(YA+4*n,4)}")
        A("s_waitcnt lgkmcnt(0)")
        A(interleave(m, creads(rho+1) if rho < 7 else [[f"ds_read_b64 {vr(FS[0]+2*n,2)}, v30 offset:{480 + 512*n}"] for n in range(8)]))
        if rho == HOOKR and hook: hook()
    A(f"s_lshl_b32 s64, s{ch_sreg}, 12")
    A(f"s_add_u32 s64, s64, {WS_AT}")
    psrd(A, 4, P_WS, "s64", 4096)
    A("s_waitcnt lgkmcnt(0)")
    A("v_lshlrev_b32 v21, 16, v215")
    A("s_nop 3")
    T = FS[1]; DSK = 21
    for n in range(8):
        for j in range(2):
            u = FS[0] + 2*n + j; y = YA + 4*n + 2*j; t = T + 8*((2*n+j) & 3)
            A(f"v_cvt_pk_bf16_f32 v{t}, v{y}, v{y+1}")
            A(f"v_lshlrev_b32 v{t+2}, 16, v{u}")
            A(f"v_and_b32 v{t+3}, 0xffff0000, v{u}")
            A(f"v_mul_f32 v{t+2}, v{t+2}, v{DSK}")
            A(f"v_mul_f32 v{t+3}, v{t+3}, v{DSK}")
            A(f"v_and_b32 v{t+1}, 0xffff0000, v{t}")
            A(f"v_cvt_pk_bf16_f32 v{t+2}, v{t+2}, v{t+3}")
            A(f"v_lshlrev_b32 v{t}, 16, v{t}")
            A(f"v_and_b32 v{t+3}, 0xffff0000, v{t+2}")
            A(f"v_lshlrev_b32 v{t+2}, 16, v{t+2}")
            A(f"v_add_f32 v{t+1}, v{t+1}, v{t+3}")
            A(f"v_add_f32 v{t}, v{t}, v{t+2}")
            A(f"v_cvt_pk_bf16_f32 v{u}, v{t}, v{t+1}")
        A.vm(f"buffer_store_dwordx2 {vr(FS[0]+2*n,2)}, v29, s[4:7], 0 offen offset:{512*n} sc1")
```

```python
import sys
from fz_common import *
import fz_ssm as ssm
NAME = "gated_mix__ssm_conv_s4d__mixer_gmlp__prompt_kernel"
NSSM = 144
OPT = set(a[2:] for a in sys.argv if a.startswith("--"))
U_BASE = 81920
R1_BASE = 3*STG + 64
LDS_AT = 3*STG + 19456
LDS_G = LDS_AT + 10240
XH = LDS_X + 1024 + 4*ssm.RSZ
LDS_CNT = XH + 4096
ZL = 64
S_O1, S_O3, S_CW, S_CH = 3, 75, 31, 30
S_R0 = 0
S_UTQ = 0
S_K0 = 1
KHOOK = 3800
PD = 1 if 'pd1' in OPT else 2
NC = 'nocatch' in OPT
LASTB = 16 if NC else 15
KM17 = 2500
QN = 13 if 'qn13' in OPT else 12
QS = QN - 2
QP = 15
TQ = (3, 5, 7) if 'tq3' in OPT else ()
PSLEEP = 8 if 'ps8' in OPT else 2 if 'ps2' in OPT else 4
S_KS, S_KR = 24, 31
KB0, KB1, KB2, KBG = 3000, 2300, 1100, 150
NPRE = 2 if 'pre2' in OPT else 4 if 'pre4' in OPT else 3
KSPLIT = (0.40, 0.50)
VB, VA = 250, 251
n = NAME

def touch(A, p, nbytes, idx_sreg, vdst, lbl):
    if "notouch" in OPT: return
    A(f"s_cmp_ge_u32 s{idx_sreg}, {(nbytes + 8191) // 8192}")
    A(f"s_cbranch_scc1 {lbl}")
    psrd(A, 4, p, None, nbytes)
    A(f"s_lshl_b32 s64, s{idx_sreg}, 13")
    A(f"buffer_load_dword v{vdst}, v1, s[4:7], s64 offen")
    if "touch64" in OPT:
        A(f"buffer_load_dword v{vdst+1}, v1, s[4:7], s64 offen offset:64")
    A.label(lbl)

def header(H):
    kernel_begin(H, n)
    H("s_cmp_ge_u32 s2, 256")
    H(f"s_cbranch_scc1 {n}_end")
    H("s_load_dwordx16 s[32:47], s[0:1], 0")
    H("s_load_dwordx16 s[48:63], s[0:1], 64")
    H.stamp(0); H.stamp(1, True)
    H("v_lshrrev_b32 v1, 6, v0")
    H("s_and_b32 s3, s2, 7")
    H("s_lshr_b32 s30, s2, 3")
    H(f"v_readfirstlane_b32 s{S_WAVE}, v1")
    H("s_and_b32 s64, s3, 3")
    H("s_lshl_b32 s64, s64, 2")
    H("s_and_b32 s65, s30, 3")
    H(f"s_add_u32 s{S_FT}, s64, s65")
    H("s_lshr_b32 s64, s3, 2")
    H("s_lshr_b32 s66, s30, 2")
    if "ttblk" in OPT:
        H("s_lshl_b32 s64, s64, 3")
    else:
        H("s_lshl_b32 s66, s66, 1")
    H(f"s_add_u32 s{S_TT}, s64, s66")
    if "map3new" not in OPT:
        H("s_lshr_b32 s64, s3, 1")
        H("s_lshl_b32 s64, s64, 3")
        H("s_lshr_b32 s66, s30, 2")
        H(f"s_add_u32 s{S_T64}, s64, s66")
        H("s_and_b32 s64, s3, 1")
        H("s_lshl_b32 s64, s64, 2")
        H(f"s_add_u32 s{S_J}, s64, s65")
    else:
        H("s_lshl_b32 s64, s3, 2")
        H("s_lshr_b32 s65, s30, 3")
        H(f"s_add_u32 s{S_T64}, s64, s65")
        H(f"s_and_b32 s{S_J}, s30, 7")
    H(f"s_and_b32 s{S_W}, s{S_WAVE}, 3")
    H("v_and_b32 v0, 63, v0")
    H(f"s_cmp_ge_u32 s{S_WAVE}, 4")
    H(f"s_cbranch_scc1 {n}_L")
    H("s_getpc_b64 s[64:65]")
    H.label(f"{n}_pc")
    H(f"s_sub_u32 s4, s64, {n}_pc-{n}")
    H("s_subb_u32 s5, s65, 0")
    H(f"s_mov_b32 s6, {n}_end-{n}")
    H("s_mov_b32 s7, 0x20000")
    H("s_lshl_b32 s66, s30, 2")
    H(f"s_add_u32 s66, s66, s{S_W}")
    H("s_lshl_b32 s66, s66, 10")
    H("v_lshlrev_b32 v1, 4, v0")
    H("buffer_load_dwordx4 v[240:243], v1, s[4:7], s66 offen")
    late_ids(H)
    H("s_waitcnt lgkmcnt(0)")
    if "klate" not in OPT:
        H(f"s_cmp_ge_u32 s{S_FT}, 9")
        H(f"s_cbranch_scc1 {n}_C")
        ssm.kgen_load(H, S_CH)
    H(f"s_branch {n}_C")
    H.label(f"{n}_L")

def late_ids(A):
    A(f"s_lshl_b32 s64, s{S_TT}, 4")
    A(f"s_add_u32 s{S_O1}, s64, s{S_FT}")
    A(f"s_lshl_b32 s64, s{S_T64}, 3")
    A(f"s_add_u32 s{S_O3}, s64, s{S_J}")
    A(f"s_lshl_b32 s{S_CW}, s2, 2")
    A(f"s_add_u32 s{S_CW}, s{S_CW}, s{S_W}")
    A(f"s_lshl_b32 s64, s{S_FT}, 4")
    A(f"s_add_u32 s64, s64, s{S_TT}")
    A(f"s_lshl_b32 s64, s64, 2")
    A(f"s_add_u32 s{S_CH}, s64, s{S_W}")

def gen_L(A, diag):
    A.vshift = 190
    rowperm_voff(A, 2, 1152)
    A("v_lshrrev_b32 v6, 4, v0")
    A(f"s_and_b32 s64, s{S_W}, 1")
    A("s_lshl_b32 s65, s64, 2")
    A("v_add_u32 v7, s65, v6")
    A("v_and_b32 v8, 15, v0")
    A("v_lshlrev_b32 v7, 1, v7")
    A("v_xor_b32 v8, v8, v7")
    A("s_lshl_b32 s65, s64, 3")
    A(f"s_lshr_b32 s66, s{S_W}, 1")
    A("s_lshl_b32 s66, s66, 2")
    A("s_add_u32 s65, s65, s66")
    A("v_add_u32 v6, s65, v6")
    A("v_mul_u32_u24 v6, 9216, v6")
    A("v_lshl_add_u32 v3, v8, 4, v6")
    A(f"s_lshl_b32 s65, s{S_FT}, 8")
    A("v_add_u32 v3, s65, v3")
    A("v_lshrrev_b32 v6, 1, v0")
    A("v_and_b32 v7, 3, v6")
    A("v_and_b32 v8, 4, v6")
    A("v_lshl_or_b32 v7, v8, 1, v7")
    A("v_and_b32 v8, 8, v6")
    A("v_lshrrev_b32 v8, 1, v8")
    A("v_or_b32 v7, v7, v8")
    A(f"s_lshl_b32 s65, s{S_W}, 4")
    A("v_add_u32 v7, s65, v7")
    A("v_mul_u32_u24 v7, 9216, v7")
    A("v_and_b32 v8, 1, v0")
    A("v_lshl_add_u32 v4, v8, 4, v7")
    A(f"s_lshl_b32 s64, s{S_FT}, 5")
    A("s_add_u32 s64, s64, 4096")
    A("v_add_u32 v4, s64, v4")
    A(f"s_lshl_b32 s68, s{S_W}, 10")
    A(f"s_lshl_b32 s69, s{S_W}, 9")
    A("s_add_u32 s69, s69, 16384")
    A(f"s_mul_i32 s64, s{S_TT}, {128*1152}")
    A("s_waitcnt lgkmcnt(0)")
    psrd(A, 8, P_U, "s64", 128*1152)
    psrd(A, 12, P_WIN, None, 576*9216)
    ready = {}
    A(f"s_and_b32 s74, s{S_TT}, 7" if "ttblk" in OPT else f"s_lshr_b32 s74, s{S_TT}, 1")
    A(f"s_and_b32 s64, s{S_FT}, 3")
    A("s_lshl_b32 s64, s64, 1")
    A("s_add_u32 s74, s74, s64")
    A("s_cmp_ge_u32 s74, 9")
    A("s_cselect_b32 s64, 9, 0")
    A("s_sub_u32 s74, s74, s64")
    if "norot" in OPT: A("s_mov_b32 s74, 0")
    A(f"s_sub_u32 s{S_UTQ}, s{S_FT}, s74")
    A(f"s_cmp_lt_i32 s{S_UTQ}, 0")
    A("s_cselect_b32 s64, 9, 0")
    A(f"s_add_u32 s{S_UTQ}, s{S_UTQ}, s64")
    A(f"s_cmp_ge_u32 s{S_FT}, 9")
    A(f"s_cselect_b32 s{S_UTQ}, 99, s{S_UTQ}")
    def dma_g1(q):
        base = (q % S) * STG
        A(f"s_mul_i32 s72, s74, {64*9216}")
        A("s_lshl_b32 s73, s74, 7")
        if q < 9: A("s_add_u32 s72, s72, 4608")
        for i in range(4):
            A(f"s_add_u32 m0, s68, {base + i*4096}")
            A(f"s_add_u32 s70, s72, {i*16*9216}")
            A.vm("buffer_load_dwordx4 v3, s[12:15], s70 offen lds")
            A(f"s_add_u32 m0, s68, {base + 18432 + i*4096}")
            A(f"s_add_u32 s71, s73, {i*32*1152}")
            A.vm("buffer_load_dwordx4 v2, s[8:11], s71 offen lds")
        A(f"s_add_u32 m0, s69, {base}")
        A("s_mov_b64 exec, 0xffffffff")
        ready[q] = A.vm("buffer_load_dwordx4 v4, s[12:15], s72 offen lds")
        A("s_mov_b64 exec, -1")
        A("s_add_u32 s74, s74, 1")
        A("s_cmp_eq_u32 s74, 9")
        A("s_cselect_b32 s74, 0, s74")
    def kst(cnt, dst):
        A(f"s_add_u32 s{dst}, s{cnt}, s{S_FT}")
        A(f"s_and_b32 s{dst}, s{dst}, 3")
        A(f"s_andn2_b32 s64, s{cnt}, 3")
        A(f"s_or_b32 s{dst}, s{dst}, s64")
        A(f"s_cmp_lt_u32 s{cnt}, {0 if 'noquad' in OPT else 28}")
        A(f"s_cselect_b32 s{dst}, s{dst}, s{cnt}")
        A(f"s_add_u32 s{dst}, s{dst}, s{S_K0}")
        A(f"s_and_b32 s{dst}, s{dst}, 31")
        A(f"s_add_u32 s{cnt}, s{cnt}, 1")
    def dma_g2_B(sb):
        kst(72, 66)
        A("s_lshl_b32 s66, s66, 7")
        for i in range(4):
            if isinstance(sb, str):
                A(f"s_add_u32 m0, s68, {sb}"); A(f"s_add_u32 m0, m0, {18432 + i*4096}")
            else:
                A(f"s_add_u32 m0, s68, {sb + 18432 + i*4096}")
            A(f"s_add_u32 s70, s66, {i*131072}")
            r = A.vm(f"buffer_load_dwordx4 v{VB}, s[16:19], s70 offen lds")
        return r
    def dma_g2_A(sb):
        kst(73, 66)
        A("s_mul_i32 s66, s66, 18432")
        A(f"s_add_u32 m0, s67, {sb}")
        A("s_add_u32 s70, s66, s67")
        for i in range(4):
            A.vm(f"buffer_load_dwordx4 v{VA}, s[20:23], s70 offen offset:{1024*i} sc1 lds")
        A(f"s_add_u32 m0, s69, {sb}")
        A("s_add_u32 s70, s66, s69")
        A("s_mov_b64 exec, 0xffffffff")
        r = A.vm(f"buffer_load_dwordx4 v{VA}, s[20:23], s70 offen sc1 lds")
        A("s_mov_b64 exec, -1")
        return r
    sl = lambda q: (q % S) * STG

    if "lstamp" in OPT: A.stamp(9)
    for q in range(NPRE):
        dma_g1(q)
        if "lstamp" in OPT and q == 0: A.stamp(10)
    if "lstamp" in OPT:
        A.wait_vm(ready[0]); A.stamp(11); A.used = {9, 10, 11}
    issued = NPRE
    A.stamp(2)
    late_ids(A)
    A.wait_vm(ready[0])
    A.bar("B0")
    A.stamp(3)
    if issued < 3: dma_g1(2); issued = 3
    rowperm_voff(A, VB, 4096)
    A(f"v_lshlrev_b32 v{VA}, 4, v0")
    A(f"s_lshl_b32 s64, s{S_TT}, 19")
    psrd(A, 16, P_WSP, "s64", 128*4096)
    A(f"s_mul_i32 s64, s{S_FT}, {32*18432}")
    A(f"s_add_u32 s64, s64, {WS_Z2F}")
    psrd(A, 20, P_WS, "s64", 32*18432)
    A(f"s_lshl_b32 s67, s{S_W}, 12")
    A("v_and_b32 v5, 15, v0")
    A("v_lshrrev_b32 v6, 4, v0")
    A("v_lshrrev_b32 v7, 2, v5")
    A("v_lshl_add_u32 v8, v6, 2, v7")
    A("v_lshrrev_b32 v9, 1, v8")
    A(f"s_and_b32 s64, s{S_W}, 1")
    A("s_lshl_b32 s64, s64, 2")
    A("v_xor_b32 v9, s64, v9")
    A("v_lshlrev_b32 v9, 4, v9")
    A("v_lshl_add_u32 v9, v8, 7, v9")
    A("v_and_b32 v10, 1, v0")
    A("v_lshl_add_u32 v9, v10, 3, v9")
    A("v_bfe_u32 v10, v0, 1, 1")
    A("v_lshl_add_u32 v9, v10, 12, v9")
    A(f"s_and_b32 s64, s{S_UTQ}, 3")
    A(f"s_mul_i32 s64, s64, {STG}")
    A(f"s_lshr_b32 s65, s{S_W}, 1")
    A("s_lshl_b32 s65, s65, 13")
    A("s_add_u32 s64, s64, s65")
    A("s_add_u32 s64, s64, 18432")
    A("v_add_u32 v13, s64, v9")
    A("v_and_b32 v14, 7, v0")
    A("v_lshlrev_b32 v14, 12, v14")
    A("v_lshl_add_u32 v14, v6, 4, v14")
    A("v_bfe_u32 v10, v0, 3, 1")
    A("v_lshl_add_u32 v14, v10, 6, v14")
    def ut_job(q):
        if "nout" in OPT: return
        A(f"s_cmp_lg_u32 s{S_UTQ}, {q}")
        A(f"s_cbranch_scc1 {n}_Lut{q}")
        A(f"s_getpc_b64 s[64:65]")
        A.label(f"{n}_Lpc{q}")
        A(f"s_add_u32 s64, s64, {n}_Lutf-{n}_Lpc{q}")
        A("s_addc_u32 s65, s65, 0")
        A("s_swappc_b64 s[70:71], s[64:65]")
        A.label(f"{n}_Lut{q}")
    def wsp_touch(i, nparts=4):
        if "touch" not in OPT: return
        psrd(A, 4, P_WSP, None, 2048*4096)
        A("s_lshl_b32 s64, s2, 2")
        A(f"s_add_u32 s64, s64, s{S_W}")
        A("s_lshl_b32 s64, s64, 13")
        A(f"s_add_u32 s64, s64, {i*8192//nparts}")
        A("v_lshlrev_b32 v5, 7, v0")
        if nparts > 1: A(f"s_mov_b64 exec, {hex((1 << (64//nparts)) - 1)}")
        A.vm("buffer_load_dword v57, v5, s[4:7], s64 offen")
        A("s_mov_b64 exec, -1")
    ut_job(0)
    for q in range(18):
        if q == 16 and not NC: continue
        if q + 1 < 18: A.wait_vm(ready[17 if q == LASTB else q+1])
        A.bar(f"M{q}")
        if "mstamp" in OPT and "m2" not in OPT and q < 8: A.stamp(4 + q)
        if "m2" in OPT and q == 7: A.used = {8}
        if "m2" in OPT and q >= 9 and q != 13: A.used.discard(8); A.stamp(4 + q - 9 - (q > 13))
        if q == QS: ln_stats_issue(A)
        k = 0
        while issued < 18 and issued <= q + S and k < 2:
            dma_g1(issued); issued += 1; k += 1
        if q + 1 < 9: ut_job(q + 1)
        if q == 0:
            A(f"s_cmp_lg_u32 s{S_W}, 0")
            A(f"s_cbranch_scc1 {n}_Lns0")
            A("s_and_b32 s66, s2, 15")
            A("s_lshl_b32 s66, s66, 2")
            A("s_add_u32 s66, s66, 64")
            A("s_mov_b32 s65, 1")
            A(f"s_atomic_add s65, s[{P_DBG}:{P_DBG+1}], s66")
            A.label(f"{n}_Lns0")
        if "t8" in OPT and q < 8: wsp_touch(q, 8)
        if "t16" in OPT and q < 8: wsp_touch(q, 16)
        if q == 7:
            wot_issue(A)
            if "tearly" in OPT:
                gate_issue(A)
                psrd(A, 4, P_DBG, None, 256)
                A("v_and_b32 v5, 15, v0")
                A("v_lshlrev_b32 v5, 2, v5")
                r_init = A.vm("buffer_load_dword v56, v5, s[4:7], 0 offen offset:64 sc1")
                wsp_touch(0, 1)
        if q == 8 and "tearly" in OPT:
            A.wait_vm(r_init)
            A("v_cmp_le_u32 vcc, 16, v56")
            ut_store(A)
            A("s_cmp_eq_u32 vcc_lo, -1")
            A(f"s_cbranch_scc1 {n}_Li_ok")
            psrd(A, 4, P_DBG, None, 256)
            init_wait(A, f"{n}_Li", 5, 4)
            wot_unit(A, 0)
            gate_job(A, 0)
        if q == 8 and "tearly" not in OPT:
            gate_issue(A)
            psrd(A, 4, P_DBG, None, 256)
            init_wait(A, f"{n}_Li", 5, 4)
            ut_store(A)
            wot_unit(A, 0)
            wsp_touch(0, 1)
        if q == 8:
            A.stamp(8)
        if q == QS + 1:
            A.stamp(4)
            ln_stats(A)
            A.stamp(5)
        if q == LASTB - 2:
            A("s_mov_b32 s72, -2")
            A("s_mov_b32 s73, 0")
            A(f"s_lshl_b32 s{S_K0}, s{S_TT}, 1")
            A(f"s_add_u32 s{S_K0}, s{S_K0}, 2")
            assert issued == 18
        if q == 14: dma_g2_B(sl(18))
        if q == QP:
            psrd(A, 4, P_WS, WS_MB, 4*MBSZ)
            A(f"s_cmp_lg_u32 s{S_W}, 0")
            A(f"s_cbranch_scc1 {n}_Lnz")
            mb_push(A, MB_Z2, 16, ["v_lshlrev_b32 v10, 4, v0", f"v_add_u32 v10, s{S_FT}, v10"], S_TT, 10, 4)
            A.label(f"{n}_Lnz")
            A.stamp(6)
        if q == 15:
            psrd(A, 8, P_WS, WS_MB, 4*MBSZ)
            dma_g2_B(sl(19))
        if q == 17:
            dma_g2_B(sl(20)); dma_g2_B(sl(21))
    wot_unit(A, 1)
    gate_job(A, 0); gate_job(A, 1)
    wg_wait(A, f"{n}_Lgz", S_W, LDS_CNT + 16, 10, lambda: mb_wait(A, f"{n}_Lz2", MB_Z2, S_O1, 16, 12, 8, sleep=PSLEEP, depth=PD))
    A("s_waitcnt vmcnt(0)")
    A.stamp(7)
    ready[20] = dma_g2_A(sl(20)); ready[21] = dma_g2_A(sl(21))
    A("s_waitcnt lgkmcnt(0)")
    A.bar("G2S")
    A(f"s_cmp_lg_u32 s{S_W}, 0")
    A(f"s_cbranch_scc1 {n}_Lnw")
    A(f"s_sub_u32 s65, s{S_CH}, 576")
    A("s_lshr_b32 s65, s65, 2")
    A("s_cmp_ge_u32 s65, 72")
    A(f"s_cbranch_scc1 {n}_Lnw")
    A("s_mul_i32 s66, s65, 57")
    A("s_lshr_b32 s66, s66, 9")
    A("s_mul_i32 s70, s66, 9")
    A("s_sub_u32 s70, s65, s70")
    mb_push(A, MB_WF, 32, ["v_lshlrev_b32 v20, 3, v0", "v_add_u32 v20, s66, v20"], 70, 20, 8)
    A.label(f"{n}_Lnw")
    A.bar("N18")
    dma_g2_B(sl(22)); ready[22] = dma_g2_A(sl(22))
    A.wait_vm(ready[20]); A.bar("N19")
    dma_g2_B(sl(23)); ready[23] = dma_g2_A(sl(23))
    A.wait_vm(ready[21]); A.bar("N20")
    dma_g2_B(sl(24)); ready[24] = dma_g2_A(sl(24))
    A(f"s_mov_b32 s74, {sl(25)}")
    def service():
        A("s_waitcnt vmcnt(18)")
        A("s_barrier")
        dma_g2_B("s74"); dma_g2_A("s74")
        A(f"s_add_u32 s74, s74, {STG}")
        A(f"s_cmp_eq_u32 s74, {S*STG}")
        A("s_cselect_b32 s74, 0, s74")
        A("s_sub_u32 s71, s71, 1")
    def loop(lbl, cnt):
        A(f"s_mov_b32 s71, {cnt}")
        A.label(lbl)
        service()
        A("s_cmp_lg_u32 s71, 0")
        A(f"s_cbranch_scc1 {lbl}")
    loop(f"{n}_Lg2", 12)
    A(f"s_lshl_b32 s64, s{S_O3}, 8")
    A(f"s_add_u32 s64, s64, {MB_WF - WS_MB}")
    A("v_min_u32 v10, 8, v0")
    A("v_lshlrev_b32 v10, 2, v10")
    A("buffer_load_dword v11, v10, s[8:11], s64 offen sc1")
    loop(f"{n}_Lg2b", TPOS - 12)
    A("v_cmp_eq_u32 vcc, 0, v11")
    A("s_nop 0")
    A("s_cmp_eq_u64 vcc, 0")
    A(f"s_cbranch_scc1 {n}_Lw_ok")
    mb_wait(A, f"{n}_Lw", MB_WF, S_O3, 9, 10, 8)
    if "touchA" in OPT:
        nsh = 4 if "map3new" in OPT else 8
        per = 2592 // (4*nsh)
        A(f"s_mul_i32 s64, s{S_J}, {72*4608}")
        A(f"s_add_u32 s64, s64, {WS_WOT}")
        psrd(A, 4, P_WS, "s64", 72*4608)
        A(f"s_and_b32 s64, s{S_T64}, {nsh-1}")
        A("s_lshl_b32 s64, s64, 2")
        A(f"s_add_u32 s64, s64, s{S_W}")
        A(f"s_mul_i32 s64, s64, {per*128}")
        A("v_lshlrev_b32 v10, 7, v0")
        done = 0
        while done < per:
            st = min(done, per - 64)
            A(f"s_add_u32 s65, s64, {st*128}")
            A("buffer_load_dword v11, v10, s[4:7], s65 offen sc1")
            done = st + 64
    loop(f"{n}_Lg2c", 25 - TPOS)
    for q in range(21, 46): A.bars.append(f"N{q}")
    A("s_waitcnt vmcnt(18)"); A.bar("N46")
    g3_main(A)
    if diag:
        A.stamp(12, True)
        stamp_dump(A, f"{n}_Ld", 1)
    A("s_endpgm")
    A.vshift = 190
    A.label(f"{n}_Lutf")
    for cb in range(4):
        A(f"v_xor_b32 v15, {16*cb}, v13")
        for a in range(2):
            A(f"ds_read_b64_tr_b16 {vr(UR+4*cb+2*a,2)}, v15 offset:{a*2048}")
    A("s_waitcnt lgkmcnt(0)")
    A("s_setpc_b64 s[70:71]")

UR = 160
def ut_store(A):
    A(f"s_cmp_ge_u32 s{S_FT}, 9")
    A(f"s_cbranch_scc1 {n}_Lus")
    A(f"s_lshl_b32 s64, s{S_FT}, 18")
    A(f"s_lshl_b32 s65, s{S_TT}, 8")
    A("s_add_u32 s64, s64, s65")
    A(f"s_lshr_b32 s65, s{S_W}, 1")
    A("s_lshl_b32 s65, s65, 7")
    A("s_add_u32 s64, s64, s65")
    A(f"s_and_b32 s65, s{S_W}, 1")
    A("s_lshl_b32 s65, s65, 17")
    A("s_add_u32 s64, s64, s65")
    A(f"s_add_u32 s64, s64, {WS_UT}")
    psrd(A, 4, P_WS, "s64", 31*4096 + 128)
    for cb in range(4):
        A(f"s_mov_b32 s64, {cb*32768}")
        A(f"buffer_store_dwordx4 {vr(UR+4*cb,4)}, v14, s[4:7], s64 offen sc1")
    A.label(f"{n}_Lus")

def ln_loads(A, T=16):
    for j in range(8):
        A(f"buffer_load_dwordx2 {vr(T+2*j,2)}, v{7 if j < 4 else 9}, s[4:7], s0 offen offset:{(j&3)*1024} sc1")

def ln_stats_issue(A):
    A(f"s_lshl_b32 s65, s{S_TT}, 14")
    A(f"s_add_u32 s65, s65, {WS_ST}")
    psrd(A, 4, P_WS, "s65", 16384)
    A("v_and_b32 v6, 31, v0")
    A("v_lshlrev_b32 v6, 3, v6")
    A("v_lshrrev_b32 v7, 5, v0")
    A("v_lshl_add_u32 v7, v7, 13, v6")
    A(f"s_lshl_b32 s0, s{S_W}, 8")
    A("v_add_u32 v9, 4096, v7")
    ln_loads(A); A.nvm += 8

def ln_stats(A):
    T = 16
    A("s_mov_b32 s65, 0")
    A("s_waitcnt vmcnt(18)")
    A(f"s_branch {n}_Lst_chk")
    A.label(f"{n}_Lst_poll")
    ln_loads(A)
    A("s_waitcnt vmcnt(0)")
    A.label(f"{n}_Lst_chk")
    A(f"v_max_u32 v8, v{T}, v{T+1}")
    for j in range(1, 8): A(f"v_max3_u32 v8, v8, v{T+2*j}, v{T+2*j+1}")
    A("v_cmp_eq_u32 vcc, -1, v8")
    A("s_add_u32 s65, s65, 1")
    A("s_cmp_eq_u64 vcc, 0")
    A(f"s_cbranch_scc1 {n}_Lst_ok")
    A("s_sleep 4")
    A("s_cmp_lt_u32 s65, 50000")
    A(f"s_cbranch_scc1 {n}_Lst_poll")
    A.label(f"{n}_Lst_ok")
    A(f"s_add_u32 s66, s0, {LDS_X}")
    A("v_add_u32 v6, s66, v6")
    for stp in (4, 2, 1):
        for j in range(stp):
            A(f"v_add_f32 v{T+2*j}, v{T+2*j}, v{T+2*(j+stp)}")
            A(f"v_add_f32 v{T+2*j+1}, v{T+2*j+1}, v{T+2*(j+stp)+1}")
    A(f"v_mov_b32 v{T+2}, v{T}")
    A(f"v_mov_b32 v{T+3}, v{T+1}")
    A("s_nop 1")
    A(f"v_permlane32_swap_b32 v{T}, v{T+2}")
    A(f"v_permlane32_swap_b32 v{T+1}, v{T+3}")
    A("s_nop 1")
    A(f"v_add_f32 v{T}, v{T}, v{T+2}")
    A(f"v_add_f32 v{T+1}, v{T+1}, v{T+3}")
    A(f"v_mul_f32 v{T}, {f32(1/2304)}, v{T}")
    A(f"v_mul_f32 v{T+1}, {f32(1/2304)}, v{T+1}")
    A(f"v_fma_f32 v{T+1}, -v{T}, v{T}, v{T+1}")
    A(f"v_max_f32 v{T+1}, 0, v{T+1}")
    bf16_round(A, T); bf16_round(A, T+1)
    A(f"v_add_f32 v{T+1}, {f32(1e-5)}, v{T+1}")
    bf16_round(A, T+1)
    A(f"v_sqrt_f32 v{T+1}, v{T+1}")
    A("s_nop 0")
    bf16_round(A, T+1)
    A(f"v_rcp_f32 v{T+2}, v{T+1}")
    A("s_nop 0")
    A(f"v_mul_f32 v{T+3}, v{T}, v{T+2}")
    A(f"v_sub_f32 v{T+3}, 0, v{T+3}")
    A(f"ds_write_b64 v6, {vr(T+2,2)}")
    A("s_waitcnt lgkmcnt(0)")

GX, GW = 64, 100
def gate_issue(A):
    A(f"s_cmp_lt_u32 s{S_FT}, 12")
    A(f"s_cbranch_scc1 {n}_gi")
    psrd(A, 4, P_U, None, 2048*1152)
    A(f"s_lshl_b32 s64, s{S_TT}, 2")
    A(f"s_add_u32 s64, s64, s{S_FT}")
    A("s_sub_u32 s64, s64, 12")
    A("s_lshl_b32 s64, s64, 2")
    A(f"s_add_u32 s64, s64, s{S_W}")
    A("s_lshl_b32 s64, s64, 3")
    A("v_lshrrev_b32 v45, 4, v0")
    A("v_add_u32 v45, s64, v45")
    A("v_and_b32 v6, 15, v0")
    A("v_lshlrev_b32 v6, 3, v6")
    A("v_mul_u32_u24 v7, 1152, v45")
    A("v_add_u32 v7, v7, v6")
    A(f"s_movk_i32 s64, {4*1152}")
    for rd in range(2):
        for i in range(9): A(f"buffer_load_dwordx2 {vr(GX+18*rd+2*i,2)}, v7, s[4:7], {'s64' if rd else '0'} offen offset:{128*i}")
    psrd(A, 4, P_GATE, None, 1152)
    for i in range(9): A(f"buffer_load_dwordx2 {vr(GW+2*i,2)}, v6, s[4:7], 0 offen offset:{128*i}")
    A.label(f"{n}_gi")

def gate_job(A, rd=0):
    A(f"s_cmp_lt_u32 s{S_FT}, 12")
    A(f"s_cbranch_scc1 {n}_gj{rd}")
    A("v_mov_b32 v8, 0")
    A("v_mov_b32 v9, 0x3f803f80")
    for i in range(18):
        t = 36 + 4*(i & 1)
        A(f"v_lshlrev_b32 v{t}, 16, v{GX+18*rd+i}")
        A(f"v_and_b32 v{t+1}, 0xffff0000, v{GX+18*rd+i}")
        A(f"v_lshlrev_b32 v{t+2}, 16, v{GW+i}")
        A(f"v_and_b32 v{t+3}, 0xffff0000, v{GW+i}")
        A(f"v_mul_f32 v{t}, v{t}, v{t+2}")
        A(f"v_mul_f32 v{t+1}, v{t+1}, v{t+3}")
        A(f"v_cvt_pk_bf16_f32 v{t}, v{t}, v{t+1}")
        A(f"v_and_b32 v{t+1}, 0xffff0000, v{t}")
        A(f"v_lshlrev_b32 v{t}, 16, v{t}")
        A(f"v_add_f32 v8, v8, v{t+1}")
        A(f"v_add_f32 v8, v8, v{t}")
    for rot in (8, 4, 2, 1):
        A("s_nop 1")
        A(f"v_add_f32_dpp v8, v8, v8 row_ror:{rot} row_mask:0xf bank_mask:0xf")
    bf16_round(A, 8)
    A(f"v_mul_f32 v8, {f32(-LOG2E)}, v8")
    A("v_exp_f32 v8, v8")
    A("s_nop 0")
    A("v_add_f32 v8, 1.0, v8")
    A("v_rcp_f32 v8, v8")
    A("s_nop 0")
    bf16_round(A, 8)
    A("v_sub_f32 v9, 1.0, v8")
    bf16_round(A, 9)
    psrd(A, 4, P_WS, WS_G, 2048*8)
    A("v_lshlrev_b32 v5, 3, v45")
    set_exec(A, 0x00010001, 0x00010001)
    A(f"buffer_store_dwordx2 v[8:9], v5, s[4:7], 0 offen offset:{32*rd} sc1")
    A("s_mov_b64 exec, -1")
    A.label(f"{n}_gj{rd}")

def wot_issue(A):
    for i in range(5):
        A(f"v_add_u32 v8, {64*i}, v0")
        A("v_mul_u32_u24 v9, 7282, v8")
        A("v_lshrrev_b32 v9, 16, v9")
        A("v_mul_u32_u24 v10, 9, v9")
        A("v_sub_u32 v10, v8, v10")
        A("v_mul_u32_u24 v9, 1152, v9")
        A(f"v_lshl_add_u32 v{40+i}, v10, 4, v9")
    A(f"s_sub_u32 s65, s{S_CH}, 576")
    A("s_lshr_b32 s1, s65, 2")
    A("s_cmp_ge_u32 s1, 72")
    A(f"s_cbranch_scc1 {n}_sj1")
    A("s_mul_i32 s64, s1, 57")
    A("s_lshr_b32 s64, s64, 9")
    A("s_mul_i32 s66, s64, 9")
    A("s_sub_u32 s66, s1, s66")
    A("s_lshl_b32 s66, s66, 2")
    A(f"s_add_u32 s66, s66, s{S_W}")
    A("s_lshl_b32 s66, s66, 1")
    A("s_mul_i32 s24, s64, 72")
    A("s_add_u32 s24, s24, s66")
    A(f"s_mul_i32 s0, s66, {32*1152}")
    A("s_mul_i32 s64, s64, 144")
    A("s_add_u32 s0, s0, s64")
    A(f"s_mul_i32 s31, s{S_W}, {ssm.RSZ}")
    A(f"s_add_u32 s31, s31, {LDS_X + 1024}")
    psrd(A, 4, P_WOUT, None, 2304*1152)
    wot_dma(A)
    A.label(f"{n}_sj1")

def wot_dma(A):
    for i in range(5):
        A(f"s_add_u32 m0, s31, {1024*i}")
        A("s_mov_b64 exec, 0xffffffff" if i == 4 else "s_nop 0")
        A(f"buffer_load_dwordx4 v{40+i}, s[4:7], s0 offen lds")
    A("s_mov_b64 exec, -1")

def wot_unit(A, u):
    A(f"s_sub_u32 s65, s{S_CH}, 576")
    A("s_cmp_ge_u32 s65, 288")
    A(f"s_cbranch_scc1 {n}_sj2{u}")
    A("v_lshrrev_b32 v5, 2, v0")
    A("v_mul_u32_u24 v5, 144, v5")
    A("v_and_b32 v6, 3, v0")
    A("v_lshl_add_u32 v7, v6, 4, v5")
    A("v_add_u32 v7, s31, v7")
    A("v_lshl_add_u32 v8, v6, 3, v5")
    A("v_add_u32 v8, s31, v8")
    A("v_lshlrev_b32 v9, 4, v0")
    A("v_and_b32 v10, 7, v0")
    A("v_lshrrev_b32 v13, 4, v0")
    A("v_lshl_add_u32 v10, v13, 3, v10")
    A("v_lshlrev_b32 v10, 4, v10")
    A("v_add_u32 v10, 4096, v10")
    for q in range(5):
        for h in range(2):
            if q < 4: A(f"ds_read_b64_tr_b16 {vr(16+4*q+2*h,2)}, v7 offset:{h*16*144 + 64*(q>>1) + 8*(q&1)}")
            else:     A(f"ds_read_b64_tr_b16 {vr(16+4*q+2*h,2)}, v8 offset:{h*16*144 + 128}")
    A("s_waitcnt lgkmcnt(0)")
    if u == 0:
        psrd(A, 4, P_WOUT, None, 2304*1152)
        A(f"s_add_u32 s0, s0, {32*1152}")
        wot_dma(A)
    A("s_mul_i32 s64, s24, 4608")
    A(f"s_add_u32 s64, s64, {WS_WOT + u*4608}")
    psrd(A, 4, P_WS, "s64", 4608)
    for q in range(4):
        A(f"buffer_store_dwordx4 {vr(16+4*q,4)}, v9, s[4:7], 0 offen offset:{1024*q} sc1")
    set_exec(A, 0x00ff00ff, 0x00ff00ff)
    A(f"buffer_store_dwordx4 {vr(32,4)}, v10, s[4:7], 0 offen sc1")
    A("s_mov_b64 exec, -1")
    A.label(f"{n}_sj2{u}")

def sinit_wait(A, lbl):
    A("s_mov_b32 s64, 0")
    A.label(f"{lbl}_poll")
    A(f"s_load_dwordx4 s[4:7], s[{P_DBG}:{P_DBG+1}], 0 glc")
    A("s_waitcnt lgkmcnt(0)")
    for i in range(1, 4): A(f"s_min_u32 s4, s4, s{4+i}")
    A("s_add_u32 s64, s64, 1")
    A("s_cmp_ge_u32 s4, 64")
    A(f"s_cbranch_scc1 {lbl}_ok")
    A("s_sleep 16")
    A("s_cmp_lt_u32 s64, 20000")
    A(f"s_cbranch_scc1 {lbl}_poll")
    A.label(f"{lbl}_ok")

def gen_C(A, diag):
    A.label(f"{n}_C")
    ACC2 = 16; Z2P = 16; ACC1 = 52
    SET = [124, 168]
    RX = 212; RW = 214; RWT = 222; VC1 = 15; SUM = 224; Z1P = 216
    if "noprio" not in OPT: A("s_setprio 2")
    psrd(A, 20, P_WS, WS_MB, 4*MBSZ)
    def clears(tag):
        A(f"s_cmp_lg_u32 s{S_W}, 0")
        A(f"s_cbranch_scc1 {n}_Cni{tag}")
        A.vshift = 184
        A("v_lshrrev_b32 v2, 4, v0")
        A("v_and_b32 v3, 15, v0")
        A("v_lshlrev_b32 v3, 4, v3")
        A("v_lshl_add_u32 v3, v2, 16, v3")
        A(f"v_mov_b32 v4, s{S_O3}")
        A(f"v_mov_b32 v5, s{S_O1}")
        A("v_cmp_eq_u32 vcc, 0, v2")
        A("s_nop 1")
        A("v_cndmask_b32 v4, v4, v5, vcc")
        A("v_lshl_add_u32 v3, v4, 8, v3")
        for i in range(4): A(f"v_mov_b32 v{4+i}, 0")
        A("buffer_store_dwordx4 v[4:7], v3, s[20:23], 0 offen sc1")
        A(f"v_mov_b32 v2, {LDS_CNT}")
        A("ds_write_b128 v2, v[4:7]")
        A("ds_write_b128 v2, v[4:7] offset:16")
        A(f"s_lshl_b32 s64, s{S_O1}, 10")
        A(f"s_add_u32 s64, s64, {WS_ST}")
        psrd(A, 4, P_WS, "s64", 1024)
        for i in range(4): A(f"v_mov_b32 v{8+i}, -1")
        A("v_lshlrev_b32 v1, 4, v0")
        A("buffer_store_dwordx4 v[8:11], v1, s[4:7], 0 offen sc1")
        A.vshift = 0
        A.label(f"{n}_Cni{tag}")
    A(f"s_cmp_ge_u32 s{S_FT}, {0 if 'klate' in OPT else 9}")
    A(f"s_cbranch_scc1 {n}_Cnp")
    if "sstamp" in OPT: A.stamp(9)
    A(f"s_mul_i32 s1, s{S_W}, {ssm.RSZ}")
    A(f"s_add_u32 s1, s1, {ssm.R0_BASE}")
    A(f"s_add_u32 s{S_R0}, s1, {ssm.R0_OFF}")
    A("s_waitcnt vmcnt(0)")
    if "sstamp" in OPT: A.stamp(10)
    clears("a")
    if 'klate' not in OPT: ssm.kgen(A, 1, S_R0, 2 if 'kfull' in OPT else 0, True)
    if "sstamp" in OPT: A.stamp(11); A.used = {9, 10, 11}
    A(f"s_branch {n}_Cnk")
    A.label(f"{n}_Cnp")
    clears("b")
    A("s_waitcnt vmcnt(0)")
    A.label(f"{n}_Cnk")
    A("v_and_b32 v5, 15, v0")
    A("v_lshrrev_b32 v6, 4, v0")
    A("v_lshrrev_b32 v7, 1, v5")
    A("v_xor_b32 v7, v7, v6")
    A("v_lshlrev_b32 v7, 4, v7")
    A("v_lshl_add_u32 v7, v5, 7, v7")
    A(f"s_lshl_b32 s64, s{S_W}, 12")
    A("s_add_u32 s64, s64, 18432")
    A(f"v_add_u32 v{RX}, s64, v7")
    A(f"v_xor_b32 v{RX+1}, 64, v{RX}")
    A(f"v_mov_b32 v14, v{RX}")
    A("v_and_b32 v2, 1, v6")
    A("v_lshrrev_b32 v3, 2, v5")
    A("v_lshl_add_u32 v2, v2, 2, v3")
    A("v_lshrrev_b32 v3, 1, v6")
    A("v_lshl_add_u32 v3, v3, 4, v2")
    A("v_and_b32 v4, 3, v5")
    A("v_lshlrev_b32 v4, 3, v4")
    A("v_lshl_add_u32 v7, v3, 8, v4")
    A("v_lshl_add_u32 v7, v2, 5, v7")
    for b in range(8): A(f"v_xor_b32 v{RW+b}, {32*b}, v7")
    A("v_lshl_add_u32 v7, v3, 5, v4")
    A(f"v_add_u32 v{RWT}, 16384, v7")
    A(f"v_mov_b32 v{VC1}, {f32(GC1)}")
    for r in range(72): A(f"v_mov_b32 v{ACC2+r}, 0")
    A("s_mov_b32 s68, 0")
    A(f"s_mov_b32 s69, {STG}")
    def g1_reads(setid, ks):
        b = SET[setid]
        X = lambda a: [f"ds_read_b128 {vr(b+4*a,4)}, v{RX+ks} offset:{a*2048}"]
        def W(t, h):
            if t < 8: return [f"ds_read_b64_tr_b16 {vr(b+8+4*t+2*h,2)}, v{RW+t} offset:{ks*8192+h*2048}"]
            return [f"ds_read_b64_tr_b16 {vr(b+8+4*t+2*h,2)}, v{RWT} offset:{ks*1024+h*256}"]
        out = [X(0), W(0,0), W(0,1), X(1)]
        for t in range(1, 9): out += [W(t,0), W(t,1)]
        return out
    def g1_mfmas(setid, half):
        b = SET[setid]
        out = []
        for t in range(9):
            for a in range(2):
                c = (ACC2 if half == 0 else ACC1) + (t*2+a)*4
                x = vr(b+4*a,4); w = vr(b+8+4*t,4)
                out.append(f"v_mfma_f32_16x16x32_bf16 {vr(c,4)}, {x}, {w}, {vr(c,4)}" if half == 0 else
                           f"v_mfma_f32_16x16x32_bf16 {vr(c,4)}, {w}, {x}, {vr(c,4)}")
        return out
    def advance(regs):
        o = [["s_add_u32 s68, s68, 1", "s_and_b32 s68, s68, 3"], [f"s_cselect_b32 s70, s69, {-3*STG}"]]
        return o + [[f"v_add_u32 v{r}, s70, v{r}"] for r in regs]
    def g1_stage(half, bar=True, last=False, drain=False):
        A("s_waitcnt lgkmcnt(0)")
        A(interleave(g1_mfmas(0, half), g1_reads(1, 1) + ([] if last else advance(range(RX, RWT+1))), per=2))
        A("s_waitcnt vmcnt(0) lgkmcnt(0)" if drain else "s_waitcnt lgkmcnt(0)")
        if bar: A("s_barrier")
        A(interleave(g1_mfmas(1, half), [] if last else g1_reads(0, 0), per=2))
    def g1_rep(half, lbl, per, cnt):
        A(f"s_mov_b32 s71, {cnt}")
        A.raw(".p2align 6")
        A.label(lbl)
        for u in range(per): g1_stage(half)
        A("s_sub_u32 s71, s71, 1")
        A("s_cmp_lg_u32 s71, 0")
        A(f"s_cbranch_scc1 {lbl}")
    def z2_norm():
        T = SET[1]; SC = T + 16
        A(f"s_lshl_b32 s65, s{S_W}, 8")
        A(f"s_add_u32 s65, s65, {LDS_X}")
        A("v_lshrrev_b32 v7, 4, v0")
        A("v_lshlrev_b32 v7, 6, v7")
        A("v_add_u32 v7, s65, v7")
        for i in range(4): A(f"ds_read_b128 {vr(SC+4*i,4)}, v7 offset:{16*i}")
        A(f"s_lshl_b32 s64, s{S_FT}, 5")
        A(f"s_lshl_b32 s66, s{S_TT}, 1")
        A("s_add_u32 s64, s64, s66")
        A("s_mul_i32 s64, s64, 18432")
        A(f"s_mul_i32 s66, s{S_W}, 9216")
        A("s_add_u32 s64, s64, s66")
        A(f"s_add_u32 s64, s64, {WS_Z2F}")
        psrd(A, 4, P_WS, "s64", 9216)
        A("v_lshlrev_b32 v6, 4, v0")
        A("s_movk_i32 s65, 4096")
        A("s_movk_i32 s66, 8192")
        A("s_waitcnt lgkmcnt(0)")
        for t in range(9):
            tb = T + 8*(t & 1)
            for j in range(4):
                A(f"v_lshlrev_b32 v{tb+2*j}, 16, v{Z2P+4*t+j}")
                A(f"v_and_b32 v{tb+2*j+1}, 0xffff0000, v{Z2P+4*t+j}")
            for i in range(8): A(f"v_fma_f32 v{tb+i}, v{tb+i}, v{SC+2*i}, v{SC+2*i+1}")
            for j in range(4): A(f"v_cvt_pk_bf16_f32 v{Z2P+4*t+j}, v{tb+2*j}, v{tb+2*j+1}")
            so = ["0", "s65", "s66"][t >> 2]
            A(f"buffer_store_dwordx4 {vr(Z2P+4*t,4)}, v6, s[4:7], {so} offen offset:{(t&3)*1024} sc1")
    def g1_loop(half):
        if half == 0:
            g1_rep(0, f"{n}_g10", 3, 3)
            for q in range(9): A.bars.append(f"M{q}")
            return
        if QN == 12: g1_rep(1, f"{n}_g11", 2, 2)
        else:        g1_rep(1, f"{n}_g11", 1, 5)
        z2_norm()
        for q in range(QN + 1, 18):
            g1_stage(1, bar=(q <= 15), last=(q == 17), drain=(q == QP))
        for q in range(9, 16): A.bars.append(f"M{q}")
        A(f"s_lshr_b32 s64, s{S_W}, 1")
        A(f"s_mul_i32 s64, s64, {STG}")
        A(f"s_and_b32 s66, s{S_W}, 1")
        A("s_mul_i32 s66, s66, 9216")
        A("s_add_u32 s64, s64, s66")
        A(f"s_add_u32 s64, s64, {(18 % S)*STG}")
        A("v_add_u32 v7, s64, v6")
        for t in range(9): A(f"ds_write_b128 v7, {vr(Z2P+4*t,4)} offset:{t*1024}")
    A(f"s_cmp_ge_u32 s{S_FT}, 9")
    A(f"s_cbranch_scc1 {n}_Cnw0")
    A("s_waitcnt vmcnt(0)")
    A.label(f"{n}_Cnw0")
    A.bar("B0")
    A.stamp(2)
    for g in g1_reads(0, 0): A(g)
    g1_loop(0)
    A.stamp(3)
    A("v_lshlrev_b32 v1, 4, v0")
    A(f"s_lshl_b32 s64, s{S_W}, 10")
    A("v_add_u32 v1, s64, v1")
    A(f"v_add_u32 v2, {XH}, v1")
    T = SET[1]
    for i in range(16): A(f"v_mov_b32 v{SUM+i}, 0")
    KC = 4
    for i, v in enumerate((GC1, GC1, GC0, GC0, 1.0, 1.0)): A(f"v_mov_b32 v{KC+i}, {f32(v)}")
    for t in range(9):
        regs = [ACC2 + 8*t + i for i in range(8)]
        A(gelu_pk(regs, T, KC))
        for i in range(4): A(f"v_pk_add_f32 {vr(SUM+2*i,2)}, {vr(SUM+2*i,2)}, {vr(regs[2*i],2)}")
        for i in range(4): A(f"v_pk_fma_f32 {vr(SUM+8+2*i,2)}, {vr(regs[2*i],2)}, {vr(regs[2*i],2)}, {vr(SUM+8+2*i,2)}")
        for j in range(4): A(f"v_cvt_pk_bf16_f32 v{Z2P+4*t+j}, v{regs[2*j]}, v{regs[2*j+1]}")
    for rot in (8, 4, 2, 1):
        for i in range(16):
            d = SUM + i if rot > 1 else T + 2*(i & 7) + (i >> 3)
            A(f"v_add_f32_dpp v{d}, v{SUM+i}, v{SUM+i} row_ror:{rot} row_mask:0xf bank_mask:0xf")
    A(f"s_lshl_b32 s64, s{S_O1}, 10")
    A(f"s_add_u32 s64, s64, {WS_ST}")
    psrd(A, 4, P_WS, "s64", 1024)
    A("v_lshrrev_b32 v6, 4, v0")
    A("v_lshlrev_b32 v6, 6, v6")
    A(f"s_lshl_b32 s65, s{S_W}, 8")
    A("v_add_u32 v6, s65, v6")
    if "st4" in OPT:
        set_exec(A, 0x00010001, 0x00010001)
        for i in range(4):
            A(f"buffer_store_dwordx4 {vr(T+4*i,4)}, v6, s[4:7], 0 offen offset:{16*i} sc1")
    else:
        A("v_and_b32 v7, 3, v0")
        A("v_lshl_add_u32 v6, v7, 4, v6")
        for i in range(1, 4):
            m = 0x00010001 << i
            set_exec(A, hex(m), hex(m))
            for k in range(4): A(f"v_mov_b32 v{T+k}, v{T+4*i+k}")
        set_exec(A, 0x000f000f, 0x000f000f)
        A(f"buffer_store_dwordx4 {vr(T,4)}, v6, s[4:7], 0 offen sc1")
    A("s_mov_b64 exec, -1")
    A("v_and_b32 v5, 15, v0")
    A("v_lshrrev_b32 v8, 2, v5")
    A("v_lshlrev_b32 v8, 3, v8")
    A("v_and_b32 v9, 3, v5")
    A("v_add_u32 v8, v8, v9")
    A(f"s_lshl_b32 s64, s{S_W}, 5")
    A("v_add_u32 v8, s64, v8")
    A("v_lshlrev_b32 v11, 1, v8")
    A(f"s_lshl_b32 s64, s{S_TT}, 8")
    psrd(A, 4, P_BSP, "s64", 256)
    A("buffer_load_ushort v12, v11, s[4:7], 0 offen")
    A("buffer_load_ushort v13, v11, s[4:7], 0 offen offset:8")
    A(f"s_lshl_b32 s65, s{S_CH}, 1")
    A("v_mov_b32 v3, s65")
    psrd(A, 4, P_D, None, 1152)
    A("buffer_load_ushort v11, v3, s[4:7], 0 offen")
    if 'kfull' not in OPT:
        A(f"s_cmp_ge_u32 s{S_FT}, 9")
        A(f"s_cbranch_scc1 {n}_Cnp2")
        A.vshift = 222
        ssm.kgen_load(A, S_CH)
        A.vshift = 0
        A.label(f"{n}_Cnp2")
    for r in range(72): A(f"v_mov_b32 v{ACC1+r}, 0")
    A.stamp(4)
    g1_loop(1)
    A.stamp(5)
    A("s_waitcnt lgkmcnt(0)")
    for i in range(5): A(f"v_mov_b32 v{24+i}, v{226+i}")
    for t in range(9):
        regs = [ACC1 + 8*t + i for i in range(8)]
        if "gelu1pre" in OPT: A(gelu_ops(regs, T, VC1))
        for nb in range(2):
            for j in range(2):
                dst = Z1P + ((nb*4 + (t >> 1))*4 + (t & 1)*2 + j if t < 8 else 32 + nb*2 + j)
                A(f"v_cvt_pk_bf16_f32 v{dst}, v{regs[4*nb+2*j]}, v{regs[4*nb+2*j+1]}")
    A.bar("M17")
    A.stamp(6)
    A("s_waitcnt vmcnt(0)")
    if 'kfull' not in OPT:
        A(f"s_cmp_ge_u32 s{S_FT}, 9")
        A(f"s_cbranch_scc1 {n}_Cnk2")
        A("v_mov_b32 v215, v11")
        for i in range(3): A(f"v_mov_b32 v{212+i}, v{12+i}")
        for i in range(5): A(f"v_mov_b32 v{4+i}, v{24+i}")
        A(f"s_mul_i32 s64, s{S_W}, {ssm.RSZ}")
        A(f"s_add_u32 s1, s64, {ssm.R0_BASE}")
        A(f"s_add_u32 s72, s64, {ssm.R0_BASE + ssm.R0_OFF}")
        if "klate" in OPT:
            for i in range(5): A(f"v_mov_b32 v{207+i}, v{24+i}")
        ssm.kgen(A, 1, 72, 0 if "klate" in OPT else 1, True)
        for i in range(3): A(f"v_mov_b32 v{12+i}, v{212+i}")
        if "klate" in OPT:
            for i in range(5): A(f"v_mov_b32 v{1+i}, v{207+i}")
        A.label(f"{n}_Cnk2")
        A.stamp(7)
    ACC = 16; SET2 = [88, 132]; RA = 176; RB = 180
    A("v_lshlrev_b32 v10, 4, v0")
    for st in range(S):
        A(f"v_add_u32 v{RA+st}, {st*STG}, v10")
        A(f"v_add_u32 v{RB+2*st}, {st*STG}, v14")
        A(f"v_xor_b32 v{RB+2*st+1}, 64, v{RB+2*st}")
    A(f"s_lshl_b32 s64, s{S_TT}, 1")
    A(f"s_lshr_b32 s65, s{S_W}, 1")
    A("s_add_u32 s64, s64, s65")
    A(f"s_mul_i32 s64, s64, {72*4096}")
    A(f"s_and_b32 s65, s{S_W}, 1")
    A("s_lshl_b32 s65, s65, 11")
    A("s_add_u32 s64, s64, s65")
    A(f"s_add_u32 s64, s64, {WS_HF}")
    psrd(A, 16, P_WS, "s64", 72*4096)
    if "prestore" in OPT:
        A(f"s_lshl_b32 s70, s{S_FT}, 14")
        for i in range(1, 4): A(f"s_add_u32 s{70+i}, s70, {4096*i}")
        for j in range(8):
            A(f"buffer_store_dwordx4 v[200:203], v10, s[16:19], s{70+(j&3)} offen offset:{(j>>2)*1024}{'' if 'plain' in OPT else ' sc1'}")
    A("v_lshlrev_b32 v12, 16, v12")
    A("v_lshlrev_b32 v13, 16, v13")
    for a in range(9):
        for nb in range(2):
            for r in range(4): A(f"v_mov_b32 v{ACC+(a*2+nb)*4+r}, v{12+nb}")
    def g2_reads(setid, slot, ks):
        b = SET2[setid]
        out = []
        for kind, i in [("B", 0), ("A", 0), ("B", 1)] + [("A", a) for a in range(1, 9)]:
            if kind == "B": out.append([f"ds_read_b128 {vr(b+4*i,4)}, v{RB+2*slot+ks} offset:{i*2048}"])
            else:           out.append([f"ds_read_b128 {vr(b+8+4*i,4)}, v{RA+slot} offset:{(ks*9+i)*1024}"])
        return out
    def g2_mfmas(setid):
        b = SET2[setid]
        return [f"v_mfma_f32_16x16x32_bf16 {vr(ACC+(a*2+nb)*4,4)}, {vr(b+8+4*a,4)}, {vr(b+4*nb,4)}, {vr(ACC+(a*2+nb)*4,4)}"
                for a in range(9) for nb in range(2)]
    GT = 188
    def gelu_fill():
        if "gelu1pre" in OPT: return []
        f = [["s_set_gpr_idx_on s70, 0x1", "s_nop 0"] + [f"v_mov_b32 v{GT+k}, v{Z1P+k}" for k in range(5)] + ["s_set_gpr_idx_off"]]
        for k in range(5):
            f.append([f"v_lshlrev_b32 v{GT+5+2*k}, 16, v{GT+k}"]); f.append([f"v_and_b32 v{GT+6+2*k}, 0xffff0000, v{GT+k}"])
        f += [[x] for x in gelu_ops([GT+5+i for i in range(10)], GT+15, VC1)]
        f.append(["s_set_gpr_idx_on s70, 0x8", "s_nop 0"] + [f"v_cvt_pk_bf16_f32 v{Z1P+k}, v{GT+5+2*k}, v{GT+6+2*k}" for k in range(5)] + ["s_set_gpr_idx_off", "s_add_u32 s70, s70, 5"])
        return f
    A(f"v_mov_b32 v{VC1}, {f32(GC1)}")
    A("s_mov_b32 s70, 0")
    for i in range(4): A(f"v_mov_b32 v{252+i}, 0")
    A("s_waitcnt lgkmcnt(0)")
    A.bar("G2S")
    A.stamp(8)
    for g in g2_reads(0, 18 % S, 0): A(g)
    A("s_mov_b32 s71, 8")
    A.raw(".p2align 6")
    A.label(f"{n}_g2")
    for rep in range(8 if "nstamp" in OPT else 1):
        if "nstamp" in OPT: A(f"s_memtime s[{80+2*rep}:{81+2*rep}]")
        fill = gelu_fill()
        for u in range(4):
            slot = (18 + u) % S
            for hf in range(2):
                A("s_waitcnt lgkmcnt(0)")
                if hf: A("s_barrier")
                rd = g2_reads(1, slot, 1) if hf == 0 else g2_reads(0, (slot+1) % S, 0)
                grp = []
                for gp in range(7):
                    g, cost = [], 0
                    while fill and cost < 2:
                        x = fill.pop(0); g += x
                        cost += sum(2 if ("v_exp" in y or "v_rcp" in y) else 1 for y in x)
                    grp.append(g)
                A(interleave(g2_mfmas(hf), rd + grp))
        assert not fill, len(fill)
    if "nstamp" in OPT:
        A("s_memtime s[96:97]"); A.diag = False
    else:
        A("s_sub_u32 s71, s71, 1")
        A("s_cmp_lg_u32 s71, 0")
        A(f"s_cbranch_scc1 {n}_g2")
    for q in range(18, 50): A.bars.append(f"N{q}")
    A.stamp(9)
    A(f"s_lshl_b32 s70, s{S_FT}, 14")
    for i in range(1, 4): A(f"s_add_u32 s{70+i}, s70, {4096*i}")
    A(f"s_lshr_b32 s64, s{S_FT}, 1")
    A("s_lshl_b32 s64, s64, 12")
    A(f"s_and_b32 s65, s{S_FT}, 1")
    A("s_lshl_b32 s65, s65, 11")
    A("s_add_u32 s64, s64, s65")
    A(f"s_and_b32 s65, s{S_W}, 1")
    A("s_lshl_b32 s65, s65, 10")
    A("s_sub_u32 s64, s64, s65")
    A(f"s_add_u32 s64, s64, {64*4096}")
    A("s_waitcnt lgkmcnt(0)")
    T2 = SET2[0]
    cnt = 0
    for j in range(9):
        for i in range(4):
            if j < 8: nb, a, rr = j >> 2, 2*(j & 3) + (i >> 1), 2*(i & 1)
            else:     nb, a, rr = i >> 1, 8, 2*(i & 1)
            c = ACC + (a*2+nb)*4 + rr
            t0 = T2 + 2*(cnt % 8); cnt += 1
            z = Z1P + 4*j + i
            A(f"v_lshlrev_b32 v{t0}, 16, v{z}")
            A(f"v_and_b32 v{t0+1}, 0xffff0000, v{z}")
            A(f"v_mul_f32 v{t0}, v{t0}, v{c}")
            A(f"v_mul_f32 v{t0+1}, v{t0+1}, v{c+1}")
            A(f"v_cvt_pk_bf16_f32 v{z}, v{t0}, v{t0+1}")
        if j < 8:
            A(f"buffer_store_dwordx4 {vr(Z1P+4*j,4)}, v10, s[16:19], s{70+(j&3)} offen offset:{(j>>2)*1024} sc1")
        else:
            A(f"buffer_store_dwordx4 {vr(Z1P+32,4)}, v10, s[16:19], s64 offen sc1")
    A.bar("EPI")
    if "estamp" in OPT: A.stamp(2)
    def pub2(tag):
        if "estamp" in OPT: A.stamp(3)
        A("s_waitcnt vmcnt(0)")
        if "estamp" in OPT: A.stamp(4)
        A(f"s_lshr_b32 s65, s{S_W}, 1")
        A("s_lshl_b32 s70, s65, 2")
        A(f"s_add_u32 s70, s70, {LDS_CNT + 8}")
        lds_arrive(A, ["v_mov_b32 v200, s70"], 200, 1, f"{n}_Cnh{tag}")
        A(f"s_lshl_b32 s71, s{S_TT}, 1")
        A("s_add_u32 s71, s71, s65")
        A("s_lshl_b32 s71, s71, 3")
        mb_push(A, MB_H, 8, ["v_add_u32 v200, s71, v0"], S_FT, 200, 20)
        A.label(f"{n}_Cnh{tag}")
    A(f"s_cmp_ge_u32 s{S_FT}, 9")
    A(f"s_cbranch_scc1 {n}_Cnc")
    A(f"s_mul_i32 s64, s{S_W}, {ssm.RSZ}")
    A(f"s_add_u32 s1, s64, {ssm.R0_BASE}")
    A(f"s_add_u32 s72, s64, {ssm.R0_BASE + ssm.R0_OFF}")
    A(f"s_add_u32 s73, s64, {R1_BASE}")
    A(f"s_mul_i32 s74, s{S_W}, {ssm.USZ}")
    A(f"s_add_u32 s74, s74, {U_BASE}")
    if 'klate' in OPT:
        for i in range(4, -1, -1): A(f"v_mov_b32 v{4+i}, v{1+i}")
        bg = Stream(False)
        ssm.kgen(bg, 1, 72, 1, True)
        kch, _ = bg_split(bg.lines, [KHOOK, 99999])
        A.lines += kch[0]
        pub2("a")
        A.lines += kch[1]
    ssm.r1_build(A, 72, 73, 16)
    A("v_mov_b32 v6, 0"); A("v_mov_b32 v7, 0")
    A("v_lshlrev_b32 v8, 3, v0")
    A("v_add_u32 v8, s74, v8")
    set_exec(A, -1, 0x0fffffff)
    A("ds_write_b64 v8, v[6:7]")
    A("s_mov_b64 exec, -1")
    if "estamp" in OPT: A.stamp(5)
    ssm.conv(A, 72, 73, 74, S_CH, hook=None if 'klate' in OPT else (lambda: pub2('a')))
    A("s_waitcnt vmcnt(0)")
    lds_arrive(A, [f"v_mov_b32 v6, {LDS_CNT}"], 6, 3, f"{n}_Cnc2")
    A(f"s_lshr_b32 s74, s{S_CH}, 2")
    A("s_mul_i32 s72, s74, 3641")
    A("s_lshr_b32 s72, s72, 16")
    A("s_mul_i32 s73, s72, 18")
    A("s_sub_u32 s73, s74, s73")
    mb_push(A, MB_A, 32, ["v_lshlrev_b32 v14, 3, v0", "v_add_u32 v14, s72, v14"], 73, 14, 20)
    A(f"s_branch {n}_Cnc2")
    A.label(f"{n}_Cnc")
    pub2("b")
    A.label(f"{n}_Cnc2")
    A.stamp(10)
    g3(A)
    if diag:
        A("s_waitcnt vmcnt(0)")
        A.diag = True
        if "tstamp" in OPT: A.stamp(5)
        A.stamp(12, True)
        stamp_dump(A, f"{n}_Cd", 0)
        if "dbgdump" in OPT:
            A("s_memtime s[64:65]")
            A("s_waitcnt lgkmcnt(0)")
            A("s_cmp_lg_u32 s2, 9")
            A(f"s_cbranch_scc1 {n}_end")
            A(f"s_cmp_lg_u32 s{S_W}, 0")
            A(f"s_cbranch_scc1 {n}_end")
            psrd(A, 4, P_DBG, None, 64)
            for i in range(2, 12):
                A(f"s_sub_u32 s66, s{76+2*i}, s76"); A(f"v_mov_b32 v{4+i-2}, s66")
            A("s_sub_u32 s66, s64, s76"); A("v_mov_b32 v14, s66")
            A("s_sub_u32 s66, s100, s78"); A("v_mov_b32 v15, s66")
            A("v_mov_b32 v1, 0")
            for i in range(3): A(f"buffer_store_dwordx4 v[{4+4*i}:{7+4*i}], v1, s[4:7], 0 offen offset:{16*i}")
    A.label(f"{n}_end")
    A("s_endpgm")

NL = 4
TPOS = 21
AHINT = 10
DA, DB = (6, 3) if 'd63' in OPT else (4, 5) if 'd45' in OPT else (5, 4)
def g3_main(A):
    ACC = 4; AB = 84; BB = AB + 20*DA
    assert BB + 16*DB <= 248
    A.vshift = 0
    A("v_lshlrev_b32 v2, 4, v0")
    A("v_and_b32 v3, 7, v0")
    A("v_lshrrev_b32 v1, 4, v0")
    A("v_lshl_add_u32 v3, v1, 3, v3")
    A("v_lshlrev_b32 v3, 4, v3")
    A("v_add_u32 v3, 4096, v3")
    A(f"s_mul_i32 s64, s{S_J}, {72*4608}")
    A(f"s_add_u32 s64, s64, {WS_WOT}")
    psrd(A, 4, P_WS, "s64", 72*4608)
    A(f"s_mul_i32 s64, s{S_T64}, {72*4096}")
    A(f"s_add_u32 s64, s64, {WS_HF}")
    psrd(A, 12, P_WS, "s64", 72*4096)
    A(f"s_and_b32 s64, s{S_T64}, 3")
    A("s_lshl_b32 s64, s64, 1")
    if "rotT" not in OPT: A(f"s_add_u32 s64, s64, s{S_J}")
    A("s_and_b32 s64, s64, 7")
    A("s_mul_i32 s64, s64, 9")
    if "rotJ" in OPT: A(f"s_mul_i32 s64, s{S_J}, 9")
    elif "rot3" not in OPT: A("s_mov_b32 s64, 0")
    A(f"s_add_u32 s64, s64, s{S_W}")
    A("s_mul_i32 s70, s64, 4608")
    A("s_lshl_b32 s71, s64, 12")
    NK = 18
    ra = {}; rb = {}
    def loadA(it):
        b = AB + 20*(it % DA)
        for q in range(4): A.vm(f"buffer_load_dwordx4 {vr(b+4*q,4)}, v2, s[4:7], s70 offen offset:{1024*q} sc1")
        ra[it] = A.vm(f"buffer_load_dwordx4 {vr(b+16,4)}, v{3 if it < DA else 255}, s[4:7], s70 offen sc1")
        A(f"s_add_u32 s70, s70, {4*4608}")
        A(f"s_cmp_ge_u32 s70, {72*4608}")
        A(f"s_cselect_b32 s72, {72*4608}, 0")
        A("s_sub_u32 s70, s70, s72")
    def loadB(it):
        b = BB + 16*(it % DB)
        for q in range(4): rb[it] = A.vm(f"buffer_load_dwordx4 {vr(b+4*q,4)}, v2, s[12:15], s71 offen offset:{1024*q} sc1")
        A(f"s_add_u32 s71, s71, {4*4096}")
        A(f"s_cmp_ge_u32 s71, {72*4096}")
        A(f"s_cselect_b32 s72, {72*4096}, 0")
        A("s_sub_u32 s71, s71, s72")
    A(f"s_cmp_ge_u32 s{S_FT}, 9")
    A(f"s_cbranch_scc1 {n}_Lnu1")
    A(f"s_lshl_b32 s64, s{S_CH}, 12")
    A(f"s_add_u32 s64, s64, {WS_UT}")
    psrd(A, 16, P_WS, "s64", 4096)
    A(f"s_mul_i32 s66, s{S_W}, {ssm.USZ}")
    A(f"s_add_u32 m0, s66, {U_BASE + 480}")
    A("s_nop 0")
    for i in range(4):
        A(f"buffer_load_dwordx4 v2, s[16:19], 0 offen offset:{1024*i} sc1 lds")
    A.label(f"{n}_Lnu1")
    A("s_waitcnt vmcnt(9)")
    A.bar("N47")
    for r in range(80): A(f"v_mov_b32 v{ACC+r}, 0")
    A("s_waitcnt vmcnt(0)")
    loadA(0)
    A.bar("N48")
    loadA(1)
    A.bar("N49")
    A.bar("EPI")
    for it in range(2, DA): loadA(it)
    A(f"s_mul_i32 s73, s{S_W}, 20480")
    for u in range(NL):
        A(f"s_add_u32 m0, s73, {u*4608}")
        A("s_nop 0")
        for q in range(4): A.vm(f"buffer_load_dwordx4 v2, s[4:7], s70 offen offset:{1024*q} sc1 lds")
        A(f"s_add_u32 m0, s73, {u*4608 + 4096}")
        A("s_add_u32 s72, s70, 4096")
        A("s_mov_b64 exec, 0xffffffff")
        rl = A.vm("buffer_load_dwordx4 v2, s[4:7], s72 offen sc1 lds")
        A("s_mov_b64 exec, -1")
        A(f"s_add_u32 s70, s70, {4*4608}")
    if "astag" in OPT:
        assert NK - DA - NL >= 8
        A(f"s_and_b32 s72, s{S_T64}, 7")
        A(f"s_mul_i32 s72, s72, {4*4608}")
        A("s_add_u32 s70, s70, s72")
    A("v_add_u32 v1, s73, v2")
    A("v_add_u32 v3, s73, v3")
    A("v_subrev_u32 v255, s73, v3")
    def ldsA(it):
        b = AB + 20*(it % DA); u = it - DA
        for q in range(4): A(f"ds_read_b128 {vr(b+4*q,4)}, v1 offset:{u*4608 + 1024*q}")
        A(f"ds_read_b128 {vr(b+16,4)}, v3 offset:{u*4608}")
        ra[it] = 0
    wg_wait(A, f"{n}_Lgh", S_W, LDS_CNT + 20, 248, lambda: mb_wait(A, f"{n}_Lh", MB_H, S_O3, 16, 250, 8, sleep=PSLEEP, depth=PD))
    A.stamp(9)
    A(f"s_lshl_b32 s64, s{S_T64}, 9")
    A(f"s_add_u32 s64, s64, {WS_G}")
    psrd(A, 16, P_WS, "s64", 512)
    A(f"s_mov_b32 m0, {LDS_G}")
    A("s_mov_b64 exec, 0xffffffff")
    A.vm("buffer_load_dwordx4 v2, s[16:19], 0 offen sc1 lds")
    A("s_mov_b64 exec, -1")
    if "lprio" in OPT: A("s_setprio 3")
    for it in range(DB): loadB(it)
    for it in range(NK):
        A.wait_vm(max(ra[it], rb[it]), " lgkmcnt(0)" if DA <= it < DA + NL else "")
        if "gstamp" in OPT and it in (0, 1, 3, 6, 9, 12, 15): A.stamp(2 + (0, 1, 3, 6, 9, 12, 15).index(it))
        a = AB + 20*(it % DA); b = BB + 16*(it % DB)
        ia = it - 1 + DA
        fa = []
        if it >= 1 and ia < NK:
            ab = AB + 20*(ia % DA)
            if ia < DA + NL:
                u = ia - DA
                fa = [f"ds_read_b128 {vr(ab+4*q,4)}, v1 offset:{u*4608 + 1024*q}" for q in range(4)] + [f"ds_read_b128 {vr(ab+16,4)}, v3 offset:{u*4608}"]
                ra[ia] = 0
            else:
                fa = [f"buffer_load_dwordx4 {vr(ab+4*q,4)}, v2, s[4:7], s70 offen offset:{1024*q} sc1" for q in range(4)] + [f"buffer_load_dwordx4 {vr(ab+16,4)}, v255, s[4:7], s70 offen sc1"]
        for nt in range(4):
            for q in range(5):
                c = ACC + (nt*5+q)*4
                if it < 16:
                    A(f"v_mfma_f32_16x16x32_bf16 {vr(c,4)}, {vr(a+4*q,4)}, {vr(b+4*nt,4)}, {vr(c,4)}")
                else:
                    for par in range(2):
                        A(f"v_mfma_f32_16x16x16_bf16 {vr(c,4)}, {vr(a+4*q+2*par,2)}, {vr(b+4*(2*par+(nt>>1))+2*(nt&1),2)}, {vr(c,4)}")
                if it == NK - 1 and nt*5 + q >= 4:
                    k = nt*5 + q - 4
                    A(f"ds_write_b128 v1, {vr(ACC+k*4,4)} offset:{k*1024}")
                if fa and (q == 2 or (q == 0 and nt == 0)):
                    x = fa.pop(0)
                    if x.startswith("ds_"): A(x)
                    else: ra[ia] = A.vm(x)
            if it + DB < NK:
                rb[it+DB] = A.vm(f"buffer_load_dwordx4 {vr(b+4*nt,4)}, v2, s[12:15], s71 offen offset:{1024*nt} sc1")
        assert not fa
        NP = DA + NL; NS = NK - NP
        def step(reg, unit, nxt):
            if nxt == NP and "astag" in OPT:
                A(f"s_and_b32 s72, s{S_T64}, 7")
                A(f"s_add_u32 s72, s72, 1")
                A(f"s_mul_i32 s72, s72, {4*unit}")
                A(f"s_add_u32 s{reg}, s{reg}, s72")
            else:
                A(f"s_add_u32 s{reg}, s{reg}, {4*unit}")
            if nxt > NP:
                A(f"s_cmp_ge_u32 s{reg}, {72*unit}")
                A(f"s_cselect_b32 s72, {4*NS*unit}, 0")
                A(f"s_sub_u32 s{reg}, s{reg}, s72")
        if it + DB < NK: step(71, 4096, it + DB + 1)
        if it >= 1 and NP <= ia < NK: step(70, 4608, ia + 1)
        if it == AHINT:
            A(f"v_mov_b32 v248, {LDS_CNT + 24}")
            A("ds_write_b32 v248, v248")
    A.stamp(10)
    for k in range(16, 20):
        if k == 17: A("s_nop 5")
        A(f"ds_write_b128 v1, {vr(ACC+k*4,4)} offset:{k*1024}")
    A("s_waitcnt lgkmcnt(0)")
    A.bar("RED")

def g3(A):
    A("v_lshlrev_b32 v2, 4, v0")
    A("v_lshrrev_b32 v4, 4, v0")
    A("v_and_b32 v5, 15, v0")
    A("v_lshrrev_b32 v6, 2, v5")
    A("v_lshlrev_b32 v6, 3, v6")
    A("v_and_b32 v7, 3, v5")
    A("v_add_u32 v6, v6, v7")
    A(f"s_lshr_b32 s70, s{S_W}, 1")
    A("s_lshl_b32 s70, s70, 5")
    A(f"s_and_b32 s66, s{S_W}, 1")
    A("s_lshl_b32 s66, s66, 2")
    A("s_add_u32 s70, s70, s66")
    A("v_add_u32 v6, s70, v6")
    A("v_lshlrev_b32 v15, 3, v6")
    A(f"v_add_u32 v15, {LDS_G}, v15")
    A(f"s_lshl_b32 s66, s{S_T64}, 6")
    A("v_add_u32 v6, s66, v6")
    A("v_mul_u32_u24 v6, 1152, v6")
    A(f"s_mul_i32 s66, s{S_J}, 144")
    A("v_add_u32 v6, s66, v6")
    A("v_lshl_add_u32 v10, v4, 4, v6")
    A("v_lshl_add_u32 v11, v4, 3, v6")
    psrd(A, 16, P_OUT, None, 2048*1152)
    A("v_lshrrev_b32 v12, 2, v5")
    A("v_lshl_add_u32 v13, v4, 3, v12")
    A("v_lshlrev_b32 v13, 7, v13")
    A("v_and_b32 v14, 3, v5")
    A("v_lshl_add_u32 v13, v14, 4, v13")
    A("s_lshl_b32 s70, s70, 1")
    A(f"s_add_u32 s70, s70, {LDS_AT}")
    A("v_add_u32 v13, s70, v13")
    A("v_lshl_add_u32 v12, v4, 2, v12")
    A("v_lshlrev_b32 v12, 7, v12")
    A("v_lshl_add_u32 v12, v14, 4, v12")
    A("v_add_u32 v12, s70, v12")
    A(f"s_cmp_lg_u32 s{S_W}, 0")
    A(f"s_cbranch_scc1 {n}_Cna")
    A(f"v_mov_b32 v16, {LDS_CNT + 24}")
    A("s_mov_b32 s65, 0")
    A.label(f"{n}_Cah")
    A("ds_read_b32 v17, v16")
    A("s_waitcnt lgkmcnt(0)")
    A("v_readfirstlane_b32 s66, v17")
    A("s_add_u32 s65, s65, 1")
    A("s_cmp_lg_u32 s66, 0")
    A(f"s_cbranch_scc1 {n}_Cah2")
    A("s_sleep 2")
    A("s_cmp_lt_u32 s65, 1000000")
    A(f"s_cbranch_scc1 {n}_Cah")
    A.label(f"{n}_Cah2")
    mb_wait(A, f"{n}_Ca", MB_A, S_O3, 18, 16, 20, sleep=8)
    A.stamp(11)
    A(f"s_mul_i32 s64, s{S_J}, {72*4096}")
    A(f"s_lshl_b32 s65, s{S_T64}, 7")
    A("s_add_u32 s64, s64, s65")
    A(f"s_add_u32 s64, s64, {WS_AT}")
    psrd(A, 12, P_WS, "s64", 71*4096+128)
    A("v_lshrrev_b32 v5, 3, v0")
    A("v_and_b32 v6, 7, v0")
    A("v_lshlrev_b32 v5, 12, v5")
    A("v_lshl_add_u32 v5, v6, 4, v5")
    for i in range(9):
        A(f"s_mov_b32 m0, {LDS_AT + 1024*i}")
        A(f"s_mov_b32 s70, {i*8*4096}")
        A("buffer_load_dwordx4 v5, s[12:15], s70 offen sc1 lds")
    A(f"v_mov_b32 v16, {LDS_CNT + 28}")
    A("s_waitcnt vmcnt(0)")
    A("ds_write_b32 v16, v16")
    A(f"s_branch {n}_Cna2")
    A.label(f"{n}_Cna")
    A(f"v_mov_b32 v16, {LDS_CNT + 28}")
    A("s_mov_b32 s65, 0")
    A.label(f"{n}_Cas")
    A("ds_read_b32 v17, v16")
    A("s_waitcnt lgkmcnt(0)")
    A("v_readfirstlane_b32 s66, v17")
    A("s_add_u32 s65, s65, 1")
    A("s_cmp_lg_u32 s66, 0")
    A(f"s_cbranch_scc1 {n}_Cna2")
    A("s_sleep 2")
    A("s_cmp_lt_u32 s65, 2000000")
    A(f"s_cbranch_scc1 {n}_Cas")
    A.label(f"{n}_Cna2")
    R = 96; AR = 16; T = 32
    for q in range(4):
        A(f"ds_read_b64_tr_b16 {vr(AR+2*q,2)}, v13 offset:{(32*(q>>1)+4*(q&1))*128}")
    A(f"ds_read_b64_tr_b16 {vr(AR+8,2)}, v12 offset:{64*128}")
    A("ds_read_b64 v[8:9], v15")
    A(f"s_mul_i32 s65, s{S_W}, 5120")
    A("v_add_u32 v14, s65, v2")
    A("v_add_u32 v3, 40960, v14")
    A("s_waitcnt lgkmcnt(0)")
    for i in range(10):
        A(f"v_lshlrev_b32 v{T+2*i}, 16, v{AR+i}")
        A(f"v_and_b32 v{T+2*i+1}, 0xffff0000, v{AR+i}")
    for i in range(20): A(f"v_mul_f32 v{T+i}, v8, v{T+i}")
    A("v_mov_b32 v8, v9")
    if "tstamp" in OPT: A.stamp(2)
    A.bar("RED")
    if "tstamp" in OPT: A.stamp(3); A("s_waitcnt lgkmcnt(0)")
    for q in range(5):
        for src in range(4):
            A(f"ds_read_b128 {vr(R+(src*5+q)*4,4)}, v{14 if src < 2 else 3} offset:{(src&1)*20480+q*1024}")
    O = 56
    for q in range(5):
        A(f"s_waitcnt lgkmcnt({min(15, 16 - 4*q)})")
        for h in range(2):
            r = R + 4*q + 2*h
            A(f"v_pk_add_f32 {vr(r,2)}, {vr(r,2)}, {vr(r+20,2)}")
            A(f"v_pk_add_f32 {vr(r+40,2)}, {vr(r+40,2)}, {vr(r+60,2)}")
        for h in range(2):
            r = R + 4*q + 2*h
            A(f"v_pk_add_f32 {vr(r,2)}, {vr(r,2)}, {vr(r+40,2)}")
        for h in range(2):
            r = R + 4*q + 2*h
            A(f"v_pk_fma_f32 {vr(T+4*q+2*h,2)}, {vr(r,2)}, v[8:9], {vr(T+4*q+2*h,2)}")
        for h in range(2):
            A(f"v_cvt_pk_bf16_f32 v{O+2*q+h}, v{T+4*q+2*h}, v{T+4*q+2*h+1}")
        if q == 1: A(f"buffer_store_dwordx4 {vr(O,4)}, v10, s[16:19], 0 offen")
        if q == 3: A(f"buffer_store_dwordx4 {vr(O+4,4)}, v10, s[16:19], 0 offen offset:64")
    if "tstamp" in OPT: A.stamp(4)
    A("s_mov_b64 exec, 0xffffffff")
    A(f"buffer_store_dwordx2 {vr(O+8,2)}, v11, s[16:19], 0 offen offset:128")
    A("s_mov_b64 exec, -1")

if __name__ == "__main__":
    diag = "--diag" in sys.argv
    out = [a for a in sys.argv[1:] if not a.startswith("--")][0]
    H = Stream(diag); C = Stream(diag); L = Stream(diag)
    header(H); gen_L(L, diag); gen_C(C, diag)
    assert C.bars == L.bars, [(a, b) for a, b in zip(C.bars, L.bars) if a != b][:5]
    launch = f"; @launch grid=(256,1,1) block=(512,1,1) lds={LDS_TOTAL}\n"
    if "--list" in sys.argv:
        launch = f"; @launch kernel={NAME} grid=(256,1,1) block=(512,1,1) lds={LDS_TOTAL}\n"
    if "nosc1" in OPT:
        L.lines = [l.replace(" sc1", "") if ("buffer_load_dwordx4" in l or "v201, v200, s[4:7]" in l) else l for l in L.lines]
    for flag in ("sc1", "nt", "sc0 sc1"):
        if "out" + flag.replace(" ", "") in OPT:
            C.lines = [l + " " + flag if ("buffer_store" in l and "s[16:19], 0 offen" in l) else l for l in C.lines]
    open(out, "w").write(HEADER + launch + '.amdgcn_target "amdgcn-amd-amdhsa--gfx950"\n.text\n' + H.text() + L.text() + C.text() + '.section .rodata,"a"\n' + kernel_desc(NAME, 256))
```
